```python
import torch

def _softmax(x, axis=-1):
    return torch.softmax(x, dim=axis)
def _gelu(x):
    return torch.nn.functional.gelu(x, approximate="tanh")
def _silu(x):
    return torch.nn.functional.silu(x)
def _sigmoid(x):
    return torch.sigmoid(x)
def _layernorm(x, axis=-1, eps=1e-5):
    m = x.mean(dim=axis, keepdim=True)
    v = x.var(dim=axis, keepdim=True, unbiased=False)
    return (x - m) / torch.sqrt(v + eps)
def _scatter_add(tgt, idx, src, axis=0):
    return tgt.clone().index_add_(axis, idx, src)
def _segment_sum(src, seg, n):
    out = torch.zeros((n,) + src.shape[1:], dtype=src.dtype)
    return out.index_add_(0, seg, src)
def _pad(x, pw):
    flat = tuple(v for pair in reversed(pw) for v in pair)
    return torch.nn.functional.pad(x, flat)

kernel_name = 'concat_heads__linear_kernel_hedgehog__mha_block__prompt'

def setup_inputs():

    _w = (lambda a: (lambda t: t.to(torch.bfloat16) if t.is_floating_point() else t)(torch.as_tensor(a)))
    def _A_setup():
        B, S, D, H = 1, 2048, 640, 32
        Dh = D // H
        return {
            "x": _w((lambda *s: torch.randn(*s, dtype=torch.bfloat16) * 0.4)(B, S, D)),
            "wqkv": _w((lambda *s: torch.randn(*s, dtype=torch.bfloat16) * 0.4)(D, 3 * D)),
            "w_phi": _w((lambda *s: torch.randn(*s, dtype=torch.bfloat16) * 0.4)(H, Dh, Dh) * (Dh ** -0.5)),
            "wo": _w((lambda *s: torch.randn(*s, dtype=torch.bfloat16) * 0.05)(D, D)),
        }
    _A_in = _A_setup()

    def _B_setup():
        B, S, D, H = 1, 2048, 640, 32
        return {
            "x": _w((lambda *s: torch.randn(*s, dtype=torch.bfloat16) * 0.2)(B, S, D)),
            "wqkv": _w((lambda *s: torch.randn(*s, dtype=torch.bfloat16) * 0.2)(D, 3 * D)),
            "wo": _w((lambda *s: torch.randn(*s, dtype=torch.bfloat16) * 0.05)(D, D)),
        }
    _B_in = _B_setup()

    return {
        "A_x": _A_in["x"],
        "A_wqkv": _A_in["wqkv"],
        "A_w_phi": _A_in["w_phi"],
        "A_wo": _A_in["wo"],
        "B_x": _B_in["x"],
        "B_wqkv": _B_in["wqkv"],
        "B_wo": _B_in["wo"],
    }

def reference(A_x, A_wqkv, A_w_phi, A_wo, B_x, B_wqkv, B_wo):
    def _A_ref(x, wqkv, w_phi, wo):
        B, S, D = x.shape
        H = 32; Dh = D // H
        qkv = (lambda x, *d: x.permute(*d))((x @ wqkv).reshape(B, S, 3, H, Dh), 2, 0, 3, 1, 4)
        q, k, v = qkv[0], qkv[1], qkv[2]
        pq = torch.einsum("bhsd,hdf->bhsf", q, w_phi)
        pk = torch.einsum("bhsd,hdf->bhsf", k, w_phi)
        phi_q = torch.concatenate([_softmax(pq, axis=-1), _softmax(-pq, axis=-1)], axis=-1)
        phi_k = torch.concatenate([_softmax(pk, axis=-1), _softmax(-pk, axis=-1)], axis=-1)
        kv = torch.einsum("bhsf,bhsd->bhfd", phi_k, v)
        z  = torch.einsum("bhsf->bhf", phi_k)
        num = torch.einsum("bhqf,bhfd->bhqd", phi_q, kv)
        den = torch.einsum("bhqf,bhf->bhq", phi_q, z)[..., None] + 1e-6
        o = num / den
        return (lambda x, *d: x.permute(*d))(o, 0, 2, 1, 3).reshape(B, S, D) @ wo

    def _B_ref(x, wqkv, wo):
        B, S, D = x.shape
        H = 32
        Dh = D // H
        qkv = (lambda x, *d: x.permute(*d))((x @ wqkv).reshape(B, S, 3, H, Dh), 2, 0, 3, 1, 4)
        q, k, v = qkv[0], qkv[1], qkv[2]
        scores = torch.einsum("bhqd,bhkd->bhqk", q, k) * (Dh ** -0.5)
        p = _softmax(scores, axis=-1)
        o = torch.einsum("bhqk,bhkd->bhqd", p, v)
        return (lambda x, *d: x.permute(*d))(o, 0, 2, 1, 3).reshape(B, S, D) @ wo

    a = _A_ref(A_x, A_wqkv, A_w_phi, A_wo)
    b = _B_ref(B_x, B_wqkv, B_wo)
    return torch.concatenate([a, b], axis=-1)
```

```python
class Asm:
    def __init__(self):
        self.L = []
        self.uid = 0
    def __call__(self, s):
        for line in s.strip("\n").split("\n"):
            line = line.strip()
            if not line: continue
            if line.endswith(":") or line.startswith("."):
                self.L.append(line)
            else:
                self.L.append("    " + line)
    def c(self, s): self.L.append("    ; " + s)
    def label(self, name): self.L.append(name + ":")
    def new(self, p="L"):
        self.uid += 1
        return f"{p}_{self.uid}"
    def text(self): return "\n".join(self.L) + "\n"

def v(i, n=1): return f"v{i}" if n == 1 else f"v[{i}:{i+n-1}]"
def s(i, n=1): return f"s{i}" if n == 1 else f"s[{i}:{i+n-1}]"
def a(i, n=1): return f"a{i}" if n == 1 else f"a[{i}:{i+n-1}]"

def kernel_begin(A, name):
    A(f""".text
.globl {name}
.p2align 8
.type {name},@function
{name}:""")

def kernel_desc(name, vgpr, sgpr=102, accum=None):
    accum = accum or ((vgpr + 3) // 4 * 4)
    return f""".section .rodata,"a"
.p2align 6
.amdhsa_kernel {name}
  .amdhsa_next_free_vgpr {vgpr}
  .amdhsa_next_free_sgpr {sgpr}
  .amdhsa_accum_offset {accum}
  .amdhsa_group_segment_fixed_size 0
  .amdhsa_kernarg_size 80
  .amdhsa_user_sgpr_count 2
  .amdhsa_user_sgpr_kernarg_segment_ptr 1
  .amdhsa_system_sgpr_workgroup_id_x 1
  .amdhsa_float_denorm_mode_32 3
.end_amdhsa_kernel
"""

def srd(A, d, lo, hi, size):
    A(f"s_mov_b32 s{d}, s{lo}")
    A(f"s_and_b32 s{d+1}, s{hi}, 0xffff")
    A(f"s_mov_b32 s{d+2}, {size:#x}")
    A(f"s_mov_b32 s{d+3}, 0x20000")

import os
STAMPS = os.environ.get("STAMPS", "0") == "1"
TS_OFF = 0x3000000
def stamp(A, idx, base=70):
    if not STAMPS: return
    A(f"s_memtime s[{base+2*idx}:{base+2*idx+1}]")
def stamp_flush(A, n, slot, wave_sgpr, base=70, ws_karg=72, tmp=60):
    if not STAMPS: return
    A(f"""
    s_waitcnt vmcnt(0) lgkmcnt(0)
    s_load_dwordx2 s[{tmp}:{tmp+1}], s[0:1], {ws_karg}
    s_waitcnt lgkmcnt(0)
    s_add_u32 s{tmp}, s{tmp}, {TS_OFF + slot*0x100000:#x}
    s_addc_u32 s{tmp+1}, s{tmp+1}, 0
    s_lshl_b32 s{tmp+2}, s2, 4
    s_add_u32 s{tmp+2}, s{tmp+2}, s{wave_sgpr}
    s_lshl_b32 s{tmp+2}, s{tmp+2}, 7
    v_mov_b32 v4, s{tmp+2}
    s_mov_b64 exec, 1
    """)
    for i in range(n):
        A(f"""
        v_mov_b32 v2, s{base+2*i}
        v_mov_b32 v3, s{base+2*i+1}
        global_store_dwordx2 v4, v[2:3], s[{tmp}:{tmp+1}] offset:{8*i}
        s_waitcnt vmcnt(0)
        """)
```

```python
import re
REG = re.compile(r'^(v|s|a)(\d+)$|^(v|s|a)\[(\d+):(\d+)\]$')
def regs(tok):
    tok = tok.strip()
    neg = tok.lstrip('-')
    if neg.startswith('abs(') and neg.endswith(')'): neg = neg[4:-1]
    if neg.startswith('|') and neg.endswith('|'): neg = neg[1:-1]
    tok = neg
    if tok == 'vcc': return {('s', 106), ('s', 107)}
    if tok == 'vcc_lo': return {('s', 106)}
    if tok == 'vcc_hi': return {('s', 107)}
    if tok == 'exec': return {('s', 126), ('s', 127)}
    if tok == 'm0': return {('s', 124)}
    m = REG.match(tok)
    if not m: return set()
    if m.group(1): return {(m.group(1), int(m.group(2)))}
    return {(m.group(3), i) for i in range(int(m.group(4)), int(m.group(5)) + 1)}

TRANS = ('v_exp_', 'v_log_', 'v_rcp_', 'v_rsq_', 'v_sqrt_', 'v_sin_', 'v_cos_')
def passes(mn):
    if '32x32x4_2b' in mn or '32x32x2' in mn: return 16
    if '32x32' in mn: return 8
    if '16x16' in mn: return 4
    if '4x4' in mn: return 2
    raise ValueError(mn)

class I:
    def __init__(self, text):
        self.text = text
        t = text.split(';')[0].strip()
        self.is_label = t.endswith(':')
        self.is_dir = t.startswith('.') and not self.is_label
        self.mn = ''; self.ops = []
        self.wv = set(); self.rv = set()
        self.kind = None
        if self.is_label or self.is_dir or not t:
            self.kind = 'meta'; self.label = t[:-1] if self.is_label else None; return
        parts = t.split(None, 1)
        self.mn = mn = parts[0]
        rest = parts[1] if len(parts) > 1 else ''
        ops = [o.strip() for o in rest.split(',')] if rest else []
        clean = []
        self.mods = ''
        for o in ops:
            sp = o.split()
            if sp:
                clean.append(sp[0]); self.mods += ' ' + ' '.join(sp[1:])
        self.ops = ops = clean
        R = lambda idxs: set().union(*[regs(ops[i]) for i in idxs if i < len(ops)]) if idxs else set()
        n = len(ops)
        if mn.startswith('v_mfma') or mn.startswith('v_smfmac'):
            self.kind = 'mfma'; self.D = R([0]); self.AB = R([1, 2]); self.C = R([3]); self.p = passes(mn)
            self.wv = self.D; self.rv = self.AB | self.C
        elif mn.startswith('v_cmp'):
            self.kind = 'valu'; self.wv = R([0]); self.rv = R(range(1, n))
            if mn.startswith('v_cmpx'): self.wv |= regs('exec')
        elif mn.startswith('v_readfirstlane') or mn.startswith('v_readlane'):
            self.kind = 'valu'; self.wv = R([0]); self.rv = R(range(1, n)); self.lane_read = True
        elif mn.startswith('v_permlane') :
            self.kind = 'valu'; self.wv = R([0, 1]); self.rv = R([0, 1]); self.permlane = True
        elif mn.startswith('v_'):
            self.kind = 'valu'
            if re.match(r'v_(add|sub|subrev|addc|subb|subbrev)_co_', mn) or mn.startswith('v_div_scale') or mn.startswith('v_mad_u64'):
                self.wv = R([0, 1]); self.rv = R(range(2, n))
            else:
                self.wv = R([0]); self.rv = R(range(1, n))
            if mn.startswith('v_cndmask') and n == 3: self.rv |= regs('vcc')
            if mn.startswith('v_cndmask') and n == 4: pass
            if mn.startswith('v_fmac') or mn.startswith('v_mac') or mn.startswith('v_pk_fmac') or mn.startswith('v_dot2c') or 'UNUSED_PRESERVE' in self.mods or mn.startswith('v_writelane'):
                self.rv |= R([0])
            if mn.startswith('v_accvgpr_write'): pass
        elif mn.startswith('ds_'):
            self.kind = 'ds'
            if mn.startswith('ds_read') or mn.startswith('ds_bpermute') or mn.startswith('ds_permute') or mn.startswith('ds_swizzle') or '_rtn' in mn:
                self.wv = R([0]); self.rv = R(range(1, n))
            else:
                self.rv = R(range(0, n))
        elif mn.startswith('buffer_') or mn.startswith('global_') or mn.startswith('flat_'):
            self.kind = 'vmem'
            lds = ' lds' in (' ' + self.mods + ' ')
            self.lds = lds
            if mn.startswith('buffer_inv') or mn.startswith('buffer_wbl2'):
                pass
            elif ('load' in mn and not lds and 'load_lds' not in mn):
                self.wv = R([0]); self.rv = R(range(1, n))
            elif 'atomic' in mn and ' sc0' in (' ' + self.mods):
                self.wv = R([0]); self.rv = R(range(0 if mn.startswith('buffer') else 1, n))
            else:
                self.rv = R(range(0, n))
            if lds or 'load_lds' in mn: self.rv |= regs('m0'); self.lds = True
            self.store = 'store' in mn or 'atomic' in mn
            self.wide = self.store and ('x3' in mn or 'x4' in mn)
            if self.wide:
                self.data = R([0]) if mn.startswith('buffer') else R([1])
        elif mn.startswith('s_'):
            self.kind = 'salu'
            if mn in ('s_nop',): self.kind = 'nop'; self.n = int(ops[0], 0) + 1
            elif mn.startswith('s_cmp') or mn.startswith('s_cbranch') or mn in ('s_branch', 's_barrier', 's_endpgm', 's_waitcnt', 's_setprio', 's_sleep', 's_bitcmp1_b32', 's_bitcmp0_b32'):
                self.rv = R(range(0, n))
            elif mn.startswith('s_load') or mn.startswith('s_buffer_load') or mn.startswith('s_mem'):
                self.wv = R([0]); self.rv = R(range(1, n)); self.kind = 'smem'
            else:
                self.wv = R([0]); self.rv = R(range(1, n))
                if 'saveexec' in mn: self.wv |= regs('exec'); self.rv |= regs('exec')
        else:
            raise ValueError("unknown instr: " + text)
        self.trans = self.kind == 'valu' and mn.startswith(TRANS)
        self.sdwa_dst = self.kind == 'valu' and (('dst_sel:WORD' in self.mods) or ('dst_sel:BYTE' in self.mods) or ('op_sel' in self.mods and 'cvt' in mn))
    def states(self):
        if self.kind == 'meta': return 0
        if self.kind == 'nop': return self.n
        return 1

def isv(S): return {r for r in S if r[0] in 'va'}
def iss(S): return {r for r in S if r[0] == 's'}

def need(p, c):
    n = 0
    pk, ck = p.kind, c.kind
    if pk == 'valu':
        wv, ws = isv(p.wv), iss(p.wv)
        if ck == 'mfma' and wv & c.rv: n = max(n, 2)
        if ck == 'mfma' and regs('exec') & ws: n = max(n, 4)
        if ck == 'valu':
            if p.trans and not c.trans and (wv & (c.rv)): n = max(n, 1)
            if p.trans and c.trans and (wv & c.rv): n = max(n, 1)
            if p.sdwa_dst and (wv & (c.rv | c.wv)): n = max(n, 1)
            if getattr(c, 'lane_read', False):
                if wv & c.rv: n = max(n, 1)
                if ws & c.rv: n = max(n, 4)
            if getattr(c, 'permlane', False) and wv & c.rv: n = max(n, 2)
            if ('dpp' in c.mn or 'row_' in c.mods or 'quad_perm' in c.mods) and wv & c.rv: n = max(n, 2)
            if ws & iss(c.rv): n = max(n, 2)
        if ck in ('vmem',) and ws & iss(c.rv): n = max(n, 5)
        if ck == 'ds' and ws & iss(c.rv): n = max(n, 5)
        if ck in ('salu', 'smem') and ws & c.rv: n = max(n, 1) if False else n
        if p.trans and ck in ('vmem', 'ds') and (wv & c.rv): n = max(n, 1)
    if pk == 'mfma':
        P = p.p
        t_valu = {2: 5, 4: 8, 8: 12, 16: 20}[P]
        t_ovl = {2: 4, 4: 6, 8: 10, 16: 18}[P]
        if ck == 'valu' and (p.D & (c.rv | c.wv)): n = max(n, t_valu)
        if ck in ('vmem', 'ds') and (p.D & (c.rv | c.wv)): n = max(n, t_valu)
        if ck == 'mfma':
            if p.D & c.AB: n = max(n, t_valu)
            if p.D & c.C:
                if p.D == c.C and p.p == c.p and (p.mn == c.mn or True): n = max(n, 2 if P == 2 else 0)
                else: n = max(n, t_ovl)
            elif p.D & c.D:
                n = max(n, t_ovl)
        if ck == 'valu' and (p.C & c.wv): n = max(n, {2: 1, 4: 3, 8: 7, 16: 15}[P])
        if ck in ('vmem', 'ds') and (p.C & c.wv): n = max(n, {2: 1, 4: 3, 8: 7, 16: 15}[P])
    if pk == 'vmem' and getattr(p, 'wide', False):
        if p.data & c.wv: n = max(n, 2)
    if pk == 'ds' and p.mn in ('ds_write_b128', 'ds_write_b96') and ck == 'valu':
        pass
    if pk == 'salu' and (('s', 124) in p.wv):
        if ck == 'vmem' and getattr(c, 'lds', False): n = max(n, 1)
        if ck == 'ds' and 'addtid' in c.mn: n = max(n, 1)
    return n

MAXW = 21
def fix(lines, verbose=True):
    ins = [I(l) for l in lines]
    total = 0
    def build():
        labels = {x.label: i for i, x in enumerate(ins) if x.kind == 'meta' and x.is_label}
        preds = [[] for _ in ins]
        for i, x in enumerate(ins):
            if i + 1 < len(ins) and not (x.mn in ('s_branch', 's_endpgm')):
                preds[i + 1].append(i)
            if x.mn.startswith('s_cbranch') or x.mn == 's_branch':
                tgt = x.ops[0]
                if tgt in labels: preds[labels[tgt]].append(i)
        return preds
    def deficit(i, preds):
        c = ins[i]
        worst = 0; seen = {}
        stack = [(p, 0) for p in preds[i]]
        while stack:
            j, d = stack.pop()
            if d >= MAXW: continue
            if seen.get(j, 99) <= d: continue
            seen[j] = d
            p = ins[j]
            if p.kind not in ('meta', 'nop'):
                nd = need(p, c)
                if nd > d: worst = max(worst, nd - d)
            d2 = d + p.states()
            for q in preds[j]: stack.append((q, d2))
        return worst
    for _round in range(3):
        changed = False
        preds = build()
        i = 0
        while i < len(ins):
            c = ins[i]
            if c.kind not in ('meta', 'nop'):
                k = deficit(i, preds)
                if k:
                    total += k; changed = True
                    if verbose: print(f"hazard: +{k} before: {c.text.strip()}")
                    new = []
                    while k > 0:
                        m = min(k, 16); new.append(I(f"    s_nop {m-1}")); k -= m
                    ins[i:i] = new
                    i += len(new)
                    preds = build()
            i += 1
        if not changed: break
    return [x.text for x in ins], total
```

```python
from asmlib import *
from layout import *

STAGE = 49152
def gen_k1(A, name):
    kernel_begin(A, name)
    A(f"""
    s_cmp_ge_u32 s2, 256
    s_cbranch_scc1 {name}_done
    s_load_dwordx4 s[4:7], s[0:1], 0
    s_load_dwordx2 s[8:9], s[0:1], 16
    s_load_dwordx4 s[12:15], s[0:1], 32
    s_load_dwordx2 s[16:17], s[0:1], 72
    v_and_b32 v1, 63, v0
    v_lshrrev_b32 v2, 6, v0
    s_nop 0
    v_readfirstlane_b32 s32, v2
    s_cmp_ge_u32 s2, 240
    s_cbranch_scc1 {name}_prep
    s_and_b32 s33, s2, 7
    s_lshr_b32 s35, s2, 3
    s_and_b32 s34, s33, 3
    s_lshl_b32 s34, s34, 1
    s_lshr_b32 s33, s33, 2
    s_cmp_ge_u32 s35, 15
    s_cselect_b32 s43, 1, 0
    s_add_u32 s34, s34, s43
    s_mul_i32 s43, s43, 15
    s_sub_u32 s35, s35, s43
    s_lshr_b32 s36, s32, 1
    s_and_b32 s37, s32, 1
    s_waitcnt lgkmcnt(0)
    s_cmp_eq_u32 s33, 0
    s_cselect_b64 s[4:5], s[4:5], s[12:13]
    s_cselect_b64 s[6:7], s[6:7], s[14:15]
    """)
    stamp(A, 0)
    srd(A, 20, 4, 5, X_BYTES)
    srd(A, 24, 6, 7, W_BYTES)
    A(f"""
    s_lshl_b32 s43, s33, 24
    s_add_u32 s16, s16, s43
    s_addc_u32 s17, s17, 0
    """)
    srd(A, 28, 16, 17, BR)
    A.c("X DMA voffsets v2..v5: row = 32w + 8i + (l>>3); piece = (l&7) ^ ((4i + (l>>4))&7)")
    A(f"""
    v_lshrrev_b32 v7, 3, v1
    s_lshl_b32 s43, s32, 5
    v_add_u32 v7, s43, v7
    v_mul_u32_u24 v7, 1280, v7
    v_lshrrev_b32 v8, 4, v1
    v_and_b32 v9, 7, v1
    """)
    for i in range(4):
        A(f"""
        v_add_u32 v10, {4*i}, v8
        v_and_b32 v10, 7, v10
        v_xor_b32 v10, v10, v9
        v_lshlrev_b32 v10, 4, v10
        v_add_u32 v10, v10, v7
        v_add_u32 v{2+i}, {8*i*1280}, v10
        """)
    A.c("W DMA voffset v6: k = 8w + (l>>4); quad = ((l>>2)&3) ^ ((l>>4)&3); + (l&3)*16")
    A(f"""
    s_lshl_b32 s43, s32, 3
    v_add_u32 v7, s43, v8
    v_mul_u32_u24 v7, 3840, v7
    v_lshrrev_b32 v9, 2, v1
    v_xor_b32 v9, v9, v8
    v_and_b32 v9, 3, v9
    v_lshlrev_b32 v9, 6, v9
    v_and_b32 v10, 3, v1
    v_lshlrev_b32 v10, 4, v10
    v_add3_u32 v6, v7, v9, v10
    """)
    A.c("frag read addresses: xa[kk] v8..v11 ; wa[nt] v12,v13")
    A(f"""
    v_and_b32 v14, 31, v1
    v_lshrrev_b32 v15, 5, v1
    s_lshl_b32 s43, s36, 6
    v_add_u32 v7, s43, v14
    v_lshlrev_b32 v7, 7, v7
    v_lshrrev_b32 v16, 1, v14
    v_and_b32 v16, 7, v16
    v_xor_b32 v16, v16, v15
    """)
    for kk in range(4):
        A(f"""
        v_xor_b32 v17, {2*kk}, v16
        v_lshlrev_b32 v17, 4, v17
        v_add_u32 v{8+kk}, v7, v17
        """)
    A(f"""
    v_lshrrev_b32 v16, 2, v1
    v_and_b32 v16, 3, v16
    v_lshlrev_b32 v17, 11, v15
    v_lshlrev_b32 v18, 8, v16
    v_add_u32 v17, v17, v18
    v_lshrrev_b32 v18, 4, v1
    v_and_b32 v18, 1, v18
    v_lshlrev_b32 v18, 5, v18
    v_add_u32 v17, v17, v18
    v_and_b32 v18, 3, v1
    v_lshlrev_b32 v18, 3, v18
    v_add_u32 v17, v17, v18
    v_add_u32 v17, 32768, v17
    s_lshl_b32 s43, s37, 1
    """)
    for nt in range(2):
        A(f"""
        s_add_u32 s44, s43, {nt}
        v_xor_b32 v18, s44, v16
        v_lshlrev_b32 v18, 6, v18
        v_add_u32 v{12+nt}, v17, v18
        """)
    A(f"""
    s_mul_i32 s38, s34, {256*1280}
    s_lshl_b32 s39, s35, 8
    s_mov_b32 s40, 0
    s_lshl_b32 s44, s32, 12
    s_lshl_b32 s45, s32, 11
    s_add_u32 s45, s45, 32768
    """)
    for i in range(64): A(f"v_mov_b32 v{64+i}, 0")
    def dma():
        for i in range(4):
            A(f"s_add_u32 s46, s40, s44")
            A(f"s_add_u32 m0, s46, {i*1024}")
            A(f"s_nop 0")
            A(f"buffer_load_dwordx4 v{2+i}, s[20:23], s38 offen lds")
        for i in range(2):
            A(f"s_add_u32 s46, s40, s45")
            A(f"s_add_u32 m0, s46, {i*1024}")
            A(f"s_add_u32 s46, s39, {i*4*3840}")
            A(f"buffer_load_dwordx4 v6, s[24:27], s46 offen lds")
        A(f"""
        s_add_u32 s38, s38, 128
        s_add_u32 s39, s39, {64*3840}
        s_add_u32 s40, s40, {STAGE}
        s_cmp_eq_u32 s40, {3*STAGE}
        s_cselect_b32 s40, 0, s40
        """)
    dma(); dma()
    stamp(A, 1)
    A(f"""
    s_cmp_ge_u32 s35, 10
    s_cbranch_scc1 {name}_N
    """)
    def reads(kk, b):
        for st in range(2):
            A(f"ds_read_b128 {v(16+16*b+4*st,4)}, v{8+kk} offset:{4096*st}")
        for nt in range(2):
            for jj in range(2):
                A(f"ds_read_b64_tr_b16 {v(24+16*b+4*nt+2*jj,2)}, v{12+nt} offset:{kk*4096+jj*1024}")
    def mfmas(b, orient):
        for nt in range(2):
            for st in range(2):
                X = v(16+16*b+4*st,4); W = v(24+16*b+4*nt,4)
                if orient == "T":
                    D = v(64+16*(2*nt+st),16); A(f"v_mfma_f32_32x32x16_bf16 {D}, {W}, {X}, {D}")
                else:
                    D = v(64+16*(2*st+nt),16); A(f"v_mfma_f32_32x32x16_bf16 {D}, {X}, {W}, {D}")
    def mainloop(orient):
        Lh = f"{name}_loop{orient}"
        A(f"""
        s_mov_b32 s41, 0
        s_mov_b32 s47, 0
        {Lh}:
        s_cmp_eq_u32 s41, 9
        s_cbranch_scc1 {Lh}_w0
        s_waitcnt vmcnt(6)
        s_branch {Lh}_w1
        {Lh}_w0:
        s_waitcnt vmcnt(0)
        {Lh}_w1:
        s_barrier
        """)
        if STAMPS:
            A(f"s_cmp_eq_u32 s41, 0")
            A(f"s_cbranch_scc0 {Lh}_s2")
            stamp(A, 2)
            A(f"{Lh}_s2:")
            A(f"s_cmp_eq_u32 s41, 5")
            A(f"s_cbranch_scc0 {Lh}_s3")
            stamp(A, 3)
            A(f"{Lh}_s3:")
        reads(0, 0); reads(1, 1)
        A(f"""
        s_cmp_ge_u32 s41, 8
        s_cbranch_scc1 {Lh}_nodma
        """)
        dma()
        A(f"{Lh}_nodma:")
        A("s_waitcnt lgkmcnt(6)")
        mfmas(0, orient)
        reads(2, 0)
        A("s_waitcnt lgkmcnt(6)")
        mfmas(1, orient)
        reads(3, 1)
        A("s_waitcnt lgkmcnt(6)")
        mfmas(0, orient)
        A("s_waitcnt lgkmcnt(0)")
        mfmas(1, orient)
        A(f"""
        s_add_u32 s47, s47, {STAGE}
        s_cmp_eq_u32 s47, {3*STAGE}
        s_mov_b32 s48, {STAGE}
        s_cselect_b32 s48, {-2*STAGE & 0xffffffff:#x}, s48
        s_cselect_b32 s47, 0, s47
        """)
        for r in range(8, 14): A(f"v_add_u32 v{r}, s48, v{r}")
        A(f"""
        s_add_u32 s41, s41, 1
        s_cmp_lt_u32 s41, 10
        s_cbranch_scc1 {Lh}
        s_nop 15
        """)
        stamp(A, 4)
    mainloop("T")
    A.c("epilogue T")
    A(f"""
    s_cmp_ge_u32 s35, 5
    s_cselect_b32 s43, 1, 0
    s_mov_b32 s50, {QH}
    s_mov_b32 s51, {QC}
    s_mov_b32 s52, {QOFF}
    s_cselect_b32 s50, {KVH}, s50
    s_cselect_b32 s51, {KVC}, s51
    s_cselect_b32 s52, {KVOFF}, s52
    s_mul_i32 s51, s51, s34
    s_add_u32 s52, s52, s51
    s_mul_i32 s44, s43, 5
    s_sub_u32 s44, s35, s44
    s_lshl_b32 s44, s44, 5
    s_lshl_b32 s45, s37, 4
    s_add_u32 s44, s44, s45
    s_mov_b32 s53, 1.0
    s_and_b32 s45, s33, 1
    s_andn2_b32 s45, s45, s43
    s_cmp_eq_u32 s45, 1
    s_cselect_b32 s53, {0x3ea52b5c:#x}, s53
    v_and_b32 v14, 31, v1
    v_lshrrev_b32 v15, 5, v1
    v_add_u32 v15, s44, v15
    v_lshlrev_b32 v16, 4, v14
    v_lshlrev_b32 v17, 3, v14
    v_add_u32 v17, 8192, v17
    s_lshl_b32 s54, s36, 1
    """)
    for nt in range(2):
        for i in range(4):
            A(f"""
            v_add_u32 v18, {8*nt+2*i}, v15
            v_mul_u32_u24 v19, 205, v18
            v_lshrrev_b32 v19, 10, v19
            v_mul_u32_u24 v20, 5, v19
            v_sub_u32 v20, v18, v20
            v_lshrrev_b32 v21, 1, v20
            v_lshlrev_b32 v21, 9, v21
            v_and_b32 v22, 1, v20
            v_lshlrev_b32 v22, 3, v22
            v_add3_u32 v21, v21, v22, v16
            v_cmp_eq_u32 vcc, 4, v20
            v_mul_lo_u32 v19, v19, s50
            v_cndmask_b32 v21, v21, v17, vcc
            v_mov_b32 v22, 1024
            v_mov_b32 v23, 256
            v_cndmask_b32 v22, v22, v23, vcc
            v_add_u32 v21, v21, v19
            v_mul_lo_u32 v23, v22, s54
            v_add_u32 v21, v21, v23
            v_add_u32 v24, v21, v22
            """)
            for st in range(2):
                r0 = 64+16*(2*nt+st)+4*i
                t = 48 + 2*st + 4*(i&1)
                for e in range(4): A(f"v_mul_f32 v{r0+e}, s53, v{r0+e}")
                A(f"v_cvt_pk_bf16_f32 v{t}, v{r0}, v{r0+1}")
                A(f"v_cvt_pk_bf16_f32 v{t+1}, v{r0+2}, v{r0+3}")
                A(f"buffer_store_dwordx2 {v(t,2)}, v{21+3*st}, s[28:31], s52 offen")
    stamp(A, 5)
    A("s_waitcnt vmcnt(0)")
    stamp(A, 6)
    stamp_flush(A, 7, 0, 32)
    A("s_endpgm")
    A(f"{name}_N:")
    mainloop("N")
    A.c("epilogue N")
    A(f"""
    s_sub_u32 s44, s35, 10
    s_lshl_b32 s44, s44, 7
    s_lshl_b32 s45, s37, 6
    s_add_u32 s44, s44, s45
    s_mul_i32 s52, s34, {KVC}
    s_add_u32 s52, s52, {KVOFF + 10240}
    s_mul_i32 s45, s36, {4*640}
    s_add_u32 s52, s52, s45
    v_and_b32 v14, 31, v1
    v_lshrrev_b32 v15, 5, v1
    v_mul_u32_u24 v15, 320, v15
    s_mov_b32 s50, {KVH}
    """)
    for nt in range(2):
        A(f"""
        v_add_u32 v18, s44, v14
        v_add_u32 v18, {32*nt}, v18
        v_mul_u32_u24 v19, 3277, v18
        v_lshrrev_b32 v19, 16, v19
        v_mul_u32_u24 v20, 20, v19
        v_sub_u32 v20, v18, v20
        v_lshlrev_b32 v20, 4, v20
        v_mul_lo_u32 v19, v19, s50
        v_add3_u32 v21, v19, v20, v15
        """)
        for st in range(2):
            for m in range(2):
                r0 = 64+16*(2*st+nt)+8*m
                t = 48 + 4*((2*st+m)&3)
                for e in range(4): A(f"v_cvt_pk_bf16_f32 v{t+e}, v{r0+2*e}, v{r0+2*e+1}")
                A(f"buffer_store_dwordx4 {v(t,4)}, v21, s[28:31], s52 offen offset:{(2*st+m)*640}")
    stamp(A, 5)
    A("s_waitcnt vmcnt(0)")
    stamp(A, 6)
    stamp_flush(A, 7, 0, 32)
    A("s_endpgm")
    A(f"{name}_prep:")
    A(f"""
    s_cmp_ge_u32 s32, 3
    s_cbranch_scc1 {name}_done
    s_waitcnt lgkmcnt(0)
    """)
    srd(A, 20, 8, 9, 32*20*20*2)
    srd(A, 28, 16, 17, BR)
    A(f"""
    v_and_b32 v14, 31, v1
    v_lshrrev_b32 v15, 5, v1
    s_cmp_eq_u32 s32, 2
    s_cbranch_scc1 {name}_sel
    s_sub_u32 s33, s2, 240
    s_lshl_b32 s33, s33, 1
    s_add_u32 s33, s33, s32
    """)
    A.c("f(p): p<18 -> p ; p in {20,21} -> p-2 ; else invalid")
    A(f"""
    v_subrev_u32 v2, 2, v14
    v_cmp_gt_u32 vcc, 18, v14
    v_cndmask_b32 v2, v2, v14, vcc
    v_and_b32 v3, 30, v14
    v_cmp_eq_u32 s[40:41], 20, v3
    s_or_b64 s[40:41], s[40:41], vcc
    v_lshlrev_b32 v2, 1, v2
    s_mul_i32 s34, s33, 800
    v_add_u32 v2, s34, v2
    v_mul_u32_u24 v3, {8*40}, v15
    v_add_u32 v3, v2, v3
    v_mov_b32 v4, 0x7fffffff
    v_cndmask_b32 v3, v4, v3, s[40:41]
    v_cmp_eq_u32 vcc, 0, v15
    s_and_b64 s[40:41], s[40:41], vcc
    v_add_u32 v2, {16*40}, v2
    v_cndmask_b32 v2, v4, v2, s[40:41]
    """)
    for j in range(8): A(f"buffer_load_ushort v{16+j}, v3, s[20:23], 0 offen offset:{40*j}")
    for j in range(4): A(f"buffer_load_ushort v{24+j}, v2, s[20:23], 0 offen offset:{40*j}")
    A("s_waitcnt vmcnt(0)")
    for j in range(6): A(f"v_lshl_or_b32 v{32+j}, v{17+2*j}, 16, v{16+2*j}")
    A(f"""
    s_mul_i32 s34, s33, 1536
    s_add_u32 s34, s34, {WPH}
    v_lshlrev_b32 v2, 4, v1
    v_lshlrev_b32 v3, 3, v1
    buffer_store_dwordx4 v[32:35], v2, s[28:31], s34 offen
    buffer_store_dwordx2 v[36:37], v3, s[28:31], s34 offen offset:1024
    s_endpgm
    """)
    A(f"{name}_sel:")
    A.c("Sel16: lane(p'=l&31, half'): j-th elem = 1 iff p' == 8(j/4)+4half'+(j%4) ; Sel8: p' == 16+4half'+j")
    A(f"""
    s_cmp_lg_u32 s2, 240
    s_cbranch_scc1 {name}_done
    v_lshlrev_b32 v2, 2, v15
    v_sub_u32 v2, v14, v2
    """)
    for j in range(8):
        tgt = 8*(j//4) + (j%4)
        A(f"""
        v_cmp_eq_u32 vcc, {tgt}, v2
        v_mov_b32 v3, 0x3f80
        v_cndmask_b32 v{16+j}, 0, v3, vcc
        """)
    for j in range(4):
        A(f"""
        v_cmp_eq_u32 vcc, {16+j}, v2
        v_mov_b32 v3, 0x3f80
        v_cndmask_b32 v{24+j}, 0, v3, vcc
        """)
    for j in range(6): A(f"v_lshl_or_b32 v{32+j}, v{17+2*j}, 16, v{16+2*j}")
    A(f"""
    s_mov_b32 s34, {SEL}
    v_lshlrev_b32 v2, 4, v1
    v_lshlrev_b32 v3, 3, v1
    buffer_store_dwordx4 v[32:35], v2, s[28:31], s34 offen
    buffer_store_dwordx2 v[36:37], v3, s[28:31], s34 offen offset:1024
    """)
    A(f"{name}_done:")
    A("s_endpgm")
    return kernel_desc(name, 128)
```

```python
from asmlib import *
from layout import *

SLOT = 40960
SCR = 3 * SLOT
LDS = 163840
LOG2E = 0x3fb8aa3b
QA_M, QB_M, QA_R, QB_R = 4, 8, 12, 14
S0, S1, P0, P1, OA, OB = 16, 32, 48, 56, 64, 80
SETS = [dict(km=96, kr=100, v0=104, v1=108), dict(km=112, kr=116, v0=120, v1=124)]
AKM, AKR, AV = 128, 129, 130
NKM, NKR, NV = 133, 134, 135
PHQ = 136
KVL = 148
T0, T1, T2, T3 = 184, 185, 186, 187
NVGPR = 192

def mf16(A, D, a_, b_, C=None):
    A(f"v_mfma_f32_32x32x16_bf16 {v(D,16)}, {v(a_,4)}, {v(b_,4)}, {v(D,16) if C is None else C}")
def mf8(A, D, a_, b_, C=None):
    A(f"v_mfma_f32_32x32x8_bf16 {v(D,16)}, {v(a_,2)}, {v(b_,2)}, {v(D,16) if C is None else C}")

def phi(A, xm, xr, wm, wr, D, T, out):
    mf16(A, D, wm, xm, "0")
    mf8(A, D, wr, xr)
    mx, mn, t = T, T+1, T+2
    A(f"v_max3_f32 v{mx}, v{D}, v{D+1}, v{D+2}")
    A(f"v_min3_f32 v{mn}, v{D}, v{D+1}, v{D+2}")
    for r in (3, 5, 7):
        A(f"v_max3_f32 v{mx}, v{mx}, v{D+r}, v{D+r+1}")
        A(f"v_min3_f32 v{mn}, v{mn}, v{D+r}, v{D+r+1}")
    A(f"v_max_f32 v{mx}, v{mx}, v{D+9}")
    A(f"v_min_f32 v{mn}, v{mn}, v{D+9}")
    A(f"v_mov_b32 v{t}, v{mx}")
    A(f"v_mov_b32 v{t+1}, v{mn}")
    A(f"v_permlane32_swap_b32 v{mx}, v{t}")
    A(f"v_permlane32_swap_b32 v{mn}, v{t+1}")
    A(f"v_max_f32 v{mx}, v{mx}, v{t}")
    A(f"v_min_f32 v{mn}, v{mn}, v{t+1}")
    A(f"v_mul_f32 v{mx}, s41, v{mx}")
    A(f"v_mul_f32 v{mn}, s40, v{mn}")
    EP, EN = T+4, T+14
    for r in range(10):
        A(f"v_fma_f32 v{EP+r}, v{D+r}, s40, v{mx}")
        A(f"v_fma_f32 v{EN+r}, v{D+r}, s41, v{mn}")
    for r in range(10):
        A(f"v_exp_f32 v{EP+r}, v{EP+r}")
        A(f"v_exp_f32 v{EN+r}, v{EN+r}")
    sp, sn = T, T+1
    A(f"v_add_f32 v{sp}, v{EP}, v{EP+1}")
    A(f"v_add_f32 v{sn}, v{EN}, v{EN+1}")
    for r in range(2, 10):
        A(f"v_add_f32 v{sp}, v{sp}, v{EP+r}")
        A(f"v_add_f32 v{sn}, v{sn}, v{EN+r}")
    A(f"v_mov_b32 v{t}, v{sp}")
    A(f"v_mov_b32 v{t+1}, v{sn}")
    A(f"v_permlane32_swap_b32 v{sp}, v{t}")
    A(f"v_permlane32_swap_b32 v{sn}, v{t+1}")
    A(f"v_add_f32 v{sp}, v{sp}, v{t}")
    A(f"v_add_f32 v{sn}, v{sn}, v{t+1}")
    A(f"v_rcp_f32 v{sp}, v{sp}")
    A(f"v_rcp_f32 v{sn}, v{sn}")
    for r in range(10):
        A(f"v_mul_f32 v{EP+r}, v{EP+r}, v{sp}")
        A(f"v_mul_f32 v{EN+r}, v{EN+r}, v{sn}")
    for i in range(4):
        A(f"v_cvt_pk_bf16_f32 v{out+i}, v{EP+2*i}, v{EP+2*i+1}")
        A(f"v_cvt_pk_bf16_f32 v{out+6+i}, v{EN+2*i}, v{EN+2*i+1}")
    A(f"v_cvt_pk_bf16_f32 v{out+4}, v{EP+8}, v{EP+9}")
    A(f"v_cvt_pk_bf16_f32 v{out+10}, v{EN+8}, v{EN+9}")
    A(f"v_mov_b32 v{out+5}, 0")
    A(f"v_mov_b32 v{out+11}, 0")

def phase(A, Sc, Pc, Sn, qm, qr, kset, Oprev, Pprev, vset, do_qk=True, do_pv=True, do_exp=True, pre=None):
    pre = list(pre or [])
    def ex(i):
        if do_exp: A(f"v_exp_f32 v{Sc+i}, v{Sc+i}")
    def cv(i):
        if do_exp: A(f"v_cvt_pk_bf16_f32 v{Pc+i}, v{Sc+2*i}, v{Sc+2*i+1}")
    def sprinkle(n):
        for _ in range(n):
            if pre:
                for l in pre.pop(0): A(l)
    if do_qk: mf16(A, Sn, kset['km'], qm, "0")
    sprinkle(1)
    for i in range(0, 4): ex(i)
    if do_qk: mf8(A, Sn, kset['kr'], qr)
    sprinkle(1)
    for i in range(4, 8): ex(i)
    cv(0); cv(1)
    if do_pv: mf16(A, Oprev, vset['v0'], Pprev)
    sprinkle(2)
    for i in range(8, 12): ex(i)
    cv(2); cv(3)
    if do_pv: mf16(A, Oprev, vset['v1'], Pprev + 4)
    for i in range(12, 16): ex(i)
    cv(4); cv(5);
    sprinkle(8)
    cv(6); cv(7)

def gen_k2(A, name):
    kernel_begin(A, name)
    A(f"""
    s_cmp_ge_u32 s2, 256
    s_cbranch_scc1 {name}_done
    s_load_dwordx4 s[4:7], s[0:1], 64
    v_and_b32 v1, 63, v0
    v_lshrrev_b32 v2, 6, v0
    s_nop 0
    v_readfirstlane_b32 s32, v2
    s_and_b32 s33, s2, 7
    s_lshr_b32 s34, s2, 3
    s_lshl_b32 s33, s33, 2
    s_lshr_b32 s35, s34, 3
    s_add_u32 s33, s33, s35
    s_and_b32 s34, s34, 7
    s_and_b32 s35, s32, 3
    s_lshr_b32 s36, s32, 2
    s_mov_b32 s40, {LOG2E:#x}
    s_mov_b32 s41, {LOG2E | 0x80000000:#x}
    s_mov_b32 s42, 0x000fffff
    s_mov_b32 s43, 0x000fffff
    s_waitcnt lgkmcnt(0)
    """)
    stamp(A, 0)
    srd(A, 12, 6, 7, BR)
    A(f"""
    s_add_u32 s6, s6, {BR:#x}
    s_addc_u32 s7, s7, 0
    """)
    srd(A, 8, 6, 7, BR)
    A(f"""
    v_lshlrev_b32 v2, 4, v1
    s_mul_i32 s44, s33, {KVH}
    s_add_u32 s44, s44, {KVOFF}
    s_mul_i32 s45, s35, 5120
    s_mul_i32 s46, s36, {4*KVC}
    s_add_u32 s46, s46, s45
    s_add_u32 s46, s46, s44
    s_mul_i32 s47, s36, {KVC}
    s_add_u32 s47, s47, s45
    """)
    def dma_stage(st):
        for e in range(5):
            A(f"s_add_u32 m0, s47, {(st%3)*SLOT + e*1024}")
            A(f"s_add_u32 s48, s46, {st*KVC + e*1024}")
            A(f"buffer_load_dwordx4 v2, s[8:11], s48 offen lds")
    dma_stage(0)
    KXM, KXR, VX0, VX1, WM, WR, SL16, SL8, QXM, QXR = 148, 152, 156, 160, 164, 168, 172, 176, 180, 154
    A.c("A-part loads")
    A(f"""
    v_and_b32 v3, 31, v1
    v_lshrrev_b32 v131, 5, v1
    v_lshlrev_b32 v132, 3, v3
    s_mul_i32 s48, s34, {KVC}
    s_add_u32 s48, s48, s44
    s_lshl_b32 s49, s32, 10
    s_add_u32 s50, s48, s49
    buffer_load_dwordx4 {v(KXM,4)}, v2, s[12:15], s50 offen
    s_lshl_b32 s49, s32, 8
    s_add_u32 s50, s48, s49
    s_add_u32 s50, s50, 8192
    buffer_load_dwordx2 {v(KXR,2)}, v132, s[12:15], s50 offen
    """)
    A(f"""
    v_mov_b32 v{T0}, 0x3f803f80
    v_cmp_eq_u32 vcc, 20, v3
    v_cndmask_b32 v{T0}, 0, v{T0}, vcc
    """)
    for r in list(range(VX0, VX0+8)) + [SETS[0]['v0']+i for i in range(8)] + [SETS[1]['v0']+i for i in range(8)]:
        A(f"v_mov_b32 v{r}, v{T0}")
    A(f"""
    v_mul_u32_u24 v{T1}, 320, v131
    v_lshlrev_b32 v{T2}, 4, v3
    v_add_u32 v{T1}, v{T1}, v{T2}
    s_mul_i32 s49, s32, 1280
    s_add_u32 s50, s48, s49
    s_add_u32 s50, s50, 10240
    s_mov_b64 exec, s[42:43]
    buffer_load_dwordx4 {v(VX0,4)}, v{T1}, s[12:15], s50 offen
    buffer_load_dwordx4 {v(VX1,4)}, v{T1}, s[12:15], s50 offen offset:640
    s_mov_b64 exec, -1
    v_lshlrev_b32 v{T3}, 3, v1
    s_mul_i32 s50, s33, 1536
    s_add_u32 s50, s50, {WPH}
    buffer_load_dwordx4 {v(WM,4)}, v2, s[12:15], s50 offen
    buffer_load_dwordx2 {v(WR,2)}, v{T3}, s[12:15], s50 offen offset:1024
    s_mov_b32 s50, {SEL}
    buffer_load_dwordx4 {v(SL16,4)}, v2, s[12:15], s50 offen
    buffer_load_dwordx2 {v(SL8,2)}, v{T3}, s[12:15], s50 offen offset:1024
    """)
    A(f"""
    s_mul_i32 s51, s33, {QH}
    s_mul_i32 s52, s34, {QC}
    s_add_u32 s51, s51, s52
    s_add_u32 s51, s51, {QOFF}
    s_lshl_b32 s52, s35, 1
    s_add_u32 s53, s52, s36
    s_lshl_b32 s54, s53, 10
    s_add_u32 s54, s54, s51
    buffer_load_dwordx4 {v(QXM,4)}, v2, s[12:15], s54 offen
    s_lshl_b32 s54, s53, 8
    s_add_u32 s54, s54, s51
    s_add_u32 s54, s54, 8192
    buffer_load_dwordx2 {v(QXR,2)}, v132, s[12:15], s54 offen
    s_lshl_b32 s54, s52, 10
    s_add_u32 s54, s54, s51
    buffer_load_dwordx4 {v(QA_M,4)}, v2, s[8:11], s54 offen
    buffer_load_dwordx4 {v(QB_M,4)}, v2, s[8:11], s54 offen offset:1024
    """)
    for r in range(QA_R, QA_R+4): A(f"v_mov_b32 v{r}, 0")
    A(f"""
    s_lshl_b32 s54, s52, 8
    s_add_u32 s54, s54, s51
    s_add_u32 s54, s54, 8192
    s_mov_b32 exec_hi, 0
    buffer_load_dwordx2 {v(QA_R,2)}, v132, s[8:11], s54 offen
    buffer_load_dwordx2 {v(QB_R,2)}, v132, s[8:11], s54 offen offset:256
    s_mov_b64 exec, -1
    """)
    NA = 16
    dma_stage(1); dma_stage(2)
    A("s_waitcnt vmcnt(10)")
    stamp(A, 1)
    A.c("A k-side: phi_k")
    D = S0; T = S1
    PK = OA
    phi(A, KXM, KXR, WM, WR, D, T, PK)
    A.c("transpose via Sel, then kv = phi^T V")
    TP, KVa = 16, 80
    KVP_, KVN_ = 80, 32
    TB = 48
    for sign, (mo, ro, acc) in enumerate(((PK, PK+4, KVP_), (PK+6, PK+10, KVN_))):
        mf16(A, TP, mo, SL16, "0")
        mf8(A, TP, ro, SL8)
        for i in range(8): A(f"v_cvt_pk_bf16_f32 v{TB+i}, v{TP+2*i}, v{TP+2*i+1}")
        mf16(A, acc, TB, VX0, "0")
        mf16(A, acc, TB+4, VX1)
    A(f"""
    s_mul_i32 s55, s32, 5120
    s_add_u32 s55, s55, {SCR}
    v_add_u32 v{T0}, s55, v2
    v_mov_b32 v{KVP_+10}, v{KVN_+8}
    v_mov_b32 v{KVP_+11}, v{KVN_+9}
    ds_write_b128 v{T0}, {v(KVP_,4)}
    ds_write_b128 v{T0}, {v(KVP_+4,4)} offset:1024
    ds_write_b128 v{T0}, {v(KVP_+8,4)} offset:2048
    ds_write_b128 v{T0}, {v(KVN_,4)} offset:3072
    ds_write_b128 v{T0}, {v(KVN_+4,4)} offset:4096
    """)
    A.c("A q-side: phi_q (kept in regs)")
    phi(A, QXM, QXR, WM, WR, D, T + 0, PHQ)
    A(f"""
    s_waitcnt lgkmcnt(0)
    s_barrier
    s_cmp_ge_u32 s32, 5
    s_cbranch_scc1 {name}_nored
    s_lshl_b32 s55, s32, 10
    s_add_u32 s55, s55, {SCR}
    v_add_u32 v{T0}, s55, v2
    """)
    for j in range(8):
        A(f"ds_read_b128 {v(16+4*j,4)}, v{T0} offset:{j*5120}")
    A("s_waitcnt lgkmcnt(0)")
    for j in range(1, 8):
        for e in range(4): A(f"v_add_f32 v{16+e}, v{16+e}, v{16+4*j+e}")
    A(f"""
    s_mul_i32 s55, s33, {8*5120}
    s_mul_i32 s56, s34, 5120
    s_add_u32 s55, s55, s56
    s_lshl_b32 s56, s32, 10
    s_add_u32 s55, s55, s56
    s_add_u32 s55, s55, {KVP}
    buffer_store_dwordx4 v[16:19], v2, s[12:15], s55 offen sc1
    {name}_nored:
    s_waitcnt vmcnt(0)
    s_barrier
    s_cmp_lg_u32 s32, 0
    s_cbranch_scc1 {name}_noflag
    s_lshl_b32 s55, s33, 2
    v_mov_b32 v{T0}, s55
    v_mov_b32 v{T1}, 1
    s_mov_b64 exec, 1
    global_atomic_add v{T0}, v{T1}, s[4:5] sc1
    s_mov_b64 exec, -1
    {name}_noflag:
    """)
    stamp(A, 2)
    A(f"""
    s_mul_i32 s55, s36, {KVC}
    v_add_u32 v{AKM}, s55, v2
    v_add_u32 v{AKR}, s55, v132
    v_add_u32 v{AKR}, 8192, v{AKR}
    v_mul_u32_u24 v{T0}, 320, v131
    v_lshlrev_b32 v{T1}, 4, v3
    v_add3_u32 v{AV}, v{T0}, v{T1}, s55
    v_add_u32 v{AV}, 10240, v{AV}
    v_add_u32 v{NKM}, {SLOT}, v{AKM}
    v_add_u32 v{NKR}, {SLOT}, v{AKR}
    v_add_u32 v{NV}, {SLOT}, v{AV}
    """)
    for r in range(OA, OA+32): A(f"v_mov_b32 v{r}, 0")
    for r in range(P1, P1+8): A(f"v_mov_b32 v{r}, 0")
    def loads(kset, ktile, vset, vtile, nxtK, nxtV):
        L = []
        ak, akr = (NKM, NKR) if nxtK else (AKM, AKR)
        av = NV if nxtV else AV
        L.append([f"ds_read_b128 {v(kset['km'],4)}, v{ak} offset:{ktile*1024}",
                  f"ds_read_b64 {v(kset['kr'],2)}, v{akr} offset:{ktile*256}"])
        if vset is not None:
            L.append(["s_mov_b64 exec, s[42:43]",
                      f"ds_read_b128 {v(vset['v0'],4)}, v{av} offset:{vtile*1280}",
                      f"ds_read_b128 {v(vset['v1'],4)}, v{av} offset:{vtile*1280+640}",
                      "s_mov_b64 exec, -1"])
        return L
    for g in loads(SETS[1], 0, None, 0, False, False) + loads(SETS[0], 1, SETS[0], 0, False, False):
        for l in g: A(l)
    A("s_waitcnt lgkmcnt(0)")
    mf16(A, S0, SETS[1]['km'], QA_M, "0"); mf8(A, S0, SETS[1]['kr'], QA_R)
    A("s_nop 7")
    phase(A, S0, P0, S1, QB_M, QB_R, SETS[1], OB, P1, SETS[1], do_pv=False)
    A(f"s_mov_b32 s57, 0")
    A(f"{name}_stage:")
    for i in range(8):
        cur = SETS[i % 2]; nxt = SETS[(i + 1) % 2]
        kt, vt = i + 2, i + 1
        L = loads(nxt, kt % 8, nxt, vt % 8, kt >= 8, vt >= 8)
        A("s_waitcnt lgkmcnt(0)")
        if i == 3:
            A(f"""
            s_cmp_eq_u32 s57, 1
            s_cbranch_scc0 {name}_n1
            s_barrier
            """)
            dma_stage(3)
            A(f"""
            {name}_n1:
            s_cmp_eq_u32 s57, 2
            s_cbranch_scc0 {name}_n2
            s_waitcnt vmcnt(0)
            s_barrier
            s_cmp_ge_u32 s32, 5
            s_cbranch_scc1 {name}_n2
            s_lshl_b32 s55, s33, 2
            v_mov_b32 v{T0}, s55
            {name}_poll:
            global_load_dword v{T1}, v{T0}, s[4:5] sc1
            s_waitcnt vmcnt(0)
            v_readfirstlane_b32 s55, v{T1}
            s_cmp_ge_u32 s55, 8
            s_cbranch_scc1 {name}_pollok
            s_sleep 8
            s_branch {name}_poll
            {name}_pollok:
            s_mul_i32 s55, s33, {8*5120}
            s_lshl_b32 s56, s32, 10
            s_add_u32 s55, s55, s56
            s_add_u32 s55, s55, {KVP}
            """)
            for j in range(8):
                A(f"s_add_u32 s56, s55, {j*5120}")
                A(f"buffer_load_dwordx4 {v(KVL+4*j,4)}, v2, s[12:15], s56 offen sc1")
            A(f"{name}_n2:")
        phase(A, S1, P1, S0, QA_M, QA_R, cur, OA, P0, cur, pre=L)
        if i == 7:
            A(f"""
            s_cmp_eq_u32 s57, 3
            s_cbranch_scc1 {name}_tail
            """)
        phase(A, S0, P0, S1, QB_M, QB_R, cur, OB, P1, cur)
    A(f"""
    v_mov_b32 v{AKM}, v{NKM}
    v_mov_b32 v{AKR}, v{NKR}
    v_mov_b32 v{AV}, v{NV}
    s_add_u32 s57, s57, 1
    s_cmp_eq_u32 s57, 2
    s_mov_b32 s55, {SLOT}
    s_cselect_b32 s55, {(-2*SLOT) & 0xffffffff:#x}, s55
    v_add_u32 v{NKM}, s55, v{NKM}
    v_add_u32 v{NKR}, s55, v{NKR}
    v_add_u32 v{NV}, s55, v{NV}
    s_branch {name}_stage
    {name}_tail:
    """)
    cur = SETS[1]
    mf16(A, OB, cur['v0'], P1); mf16(A, OB, cur['v1'], P1 + 4)
    stamp(A, 3)
    XO = SCR
    KF = SCR + 24576
    A(f"""
    s_mul_i32 s55, s32, 3072
    s_add_u32 s55, s55, {XO}
    v_add_u32 v{T0}, s55, v2
    s_cmp_eq_u32 s36, 0
    s_cbranch_scc1 {name}_x0
    ds_write_b128 v{T0}, {v(OA,4)}
    ds_write_b128 v{T0}, {v(OA+4,4)} offset:1024
    ds_write_b128 v{T0}, {v(OA+8,4)} offset:2048
    """)
    for r in range(12): A(f"v_mov_b32 v{OA+r}, v{OB+r}")
    A(f"""
    s_branch {name}_x1
    {name}_x0:
    ds_write_b128 v{T0}, {v(OB,4)}
    ds_write_b128 v{T0}, {v(OB+4,4)} offset:1024
    ds_write_b128 v{T0}, {v(OB+8,4)} offset:2048
    {name}_x1:
    s_cmp_ge_u32 s32, 5
    s_cbranch_scc1 {name}_nokv
    s_waitcnt vmcnt(0)
    """)
    for j in range(1, 8):
        for e in range(4): A(f"v_add_f32 v{KVL+e}, v{KVL+e}, v{KVL+4*j+e}")
    A(f"""
    v_cvt_pk_bf16_f32 v16, v{KVL}, v{KVL+1}
    v_cvt_pk_bf16_f32 v17, v{KVL+2}, v{KVL+3}
    s_cmp_eq_u32 s32, 2
    s_cbranch_scc1 {name}_kv2
    s_cmp_ge_u32 s32, 3
    s_cselect_b32 s55, 1024, 0
    s_cmp_eq_u32 s32, 1
    s_cselect_b32 s56, 8, 0
    s_cmp_eq_u32 s32, 4
    s_cselect_b32 s56, 8, s56
    s_add_u32 s55, s55, s56
    s_add_u32 s55, s55, {KF}
    v_add_u32 v{T1}, s55, v2
    ds_write_b64 v{T1}, v[16:17]
    s_branch {name}_nokv
    {name}_kv2:
    v_mov_b32 v18, v17
    v_mov_b32 v17, 0
    v_mov_b32 v19, 0
    v_lshlrev_b32 v{T1}, 3, v1
    v_add_u32 v{T1}, {KF+2048}, v{T1}
    ds_write_b64 v{T1}, v[16:17]
    ds_write_b64 v{T1}, v[18:19] offset:512
    {name}_nokv:
    s_waitcnt lgkmcnt(0)
    s_barrier
    s_xor_b32 s55, s32, 4
    s_mul_i32 s55, s55, 3072
    s_add_u32 s55, s55, {XO}
    v_add_u32 v{T0}, s55, v2
    ds_read_b128 v[16:19], v{T0}
    ds_read_b128 v[20:23], v{T0} offset:1024
    ds_read_b128 v[24:27], v{T0} offset:2048
    v_add_u32 v{T1}, {KF}, v2
    v_lshlrev_b32 v{T2}, 3, v1
    v_add_u32 v{T2}, {KF+2048}, v{T2}
    ds_read_b128 v[32:35], v{T1}
    ds_read_b128 v[36:39], v{T1} offset:1024
    ds_read_b64 v[40:41], v{T2}
    ds_read_b64 v[42:43], v{T2} offset:512
    s_waitcnt lgkmcnt(4)
    """)
    for r in range(12): A(f"v_add_f32 v{OA+r}, v{OA+r}, v{16+r}")
    A("s_waitcnt lgkmcnt(0)")
    DA = 148
    mf16(A, DA, 32, PHQ, "0"); mf8(A, DA, 40, PHQ+4); mf16(A, DA, 36, PHQ+6); mf8(A, DA, 42, PHQ+10)
    A(f"""
    v_mov_b32 v16, v{OA+8}
    v_mov_b32 v17, v{OA+8}
    v_permlane32_swap_b32 v16, v17
    """)
    A.c("safety check: 2^-60 <= l <= 2^60 and O finite, else slow path")
    A(f"""
    v_max3_f32 v18, |v{OA}|, |v{OA+1}|, |v{OA+2}|
    v_max3_f32 v18, v18, |v{OA+3}|, |v{OA+4}|
    v_max3_f32 v18, v18, |v{OA+5}|, |v{OA+6}|
    v_max3_f32 v18, v18, |v{OA+7}|, |v{OA+8}|
    v_max3_f32 v18, v18, |v{OA+9}|, |v{OA+10}|
    v_max_f32 v18, v18, |v{OA+11}|
    v_mov_b32 v19, 0x21800000
    v_mov_b32 v20, 0x5d800000
    v_mov_b32 v21, 0x7f000000
    v_cmp_ge_f32 vcc, v17, v19
    v_cmp_le_f32 s[58:59], v17, v20
    s_and_b64 vcc, vcc, s[58:59]
    v_cmp_lt_f32 s[58:59], v18, v21
    s_and_b64 vcc, vcc, s[58:59]
    s_cmp_eq_u64 vcc, -1
    s_cbranch_scc0 {name}_slow
    {name}_fin:
    v_rcp_f32 v17, v17
    s_nop 0
    """)
    for r in range(12): A(f"v_mul_f32 v{OA+r}, v{OA+r}, v17")
    def store_o(R, srdn):
        for i in range(3):
            A(f"v_cvt_pk_bf16_f32 v{20+2*i}, v{R+4*i}, v{R+4*i+1}")
            A(f"v_cvt_pk_bf16_f32 v{21+2*i}, v{R+4*i+2}, v{R+4*i+3}")
        A(f"buffer_store_dwordx2 v[20:21], v26, s[{srdn}:{srdn+3}], s55 offen")
        A(f"buffer_store_dwordx2 v[22:23], v26, s[{srdn}:{srdn+3}], s55 offen offset:16")
        A("s_mov_b32 exec_hi, 0")
        A(f"buffer_store_dwordx2 v[24:25], v26, s[{srdn}:{srdn+3}], s55 offen offset:32")
        A("s_mov_b64 exec, -1")
    A(f"""
    s_lshl_b32 s55, s34, 8
    s_lshl_b32 s56, s53, 5
    s_add_u32 s55, s55, s56
    v_add_u32 v26, s55, v3
    v_mul_u32_u24 v26, 1280, v26
    v_lshlrev_b32 v27, 3, v131
    v_add_u32 v26, v26, v27
    s_mul_i32 s55, s33, 40
    s_add_u32 s55, s55, {OOFF}
    """)
    store_o(OA, 8)
    A(f"""
    v_mov_b32 v16, v{DA+8}
    v_mov_b32 v17, v{DA+8}
    v_permlane32_swap_b32 v16, v17
    v_add_f32 v17, 0x358637bd, v17
    v_rcp_f32 v17, v17
    s_nop 0
    """)
    for r in range(12): A(f"v_mul_f32 v{DA+r}, v{DA+r}, v17")
    for i in range(3):
        A(f"v_cvt_pk_bf16_f32 v{28+2*i}, v{DA+4*i}, v{DA+4*i+1}")
        A(f"v_cvt_pk_bf16_f32 v{29+2*i}, v{DA+4*i+2}, v{DA+4*i+3}")
    A(f"""
    buffer_store_dwordx2 v[28:29], v26, s[12:15], s55 offen
    buffer_store_dwordx2 v[30:31], v26, s[12:15], s55 offen offset:16
    s_mov_b32 exec_hi, 0
    buffer_store_dwordx2 v[32:33], v26, s[12:15], s55 offen offset:32
    s_mov_b64 exec, -1
    """)
    stamp(A, 4)
    stamp_flush(A, 5, 1, 32)
    A("s_endpgm")
    A(f"{name}_slow:")
    QM, QR = 44, 48
    A(f"s_cmp_eq_u32 s36, 0")
    A(f"s_cbranch_scc1 {name}_sl0")
    for i in range(4): A(f"v_mov_b32 v{QA_M+i}, v{QB_M+i}")
    for i in range(2): A(f"v_mov_b32 v{QA_R+i}, v{QB_R+i}")
    A(f"{name}_sl0:")
    for r in range(16): A(f"v_mov_b32 v{OA+r}, 0")
    MX = 44
    A(f"""
    v_mov_b32 v{MX}, 0xff7fffff
    v_mul_u32_u24 v{T0}, 320, v131
    v_lshlrev_b32 v{T1}, 4, v3
    v_add_u32 v{T0}, v{T0}, v{T1}
    s_mov_b32 s57, 0
    {name}_sloop:
    s_lshr_b32 s55, s57, 3
    s_mul_i32 s55, s55, {KVC}
    s_add_u32 s55, s55, s44
    s_and_b32 s56, s57, 7
    s_lshl_b32 s58, s56, 10
    s_add_u32 s58, s58, s55
    buffer_load_dwordx4 {v(SETS[0]['km'],4)}, v2, s[8:11], s58 offen
    s_lshl_b32 s58, s56, 8
    s_add_u32 s58, s58, s55
    s_add_u32 s58, s58, 8192
    buffer_load_dwordx2 {v(SETS[0]['kr'],2)}, v132, s[8:11], s58 offen
    s_mul_i32 s58, s56, 1280
    s_add_u32 s58, s58, s55
    s_add_u32 s58, s58, 10240
    s_mov_b64 exec, s[42:43]
    buffer_load_dwordx4 {v(SETS[0]['v0'],4)}, v{T0}, s[8:11], s58 offen
    buffer_load_dwordx4 {v(SETS[0]['v1'],4)}, v{T0}, s[8:11], s58 offen offset:640
    s_mov_b64 exec, -1
    s_waitcnt vmcnt(0)
    """)
    mf16(A, S0, SETS[0]['km'], QA_M, "0"); mf8(A, S0, SETS[0]['kr'], QA_R)
    A(f"v_max3_f32 v45, v{S0}, v{S0+1}, v{S0+2}")
    for r in range(3, 15, 2): A(f"v_max3_f32 v45, v45, v{S0+r}, v{S0+r+1}")
    A(f"""
    v_max_f32 v45, v45, v{S0+15}
    v_mov_b32 v46, v45
    v_permlane32_swap_b32 v45, v46
    v_max3_f32 v45, v45, v46, v{MX}
    v_sub_f32 v46, v{MX}, v45
    v_exp_f32 v46, v46
    v_mov_b32 v{MX}, v45
    """)
    for r in range(16): A(f"v_sub_f32 v{S0+r}, v{S0+r}, v45")
    for r in range(16): A(f"v_exp_f32 v{S0+r}, v{S0+r}")
    for r in range(16): A(f"v_mul_f32 v{OA+r}, v{OA+r}, v46")
    for i in range(8): A(f"v_cvt_pk_bf16_f32 v{P0+i}, v{S0+2*i}, v{S0+2*i+1}")
    mf16(A, OA, SETS[0]['v0'], P0); mf16(A, OA, SETS[0]['v1'], P0 + 4)
    A(f"""
    s_add_u32 s57, s57, 1
    s_cmp_lt_u32 s57, 64
    s_cbranch_scc1 {name}_sloop
    s_nop 15
    v_mov_b32 v16, v{OA+8}
    v_mov_b32 v17, v{OA+8}
    v_permlane32_swap_b32 v16, v17
    s_branch {name}_fin
    """)
    A(f"{name}_done:")
    A("s_endpgm")
    return kernel_desc(name, NVGPR)
```

```python
from asmlib import *
from layout import *

STG = 28672
NST = 5
LDS = NST * STG
def gen_k3(A, name):
    kernel_begin(A, name)
    A(f"""
    s_cmp_ge_u32 s2, 256
    s_cbranch_scc1 {name}_done
    s_load_dwordx2 s[4:5], s[0:1], 24
    s_load_dwordx2 s[6:7], s[0:1], 48
    s_load_dwordx2 s[8:9], s[0:1], 56
    s_load_dwordx2 s[10:11], s[0:1], 72
    v_and_b32 v1, 63, v0
    v_lshrrev_b32 v2, 6, v0
    s_nop 0
    v_readfirstlane_b32 s32, v2
    s_and_b32 s33, s2, 7
    s_lshr_b32 s34, s2, 3
    s_lshr_b32 s35, s33, 2
    s_and_b32 s33, s33, 3
    s_lshl_b32 s33, s33, 3
    s_lshr_b32 s36, s34, 2
    s_add_u32 s33, s33, s36
    s_and_b32 s34, s34, 3
    s_lshr_b32 s36, s32, 1
    s_and_b32 s37, s32, 1
    s_waitcnt lgkmcnt(0)
    s_cmp_eq_u32 s35, 0
    s_cselect_b64 s[4:5], s[4:5], s[6:7]
    s_lshl_b32 s43, s35, 24
    s_add_u32 s10, s10, s43
    s_addc_u32 s11, s11, 0
    """)
    stamp(A, 0)
    srd(A, 20, 10, 11, BR)
    srd(A, 24, 4, 5, WO_BYTES)
    srd(A, 28, 8, 9, OUT_BYTES)
    A.c("o DMA voffsets v2,v3")
    A(f"""
    v_lshrrev_b32 v7, 3, v1
    s_lshl_b32 s43, s32, 4
    v_add_u32 v7, s43, v7
    v_mul_u32_u24 v7, 1280, v7
    v_lshrrev_b32 v8, 4, v1
    v_and_b32 v9, 7, v1
    """)
    for i in range(2):
        A(f"""
        v_add_u32 v10, {4*i}, v8
        v_and_b32 v10, 7, v10
        v_xor_b32 v10, v10, v9
        v_lshlrev_b32 v10, 4, v10
        v_add_u32 v10, v10, v7
        v_add_u32 v{2+i}, {8*i*1280}, v10
        """)
    A.c("wo DMA voffsets v4..v8")
    A(f"s_mul_i32 s43, s32, 320")
    for e in range(5):
        A(f"""
        v_add_u32 v10, s43, v1
        v_add_u32 v10, {64*e}, v10
        v_mul_u32_u24 v11, 3277, v10
        v_lshrrev_b32 v11, 16, v11
        v_mul_u32_u24 v12, 20, v11
        v_sub_u32 v12, v10, v12
        v_lshrrev_b32 v13, 3, v11
        v_and_b32 v13, 1, v13
        v_lshlrev_b32 v13, 1, v13
        v_xor_b32 v12, v12, v13
        v_lshlrev_b32 v12, 4, v12
        v_mul_u32_u24 v11, 1280, v11
        v_add_u32 v{16+e}, v11, v12
        """)
    for e in range(5): A(f"v_mov_b32 v{4+e}, v{16+e}")
    A(f"""
    s_mul_i32 s38, s33, {64*1280}
    s_add_u32 s38, s38, {OOFF}
    s_mul_i32 s39, s34, 320
    s_mov_b32 s40, 0
    s_lshl_b32 s44, s32, 11
    s_mul_i32 s45, s32, 5120
    s_add_u32 s45, s45, 8192
    """)
    def dma_list():
        L = []
        for i in range(2):
            L.append([f"s_add_u32 s46, s40, s44", f"s_add_u32 m0, s46, {i*1024}", "s_nop 0", f"buffer_load_dwordx4 v{2+i}, s[20:23], s38 offen lds"])
        for e in range(5):
            L.append([f"s_add_u32 s46, s40, s45", f"s_add_u32 m0, s46, {e*1024}", "s_nop 0", f"buffer_load_dwordx4 v{4+e}, s[24:27], s39 offen lds"])
        L[-1] += [f"s_add_u32 s38, s38, 128", f"s_add_u32 s39, s39, {64*1280}", f"s_add_u32 s40, s40, {STG}",
                  f"s_cmp_eq_u32 s40, {NST*STG}", f"s_cselect_b32 s40, 0, s40"]
        return L
    for c in range(4):
        for g in dma_list():
            for l in g: A(l)
    stamp(A, 1)
    A.c("frag addresses: o: v10,v11 (kk) ; wo: v12 (j even), v13 (j odd)")
    A(f"""
    v_and_b32 v14, 15, v1
    v_lshrrev_b32 v15, 4, v1
    s_lshl_b32 s43, s36, 5
    v_add_u32 v16, s43, v14
    v_lshlrev_b32 v16, 7, v16
    v_lshrrev_b32 v17, 1, v14
    v_xor_b32 v17, v17, v15
    v_lshlrev_b32 v18, 4, v17
    v_add_u32 v10, v16, v18
    v_xor_b32 v17, 4, v17
    v_lshlrev_b32 v18, 4, v17
    v_add_u32 v11, v16, v18
    v_lshrrev_b32 v16, 2, v14
    v_lshlrev_b32 v17, 3, v15
    v_add_u32 v16, v16, v17
    v_mul_u32_u24 v16, 320, v16
    v_and_b32 v17, 3, v1
    v_lshlrev_b32 v17, 3, v17
    v_add_u32 v16, v16, v17
    s_mul_i32 s43, s37, 160
    s_add_u32 s43, s43, 8192
    v_add_u32 v16, s43, v16
    v_and_b32 v17, 1, v15
    v_lshlrev_b32 v17, 5, v17
    v_add_u32 v18, v16, v17
    v_sub_u32 v19, v16, v17
    s_cmp_eq_u32 s37, 0
    s_cbranch_scc0 {name}_odd
    v_mov_b32 v12, v18
    v_mov_b32 v13, v19
    s_branch {name}_odd2
    {name}_odd:
    v_mov_b32 v12, v19
    v_mov_b32 v13, v18
    {name}_odd2:
    """)
    ACC = 80
    for i in range(40): A(f"v_mov_b32 v{ACC+i}, 0")
    def reads(kk, b):
        L = []
        for st in range(2): L.append(f"ds_read_b128 {v(20+28*b+4*st,4)}, v{10+kk} offset:{2048*st}")
        for j in range(5):
            for jj in range(2):
                L.append(f"ds_read_b64_tr_b16 {v(28+28*b+4*j+2*jj,2)}, v{12+(j&1)} offset:{j*32+kk*10240+jj*1280}")
        return L
    def mf(b):
        L = []
        for j in range(5):
            for st in range(2):
                D = v(ACC+4*(2*j+st),4)
                L.append(f"v_mfma_f32_16x16x32_bf16 {D}, {v(28+28*b+4*j,4)}, {v(20+28*b+4*st,4)}, {D}")
        return L
    def interleave(M, X):
        X = list(X); per = max(1, -(-len(X) // len(M)))
        for m in M:
            A(m)
            for _ in range(per):
                if X:
                    g = X.pop(0)
                    for l in (g if isinstance(g, list) else [g]): A(l)
        for g in X:
            for l in (g if isinstance(g, list) else [g]): A(l)
    Lh = f"{name}_loop"
    A(f"""
    s_mov_b32 s41, 0
    s_mov_b32 s47, 0
    s_waitcnt vmcnt(21)
    s_barrier
    """)
    stamp(A, 2)
    for l in reads(0, 0): A(l)
    A(f"{Lh}:")
    A("s_waitcnt lgkmcnt(0)")
    A(f"s_cmp_ge_u32 s41, 6")
    A(f"s_cbranch_scc1 {Lh}_nd")
    interleave(mf(0), reads(1, 1) + dma_list())
    A(f"s_branch {Lh}_nd2")
    A(f"{Lh}_nd:")
    interleave(mf(0), reads(1, 1))
    A(f"{Lh}_nd2:")
    A(f"""
    s_add_u32 s47, s47, {STG}
    s_cmp_eq_u32 s47, {NST*STG}
    s_mov_b32 s48, {STG}
    s_cselect_b32 s48, {(-(NST-1)*STG) & 0xffffffff:#x}, s48
    s_cselect_b32 s47, 0, s47
    s_waitcnt lgkmcnt(0)
    """)
    for r in range(10, 14): A(f"v_add_u32 v{r}, s48, v{r}")
    A(f"""
    s_cmp_ge_u32 s41, 6
    s_cbranch_scc1 {Lh}_w0
    s_waitcnt vmcnt(21)
    s_branch {Lh}_w1
    {Lh}_w0:
    s_waitcnt vmcnt(0)
    {Lh}_w1:
    s_barrier
    """)
    interleave(mf(1), reads(0, 0))
    A(f"""
    s_add_u32 s41, s41, 1
    s_cmp_lt_u32 s41, 10
    s_cbranch_scc1 {Lh}
    s_waitcnt lgkmcnt(0)
    s_barrier
    """)
    stamp(A, 3)
    A(f"""
    s_lshl_b32 s43, s36, 5
    v_add_u32 v16, s43, v14
    v_mul_u32_u24 v16, 336, v16
    v_lshlrev_b32 v17, 3, v15
    s_mul_i32 s43, s37, 160
    v_add3_u32 v16, v16, v17, s43
    """)
    for j in range(5):
        for st in range(2):
            r0 = ACC+4*(2*j+st); t = 20 + 2*((2*j+st) % 4)
            A(f"v_cvt_pk_bf16_f32 v{t}, v{r0}, v{r0+1}")
            A(f"v_cvt_pk_bf16_f32 v{t+1}, v{r0+2}, v{r0+3}")
            A(f"ds_write_b64 v16, {v(t,2)} offset:{st*16*336+j*32}")
    A(f"""
    s_waitcnt lgkmcnt(0)
    s_barrier
    s_mul_i32 s43, s32, 320
    s_mul_i32 s44, s33, {64*2560}
    s_mul_i32 s45, s35, 1280
    s_add_u32 s44, s44, s45
    s_mul_i32 s45, s34, 320
    s_add_u32 s44, s44, s45
    """)
    for e in range(5):
        A(f"""
        v_add_u32 v10, s43, v1
        v_add_u32 v10, {64*e}, v10
        v_mul_u32_u24 v11, 3277, v10
        v_lshrrev_b32 v11, 16, v11
        v_mul_u32_u24 v12, 20, v11
        v_sub_u32 v12, v10, v12
        v_lshlrev_b32 v12, 4, v12
        v_mul_u32_u24 v13, 336, v11
        v_add_u32 v13, v13, v12
        ds_read_b128 {v(32+4*e,4)}, v13
        v_mul_u32_u24 v11, 2560, v11
        v_add_u32 v{52+e}, v11, v12
        """)
    A("s_waitcnt lgkmcnt(0)")
    for e in range(5):
        A(f"buffer_store_dwordx4 {v(32+4*e,4)}, v{52+e}, s[28:31], s44 offen")
    stamp(A, 4)
    stamp_flush(A, 5, 2, 32)
    A(f"{name}_done:")
    A("s_endpgm")
    return kernel_desc(name, 128)
```

```python
BR    = 0x1000000
QOFF  = 0x000000
QH, QC = 81920, 10240
KVOFF = 0x300000
KVH, KVC = 163840, 20480
OOFF  = 0x800000
KVP   = 0xB00000
WPH   = 0xD00000
SEL   = 0xD10000
X_BYTES = 2048 * 640 * 2
W_BYTES = 640 * 1920 * 2
WO_BYTES = 640 * 640 * 2
OUT_BYTES = 2048 * 1280 * 2
```

```python
import sys
from asmlib import *
from layout import *
import hazard, importlib
import k1
NAME = "concat_heads__linear_kernel_hedgehog__mha_block__prompt"
HDR = """; Kernarg layout (80 bytes, ptrs only): 0 A_x, 8 A_wqkv, 16 A_w_phi, 24 A_wo, 32 B_x, 40 B_wqkv, 48 B_wo, 56 d_out, 64 d_debug, 72 d_ws
"""
def main(out, which):
    launches = []; descs = []; body = []
    for nm, fn, grid, block, lds in which:
        A = Asm()
        d = fn(A, nm)
        lines, n = hazard.fix(A.L, verbose='-v' in sys.argv)
        print(f"{nm}: {len(lines)} lines, {n} nop states inserted")
        body.append("\n".join(lines)); descs.append(d)
        launches.append(f"; @launch kernel={nm} grid=({grid},1,1) block=({block},1,1) lds={lds}")
    txt = HDR + "\n".join(launches) + '\n.amdgcn_target "amdgcn-amd-amdhsa--gfx950"\n' + "\n".join(body) + "\n" + "\n".join(descs)
    open(out, "w").write(txt)
if __name__ == "__main__":
    which = [("qkv_kernel", k1.gen_k1, 256, 512, 3*49152)]
    try:
        import k2; which.append(("attn_kernel", k2.gen_k2, 256, 512, k2.LDS))
        import k3; which.append(("oproj_kernel", k3.gen_k3, 256, 256, k3.LDS))
    except ImportError as e:
        print("partial:", e)
    main(sys.argv[1], which)
```

```python
class Asm:
    def __init__(self):
        self.L = []
        self.uid = 0
    def __call__(self, s):
        for line in s.strip("\n").split("\n"):
            line = line.strip()
            if not line: continue
            if line.endswith(":") or line.startswith("."):
                self.L.append(line)
            else:
                self.L.append("    " + line)
    def c(self, s): self.L.append("    ; " + s)
    def label(self, name): self.L.append(name + ":")
    def new(self, p="L"):
        self.uid += 1
        return f"{p}_{self.uid}"
    def text(self): return "\n".join(self.L) + "\n"

def v(i, n=1): return f"v{i}" if n == 1 else f"v[{i}:{i+n-1}]"
def s(i, n=1): return f"s{i}" if n == 1 else f"s[{i}:{i+n-1}]"
def a(i, n=1): return f"a{i}" if n == 1 else f"a[{i}:{i+n-1}]"

def kernel_begin(A, name):
    A(f""".text
.globl {name}
.p2align 8
.type {name},@function
{name}:""")

def kernel_desc(name, vgpr, sgpr=102, accum=None):
    accum = accum or ((vgpr + 3) // 4 * 4)
    return f""".section .rodata,"a"
.p2align 6
.amdhsa_kernel {name}
  .amdhsa_next_free_vgpr {vgpr}
  .amdhsa_next_free_sgpr {sgpr}
  .amdhsa_accum_offset {accum}
  .amdhsa_group_segment_fixed_size 0
  .amdhsa_kernarg_size 80
  .amdhsa_user_sgpr_count 2
  .amdhsa_user_sgpr_kernarg_segment_ptr 1
  .amdhsa_system_sgpr_workgroup_id_x 1
  .amdhsa_float_denorm_mode_32 3
.end_amdhsa_kernel
"""

def srd(A, d, lo, hi, size):
    A(f"s_mov_b32 s{d}, s{lo}")
    A(f"s_and_b32 s{d+1}, s{hi}, 0xffff")
    A(f"s_mov_b32 s{d+2}, {size:#x}")
    A(f"s_mov_b32 s{d+3}, 0x20000")

import os
STAMPS = os.environ.get("STAMPS", "0") == "1"
TS_OFF = 0x3000000
def stamp(A, idx, base=70, real=False):
    if not STAMPS: return
    if real: A(f"s_memrealtime s[{base+2*idx}:{base+2*idx+1}]")
    else: A(f"s_memtime s[{base+2*idx}:{base+2*idx+1}]")
def stamp_flush(A, n, slot, wave_sgpr, base=70, ws_karg=72, tmp=60):
    if not STAMPS: return
    A(f"""
    s_load_dwordx2 s[{tmp}:{tmp+1}], s[0:1], {ws_karg}
    s_waitcnt lgkmcnt(0)
    s_add_u32 s{tmp}, s{tmp}, {TS_OFF + slot*0x100000:#x}
    s_addc_u32 s{tmp+1}, s{tmp+1}, 0
    s_lshl_b32 s{tmp+2}, s2, 4
    s_add_u32 s{tmp+2}, s{tmp+2}, s{wave_sgpr}
    s_lshl_b32 s{tmp+2}, s{tmp+2}, 7
    v_mov_b32 v40, s{tmp+2}
    s_mov_b64 exec, 1
    """)
    m = (n + 1) // 2
    for i in range(m):
        for e in range(4):
            A(f"v_mov_b32 v{44+4*i+e}, s{base+4*i+e}")
    for i in range(m):
        A(f"global_store_dwordx4 v40, v[{44+4*i}:{47+4*i}], s[{tmp}:{tmp+1}] offset:{16*i}")
```

```python
import os
from asmlib import *
from layout2 import *

LDS = 163840
SPIN_MAX = 50000
R1 = 32768; ST1 = 32768; NS1 = 4
LOG2E = 0x3fb8aa3b
QSCALE = 0x3ea52b5c
LSTAMP = os.environ.get('LSTAMP', '0') == '1'
STOP_AFTER = os.environ.get("STOP_AFTER", "")

def poll_dbg(A, lane_off_v, tmp_v, mask_lo, target, sleep=4):
    L = A.new("poll")
    A(f"""
    s_mov_b32 s59, 0
    {L}:
    global_load_dword v{tmp_v}, v{lane_off_v}, s[4:5] sc1
    s_waitcnt vmcnt(0)
    v_cmp_le_u32 vcc, {target}, v{tmp_v}
    s_and_b32 s58, vcc_lo, {mask_lo:#x}
    s_cmp_eq_u32 s58, {mask_lo:#x}
    s_cbranch_scc1 {L}_ok
    s_sleep {sleep}
    s_add_u32 s59, s59, 1
    s_cmp_lt_u32 s59, {SPIN_MAX}
    s_cbranch_scc1 {L}
    {L}_ok:
    """)

def poll_ws(A, voff, soff, T, nlanes, width=4, target=1, sleep=8):
    L = A.new("pw")
    mask = (1 << nlanes) - 1
    ld = {4: "buffer_load_dwordx4 " + v(T,4), 1: f"buffer_load_dword v{T}"}[width]
    def check():
        A("s_waitcnt vmcnt(0)")
        if width == 4:
            A(f"v_and_b32 v{T}, v{T}, v{T+1}")
            A(f"v_and_b32 v{T+2}, v{T+2}, v{T+3}")
            A(f"v_and_b32 v{T}, v{T}, v{T+2}")
        A(f"v_cmp_eq_u32 vcc, {target}, v{T}")
        if nlanes >= 64:
            A(f"s_cmp_eq_u64 vcc, -1")
        else:
            A(f"s_and_b32 s58, vcc_hi, {(mask >> 32):#x}") if nlanes > 32 else None
            if nlanes > 32:
                A(f"s_cmp_eq_u32 s58, {(mask >> 32):#x}")
                A(f"s_cselect_b32 s58, vcc_lo, 0")
                A(f"s_cmp_eq_u32 s58, -1")
            else:
                A(f"s_and_b32 s58, vcc_lo, {mask:#x}")
                A(f"s_cmp_eq_u32 s58, {mask:#x}")
    A(f"{ld}, v{voff}, s[8:11], s{soff} offen")
    check()
    A(f"s_cbranch_scc1 {L}_ok")
    A(f"s_mov_b32 s59, 0")
    A(f"{L}:")
    A(f"s_sleep {sleep}")
    A(f"{ld}, v{voff}, s[8:11], s{soff} offen sc1")
    check()
    A(f"""
    s_cbranch_scc1 {L}_ok
    s_add_u32 s59, s59, 1
    s_cmp_lt_u32 s59, {SPIN_MAX}
    s_cbranch_scc1 {L}
    {L}_ok:
    """)

def set_flag_ws(A, soff, tv0, tv1):
    A(f"""
    v_mov_b32 v{tv0}, 0
    v_mov_b32 v{tv1}, 1
    s_mov_b64 exec, 1
    buffer_store_dword v{tv1}, v{tv0}, s[8:11], s{soff} offen sc1
    s_mov_b64 exec, -1
    """)

def check_prep(A, tv0, tv1):
    L = A.new("cp")
    A(f"""
    v_mov_b32 v{tv0}, {FPREP*4}
    global_load_dword v{tv1}, v{tv0}, s[4:5]
    s_mov_b32 s59, 0
    {L}:
    s_waitcnt vmcnt(0)
    v_readfirstlane_b32 s58, v{tv1}
    s_cmp_ge_u32 s58, 16
    s_cbranch_scc1 {L}_ok
    s_sleep 16
    global_load_dword v{tv1}, v{tv0}, s[4:5] sc1
    s_add_u32 s59, s59, 1
    s_cmp_lt_u32 s59, {SPIN_MAX}
    s_cbranch_scc1 {L}
    {L}_ok:
    """)

def tile_flags_voff(A, vd):
    A(f"""
    v_lshrrev_b32 v{vd}, 2, v1
    v_lshlrev_b32 v{vd}, 7, v{vd}
    v_and_b32 v{vd+1}, 3, v1
    v_lshlrev_b32 v{vd+1}, 4, v{vd+1}
    v_add_u32 v{vd}, v{vd}, v{vd+1}
    """)

def signal_dbg(A, idx_s, tv0, tv1):
    A(f"""
    s_lshl_b32 s58, s{idx_s}, 2
    v_mov_b32 v{tv0}, s58
    v_mov_b32 v{tv1}, 1
    s_mov_b64 exec, 1
    global_atomic_add v{tv0}, v{tv1}, s[4:5] sc1
    s_mov_b64 exec, -1
    """)

def gen_common(A, name):
    A(f"""
    s_cmp_ge_u32 s2, 256
    s_cbranch_scc1 {name}_done
    s_load_dwordx4 s[20:23], s[0:1], 0
    s_load_dwordx4 s[24:27], s[0:1], 32
    s_load_dwordx4 s[4:7], s[0:1], 64
    s_load_dwordx2 s[28:29], s[0:1], 16
    v_and_b32 v1, 63, v0
    v_lshrrev_b32 v2, 6, v0
    v_and_b32 v3, 31, v1
    v_readfirstlane_b32 s32, v2
    v_lshrrev_b32 v131, 5, v1
    v_lshlrev_b32 v2, 4, v1
    v_lshlrev_b32 v132, 3, v3
    s_and_b32 s39, s2, 7
    s_lshr_b32 s64, s2, 3
    s_lshl_b32 s33, s39, 2
    s_lshr_b32 s45, s64, 3
    s_add_u32 s33, s33, s45
    s_and_b32 s34, s64, 7
    s_and_b32 s35, s32, 3
    s_lshr_b32 s36, s32, 2
    s_lshr_b32 s65, s39, 1
    s_lshl_b32 s37, s65, 2
    s_and_b32 s30, s39, 1
    s_cmp_eq_u32 s30, 0
    s_cbranch_scc0 {name}_map1
    s_lshr_b32 s46, s64, 3
    s_add_u32 s37, s37, s46
    s_and_b32 s38, s64, 7
    s_mov_b32 s31, 0
    s_branch {name}_map2
    {name}_map1:
    s_mul_i32 s46, s64, 37
    s_lshr_b32 s46, s46, 8
    s_add_u32 s37, s37, s46
    s_mul_i32 s46, s46, 7
    s_sub_u32 s38, s64, s46
    s_add_u32 s38, s38, 8
    s_cmp_ge_u32 s64, 28
    s_cselect_b32 s31, 1, 0
    {name}_map2:
    s_mov_b32 s40, {LOG2E:#x}
    s_mov_b32 s41, {LOG2E | 0x80000000:#x}
    s_mov_b32 s42, 0x000fffff
    s_mov_b32 s43, 0x000fffff
    s_and_b32 s45, s33, 1
    s_mul_i32 s66, s33, 5
    s_add_u32 s66, s66, s45
    s_lshr_b32 s66, s66, 1
    s_add_u32 s67, s66, 2
    s_cmp_eq_u32 s45, 1
    s_cselect_b32 s46, 3, 0
    s_sub_u32 s67, s67, s46
    s_lshl_b32 s68, s45, 3
    s_mul_i32 s53, s33, {VH}
    s_add_u32 s53, s53, {BR + VOFF}
    s_waitcnt lgkmcnt(0)
    """)
    srd(A, 8, 6, 7, WS_BYTES)

def p2_stage_dma(A, st, dyn=None):
    L = A.new("sd")
    if dyn is None:
        A(f"""
        s_lshr_b32 s56, s35, 1
        s_mul_i32 s57, s56, {PART}
        s_add_u32 s57, s57, {(st % 4) * SLOT}
        s_lshl_b32 s56, s56, 3
        s_add_u32 s56, s56, {st}
        """)
    else:
        A(f"""
        s_lshr_b32 s56, s35, 1
        s_mul_i32 s57, s56, {PART}
        s_add_u32 s57, s57, s{dyn[0]}
        s_lshl_b32 s56, s56, 3
        s_add_u32 s56, s56, s{dyn[1]}
        """)
    A(f"""
    s_bitcmp1_b32 s35, 0
    s_cbranch_scc1 {L}_v
    s_lshl_b32 s56, s56, 11
    s_add_u32 s58, s66, 80
    s_lshl_b32 s58, s58, 15
    s_add_u32 s58, s58, s56
    s_add_u32 s58, s58, {BR + QKOFF}
    s_add_u32 s59, s67, 80
    s_lshl_b32 s59, s59, 15
    s_add_u32 s59, s59, s56
    s_add_u32 s59, s59, {BR + QKOFF}
    """)
    for e, (src, off) in enumerate(((58, 0), (58, 1024), (58, QKG), (58, QKG + 1024), (59, 0), (59, 1024))):
        A(f"s_add_u32 m0, s57, {e*1024}")
        A(f"s_add_u32 s56, s{src}, {off}")
        A(f"buffer_load_dwordx4 v2, s[8:11], s56 offen sc1 lds")
    A(f"""
    s_branch {L}_e
    {L}_v:
    s_mul_i32 s56, s56, {VC}
    s_add_u32 s56, s56, s53
    """)
    for e in range(5):
        A(f"s_add_u32 m0, s57, {6144 + e*1024}")
        A(f"s_add_u32 s58, s56, {e*1024}")
        A(f"buffer_load_dwordx4 v2, s[8:11], s58 offen sc1 lds")
    A(f"{L}_e:")

QA_M, QB_M, QA_R, QB_R = 4, 8, 12, 14
def frag_addr(A, vm, vr):
    A(f"""
    v_lshlrev_b32 v{vm}, 15, v131
    v_lshlrev_b32 v{vr}, 4, v3
    v_add_u32 v{vm}, v{vm}, v{vr}
    v_add_u32 v{vr}, s68, v{vr}
    """)
def p2_q_loads(A, tm=133, tr=134):
    frag_addr(A, tm, tr)
    A(f"""
    s_lshl_b32 s56, s34, 8
    s_lshl_b32 s57, s35, 6
    s_add_u32 s56, s56, s57
    s_lshl_b32 s56, s56, 4
    s_add_u32 s56, s56, {BR + QKOFF}
    s_lshl_b32 s57, s66, 15
    s_add_u32 s57, s57, s56
    buffer_load_dwordx4 {v(QA_M,4)}, v{tm}, s[8:11], s57 offen sc1
    buffer_load_dwordx4 {v(QB_M,4)}, v{tm}, s[8:11], s57 offen offset:512 sc1
    v_mov_b32 v{QA_R}, 0
    v_mov_b32 v{QA_R+1}, 0
    v_mov_b32 v{QA_R+2}, 0
    v_mov_b32 v{QA_R+3}, 0
    s_lshl_b32 s57, s67, 15
    s_add_u32 s57, s57, s56
    s_mov_b32 exec_hi, 0
    buffer_load_dwordx2 {v(QA_R,2)}, v{tr}, s[8:11], s57 offen sc1
    buffer_load_dwordx2 {v(QB_R,2)}, v{tr}, s[8:11], s57 offen offset:512 sc1
    s_mov_b64 exec, -1
    """)

XV, WV = 192, 196
XA, WA = 192, 196
EA = 200
ACC = 64
def p1_loader(A, name):
    A.c("P1 loader")
    A(f"""
    v_lshrrev_b32 v7, 3, v1
    s_lshl_b32 s44, s35, 5
    v_add_u32 v7, s44, v7
    v_mul_u32_u24 v7, 1280, v7
    v_lshrrev_b32 v8, 4, v1
    v_and_b32 v9, 7, v1
    """)
    for i in range(4):
        A(f"""
        v_add_u32 v10, {4*i}, v8
        v_and_b32 v10, 7, v10
        v_xor_b32 v10, v10, v9
        v_lshlrev_b32 v10, 4, v10
        v_add_u32 v10, v10, v7
        v_add_u32 v{XV+i}, {8*i*1280}, v10
        """)
    A(f"""
    s_lshl_b32 s44, s35, 4
    v_add_u32 v7, s44, v8
    v_mul_u32_u24 v7, 3840, v7
    v_lshrrev_b32 v9, 2, v1
    v_xor_b32 v9, v9, v8
    v_and_b32 v9, 3, v9
    v_lshlrev_b32 v9, 6, v9
    v_and_b32 v10, 3, v1
    v_lshlrev_b32 v10, 4, v10
    v_add3_u32 v{WV}, v7, v9, v10
    s_lshl_b32 s44, s35, 12
    s_add_u32 s45, s44, 16384
    s_mul_i32 s46, s37, {128*1280}
    s_lshl_b32 s47, s38, 8
    s_mov_b32 s48, {R1}
    s_mov_b32 s49, 0
    """)
    srd(A, 12, 24, 25, X_BYTES)
    srd(A, 16, 26, 27, W_BYTES)
    def issue(tag):
        for i in range(4):
            A(f"s_add_u32 s50, s48, s44")
            A(f"s_add_u32 m0, s50, {i*1024}")
            A(f"s_add_u32 s51, s47, {i*4*3840}")
            A(f"buffer_load_dwordx4 v{XV+i}, s[12:15], s46 offen lds")
            A(f"s_add_u32 s50, s48, s45")
            A(f"s_add_u32 m0, s50, {i*1024}")
            A(f"s_nop 0")
            A(f"buffer_load_dwordx4 v{WV}, s[16:19], s51 offen lds")
        A(f"""
        s_add_u32 s46, s46, 128
        s_add_u32 s47, s47, {64*3840}
        s_add_u32 s48, s48, {ST1}
        s_cmp_eq_u32 s48, {R1+NS1*ST1}
        s_cselect_b32 s48, {R1}, s48
        s_add_u32 s49, s49, 1
        s_cmp_eq_u32 s49, 10
        s_cbranch_scc0 {name}_ld_{tag}
        """)
        srd(A, 12, 20, 21, X_BYTES)
        srd(A, 16, 22, 23, W_BYTES)
        A(f"""
        s_mul_i32 s46, s37, {128*1280}
        s_lshl_b32 s47, s38, 8
        {name}_ld_{tag}:
        """)
    issue("p0"); issue("p1"); issue("p2")
    stamp(A, 1)
    if STAMPS: A("s_mov_b32 s74, 0\ns_mov_b32 s75, 0\ns_mov_b32 s76, 0\ns_mov_b32 s77, 0\ns_mov_b32 s80, 0\ns_mov_b32 s81, 0")
    A(f"""
    s_mov_b32 s52, 0
    {name}_lloop:
    """)
    if STAMPS and LSTAMP:
        A("""
        s_memtime s[86:87]
        s_waitcnt lgkmcnt(0)
        s_waitcnt vmcnt(16)
        s_memtime s[88:89]
        s_waitcnt lgkmcnt(0)
        s_sub_u32 s90, s88, s86
        s_add_u32 s74, s74, s90
        s_barrier
        s_memtime s[86:87]
        s_waitcnt lgkmcnt(0)
        s_sub_u32 s90, s86, s88
        s_add_u32 s76, s76, s90
        """)
    else:
        A("s_waitcnt vmcnt(16)")
        A("s_barrier")
    issue("lp")
    if STAMPS and LSTAMP:
        A("""
        s_memtime s[88:89]
        s_waitcnt lgkmcnt(0)
        s_sub_u32 s90, s88, s86
        s_add_u32 s80, s80, s90
        """)
    A(f"""
    s_add_u32 s52, s52, 1
    s_cmp_lt_u32 s52, 17
    s_cbranch_scc1 {name}_lloop
    s_waitcnt vmcnt(16)
    s_barrier
    s_cmp_eq_u32 s32, 4
    s_cbranch_scc0 {name}_lnp
    s_mov_b32 s50, {FBW}
    """)
    stamp(A, 7)
    tile_flags_voff(A, 7)
    poll_ws(A, 7, 50, 16, 60)
    stamp(A, 8)
    A(f"""
    {name}_lnp:
    s_waitcnt vmcnt(8)
    s_barrier
    """)
    p2_stage_dma(A, 0)
    p2_q_loads(A)
    A(f"""
    s_waitcnt vmcnt(9)
    s_barrier
    s_waitcnt vmcnt(0)
    s_barrier
    """)

PF_MODE = os.environ.get('PF_MODE', 'plain')
def prefetch_share(A, xl, xh, wl, wh, nw, widx):
    if PF_MODE == 'off': return
    srd(A, 12, xl, xh, X_BYTES)
    srd(A, 16, wl, wh, W_BYTES)
    A(f"""
    s_mul_i32 s50, s2, 10240
    s_mul_i32 s51, s2, 9600
    s_lshl_b32 s52, s{widx}, 10
    s_add_u32 s50, s50, s52
    s_add_u32 s51, s51, s52
    """)
    for r in range(-(-10 // nw)):
        L = A.new("pf")
        lim = 10 - r * nw
        if lim < nw:
            A(f"s_cmp_ge_u32 s{widx}, {lim}")
            A(f"s_cbranch_scc1 {L}")
        A(f"s_add_u32 s52, s50, {r*nw*1024}")
        A(f"buffer_load_dwordx4 v[216:219], v2, s[12:15], s52 offen")
        A(f"s_add_u32 s52, s51, {r*nw*1024}")
        A(f"buffer_load_dwordx4 v[220:223], v2, s[16:19], s52 offen")
        if lim < nw: A(f"{L}:")

L2PF = int(os.environ.get('L2PF', '5'))
def l2pf_setup(A):
    L = A.new("l2")
    A(f"""
    s_mov_b32 s69, 0
    s_cmp_lg_u32 s32, 1
    s_cbranch_scc1 {L}_e
    s_cmp_ge_u32 s64, 24
    s_cbranch_scc1 {L}_e
    s_mov_b32 s69, 1
    s_cmp_ge_u32 s64, 8
    s_cbranch_scc1 {L}_w
    s_lshl_b32 s44, s65, 9
    s_lshl_b32 s45, s64, 6
    s_add_u32 s44, s44, s45
    v_add_u32 v5, s44, v1
    v_mul_u32_u24 v5, 1280, v5
    s_mov_b32 s55, 128
    """)
    srd(A, 96, 24, 25, X_BYTES)
    A(f"""
    s_branch {L}_go
    {L}_w:
    s_sub_u32 s44, s64, 8
    s_lshl_b32 s44, s44, 2
    v_lshrrev_b32 v5, 4, v1
    v_add_u32 v5, s44, v5
    v_mul_u32_u24 v5, 3840, v5
    v_and_b32 v6, 15, v1
    v_lshlrev_b32 v6, 7, v6
    s_lshl_b32 s44, s30, 11
    v_add3_u32 v5, v5, v6, s44
    s_mov_b32 s55, {64*3840}
    """)
    srd(A, 96, 26, 27, W_BYTES)
    A(f"""
    {L}_go:
    s_mul_i32 s54, s55, 4
    s_mov_b32 s57, 4
    {L}_e:
    """)
def l2pf_one(A):
    if not L2PF: return
    L = A.new("l2o")
    A(f"""
    s_cmp_eq_u32 s69, 1
    s_cbranch_scc0 {L}_e
    s_cmp_ge_u32 s57, 20
    s_cbranch_scc1 {L}_e
    s_cmp_eq_u32 s57, 10
    s_cbranch_scc0 {L}_n
    s_mov_b32 s54, 0
    s_cmp_ge_u32 s64, 8
    s_cbranch_scc1 {L}_w
    """)
    srd(A, 96, 20, 21, X_BYTES)
    A(f"s_branch {L}_n")
    A(f"{L}_w:")
    srd(A, 96, 22, 23, W_BYTES)
    A(f"""
    {L}_n:
    buffer_load_dword v224, v5, s[96:99], s54 offen
    s_add_u32 s54, s54, s55
    s_add_u32 s57, s57, 1
    {L}_e:
    """)

def p1_compute(A, name, orient):
    tag = f"{name}_c{orient}"
    FB_ = [16, 32, 48, 144]
    XA2, WA2 = 202, 206
    def reads(q, kk):
        b = FB_[kk]
        xa = (XA if q < 2 else XA2) + kk; wa = WA if q < 2 else WA2
        so = (q & 1) * ST1
        L = []
        L.append(f"ds_read_b128 {v(b,4)}, v{xa} offset:{so}")
        for jj in range(2): L.append(f"ds_read_b64_tr_b16 {v(b+8+2*jj,2)}, v{wa} offset:{so+kk*4096+jj*1024}")
        L.append(f"ds_read_b128 {v(b+4,4)}, v{xa} offset:{so+4096}")
        for jj in range(2): L.append(f"ds_read_b64_tr_b16 {v(b+12+2*jj,2)}, v{wa+1} offset:{so+kk*4096+jj*1024}")
        return L
    def mf(kk):
        b = FB_[kk]
        L = []
        for nt in range(2):
            for st in range(2):
                X = v(b+4*st,4); W = v(b+8+4*nt,4)
                if orient == "T":
                    D = v(ACC+16*(2*nt+st),16); L.append(f"v_mfma_f32_32x32x16_bf16 {D}, {W}, {X}, {D}")
                else:
                    D = v(ACC+16*(2*st+nt),16); L.append(f"v_mfma_f32_32x32x16_bf16 {D}, {X}, {W}, {D}")
        return L
    def step(M, R):
        R = list(R)
        per = -(-len(R) // 3) if R else 0
        for m in M:
            A(m)
            for _ in range(per):
                if R: A(R.pop(0))
    if orient == "T":
        A(f"""
        s_lshl_b32 s44, s38, 4
        s_and_b32 s45, s35, 1
        s_lshl_b32 s45, s45, 3
        s_add_u32 s44, s44, s45
        v_add_u32 v15, s44, v131
        v_lshlrev_b32 v15, 15, v15
        s_lshl_b32 s44, s37, 7
        s_lshr_b32 s45, s35, 1
        s_lshl_b32 s45, s45, 6
        s_add_u32 s44, s44, s45
        v_add_u32 v16, s44, v3
        v_lshlrev_b32 v16, 4, v16
        v_add_u32 v{EA}, v15, v16
        s_mov_b32 s60, {QKOFF}
        s_mov_b32 s61, 1.0
        s_cmp_lt_u32 s38, 5
        s_cselect_b32 s61, {QSCALE:#x}, s61
        """)
    else:
        A(f"""
        s_sub_u32 s44, s38, 10
        s_lshl_b32 s44, s44, 7
        s_and_b32 s45, s35, 1
        s_lshl_b32 s45, s45, 6
        s_add_u32 s44, s44, s45
        s_mul_i32 s60, s37, {VC}
        s_add_u32 s60, s60, {VOFF}
        s_lshr_b32 s45, s35, 1
        s_mul_i32 s45, s45, {4*640}
        s_add_u32 s60, s60, s45
        v_mul_u32_u24 v15, 320, v131
        s_mov_b32 s45, {VH}
        """)
        for nt in range(2):
            A(f"""
            v_add_u32 v18, s44, v3
            v_add_u32 v18, {32*nt}, v18
            v_mul_u32_u24 v19, 3277, v18
            v_lshrrev_b32 v19, 16, v19
            v_mul_u32_u24 v20, 20, v19
            v_sub_u32 v20, v18, v20
            v_lshlrev_b32 v20, 4, v20
            v_mul_lo_u32 v19, v19, s45
            v_add3_u32 v{EA+nt}, v19, v20, v15
            """)
    for i in range(64): A(f"v_mov_b32 v{ACC+i}, 0")
    for kk in range(4): A(f"v_add_u32 v{XA2+kk}, {2*ST1}, v{XA+kk}")
    for nt in range(2): A(f"v_add_u32 v{WA2+nt}, {2*ST1}, v{WA+nt}")
    stamp(A, 1)
    A(f"""
    s_mov_b32 s62, {BR}
    s_mov_b32 s63, 0
    s_mov_b32 s46, 0
    s_barrier
    """)
    stamp(A, 2)
    for l in reads(0, 0) + reads(0, 1): A(l)
    A(f"{tag}_loop:")
    for q in range(4):
        A("s_waitcnt lgkmcnt(6)")
        step(mf(0), reads(q, 2) + reads(q, 3))
        A("s_waitcnt lgkmcnt(12)")
        M = mf(1)
        A(M[0]); A(M[1])
        if q == 0:
            A(f"s_cmp_eq_u32 s46, 3")
            A(f"s_cbranch_scc1 {tag}_hk_vm")
            A(f"{tag}_rt_vm:")
        A(M[2]); A(M[3])
        A("s_waitcnt lgkmcnt(0)")
        A("s_barrier")
        step(mf(2), reads((q+1) % 4, 0) + reads((q+1) % 4, 1))
        M = mf(3)
        A(M[0])
        if q == 0:
            A(f"s_cmp_eq_u32 s46, 0")
            A(f"s_cbranch_scc1 {tag}_hk_pf")
            A(f"{tag}_rt_pf:")
            A(M[1])
            A(f"s_cmp_eq_u32 s46, 3")
            A(f"s_cbranch_scc1 {tag}_hk_sig")
            A(f"{tag}_rt_sig:")
            A(M[2]); A(M[3])
        elif q == 2:
            A(M[1])
            A(f"s_cmp_eq_u32 s46, 4")
            A(f"s_cbranch_scc1 {tag}_hk_q")
            A(f"{tag}_rt_q:")
            A(M[2]); A(M[3])
        elif q == 1:
            A(M[1]); A(M[2]); A(M[3])
            A(f"s_cmp_eq_u32 s46, 2")
            A(f"s_cbranch_scc1 {tag}_epi")
            A(f"{tag}_rt_epi:")
        else:
            A(M[1])
            A(f"s_add_u32 s46, s46, 1")
            A(f"s_cmp_lt_u32 s46, 5")
            A(M[2]); A(M[3])
            A(f"s_cbranch_scc1 {tag}_loop")
    stamp(A, 3)
    A("s_waitcnt vmcnt(0)")
    A(f"s_branch {tag}_epi2")
    A(f"{tag}_hk_vm:")
    A("s_waitcnt vmcnt(0)")
    A(f"s_branch {tag}_rt_vm")
    A(f"{tag}_hk_pf:")
    prefetch_share(A, 20, 21, 22, 23, 4, 35)
    A(f"s_branch {tag}_rt_pf")
    A(f"{tag}_hk_sig:")
    A(f"s_cmp_eq_u32 s32, 0")
    A(f"s_cbranch_scc0 {tag}_rt_sig")
    stamp(A, 7)
    check_prep(A, 226, 227)
    A(f"""
    s_lshl_b32 s50, s38, 7
    s_lshl_b32 s51, s37, 2
    s_add_u32 s50, s50, s51
    s_add_u32 s50, s50, {FBW}
    """)
    set_flag_ws(A, 50, 226, 227)
    A(f"s_branch {tag}_rt_sig")
    A(f"{tag}_hk_q:")
    p2_q_loads(A)
    A(f"s_branch {tag}_rt_q")
    A(f"{tag}_epi:")
    stamp(A, 5)
    A(f"{tag}_epi2:")
    T = 160
    if orient == "T":
        A(f"s_add_u32 s50, s60, s62")
        A(f"s_cmp_eq_u32 s63, 0")
        A(f"s_cselect_b32 s51, s61, 1.0")
        n = 0
        for nt in range(2):
            for st in range(2):
                r0 = ACC+16*(2*nt+st)
                for ip in range(2):
                    t = T + 4*(n % 4); n += 1
                    for e in range(8): A(f"v_mul_f32 v{r0+8*ip+e}, s51, v{r0+8*ip+e}")
                    for e in range(4): A(f"v_cvt_pk_bf16_f32 v{t+e}, v{r0+8*ip+2*e}, v{r0+8*ip+2*e+1}")
                    A(f"v_permlane32_swap_b32 v{t}, v{t+2}")
                    A(f"v_permlane32_swap_b32 v{t+1}, v{t+3}")
                    A(f"s_add_u32 s52, s50, {(4*nt+2*ip)*QKG + st*512}")
                    A(f"buffer_store_dwordx4 {v(t,4)}, v{EA}, s[8:11], s52 offen sc1")
    else:
        A(f"s_add_u32 s50, s60, s62")
        for nt in range(2):
            for st in range(2):
                for m in range(2):
                    r0 = ACC+16*(2*st+nt)+8*m
                    t = T + 4*((2*st+m) % 4)
                    for e in range(4): A(f"v_cvt_pk_bf16_f32 v{t+e}, v{r0+2*e}, v{r0+2*e+1}")
                    A(f"buffer_store_dwordx4 {v(t,4)}, v{EA+nt}, s[8:11], s50 offen offset:{(2*st+m)*640} sc1")
    A(f"""
    s_cmp_eq_u32 s63, 1
    s_cbranch_scc1 {name}_p2entry
    """)
    stamp(A, 6)
    for i in range(64): A(f"v_mov_b32 v{ACC+i}, 0")
    A(f"""
    s_mov_b32 s63, 1
    s_mov_b32 s62, 0
    s_branch {tag}_rt_epi
    """)

def p1_compute_setup(A):
    A(f"""
    s_lshr_b32 s44, s35, 1
    s_lshl_b32 s44, s44, 6
    v_add_u32 v7, s44, v3
    v_lshlrev_b32 v7, 7, v7
    v_add_u32 v7, {R1}, v7
    v_lshrrev_b32 v16, 1, v3
    v_and_b32 v16, 7, v16
    v_xor_b32 v16, v16, v131
    """)
    for kk in range(4):
        A(f"""
        v_xor_b32 v17, {2*kk}, v16
        v_lshlrev_b32 v17, 4, v17
        v_add_u32 v{XA+kk}, v7, v17
        """)
    A(f"""
    v_lshrrev_b32 v16, 2, v1
    v_and_b32 v16, 3, v16
    v_lshlrev_b32 v17, 11, v131
    v_lshlrev_b32 v18, 8, v16
    v_add_u32 v17, v17, v18
    v_lshrrev_b32 v18, 4, v1
    v_and_b32 v18, 1, v18
    v_lshlrev_b32 v18, 5, v18
    v_add_u32 v17, v17, v18
    v_and_b32 v18, 3, v1
    v_lshlrev_b32 v18, 3, v18
    v_add_u32 v17, v17, v18
    v_add_u32 v17, {R1+16384}, v17
    s_and_b32 s44, s35, 1
    s_lshl_b32 s44, s44, 1
    """)
    for nt in range(2):
        A(f"""
        s_add_u32 s45, s44, {nt}
        v_xor_b32 v18, s45, v16
        v_lshlrev_b32 v18, 6, v18
        v_add_u32 v{WA+nt}, v17, v18
        """)

def p1_prep(A, name):
    A.c("prep WGs")
    A(f"""
    s_lshl_b32 s69, s65, 2
    s_add_u32 s69, s69, s64
    s_sub_u32 s69, s69, 28
    s_cmp_ge_u32 s32, 3
    s_cbranch_scc1 {name}_prep_done
    """)
    srd(A, 12, 28, 29, 32*20*20*2)
    A(f"""
    s_cmp_eq_u32 s32, 2
    s_cbranch_scc1 {name}_sel
    s_lshl_b32 s44, s69, 1
    s_add_u32 s44, s44, s32
    v_subrev_u32 v4, 2, v3
    v_cmp_gt_u32 vcc, 18, v3
    v_cndmask_b32 v4, v4, v3, vcc
    v_and_b32 v5, 30, v3
    v_cmp_eq_u32 s[46:47], 20, v5
    s_or_b64 s[46:47], s[46:47], vcc
    v_lshlrev_b32 v4, 1, v4
    s_mul_i32 s45, s44, 800
    v_add_u32 v4, s45, v4
    s_and_b32 s45, s44, 1
    s_mul_i32 s48, s45, {4*40}
    v_mul_u32_u24 v5, {8*40}, v131
    v_add3_u32 v5, v4, v5, s48
    v_mov_b32 v6, 0x7fffffff
    v_cndmask_b32 v5, v6, v5, s[46:47]
    v_cmp_eq_u32 vcc, 0, v131
    s_and_b64 s[46:47], s[46:47], vcc
    s_cmp_eq_u32 s45, 1
    s_cselect_b32 s48, 0, {16*40}
    v_add_u32 v4, s48, v4
    v_cndmask_b32 v4, v6, v4, s[46:47]
    """)
    for j in range(8): A(f"buffer_load_ushort v{16+j}, v5, s[12:15], 0 offen offset:{40*j}")
    for j in range(4): A(f"buffer_load_ushort v{24+j}, v4, s[12:15], 0 offen offset:{40*j}")
    A("s_waitcnt vmcnt(0)")
    for j in range(6): A(f"v_lshl_or_b32 v{32+j}, v{17+2*j}, 16, v{16+2*j}")
    A(f"""
    s_mul_i32 s45, s44, 1536
    s_add_u32 s45, s45, {WPH}
    v_lshlrev_b32 v7, 3, v1
    buffer_store_dwordx4 v[32:35], v2, s[8:11], s45 offen sc1
    buffer_store_dwordx2 v[36:37], v7, s[8:11], s45 offen offset:1024 sc1
    s_branch {name}_prep_done
    {name}_sel:
    s_cmp_lg_u32 s69, 0
    s_cbranch_scc1 {name}_prep_done
    v_lshlrev_b32 v4, 2, v131
    v_sub_u32 v4, v3, v4
    """)
    for j in range(12):
        tgt = (8*(j//4) + (j%4)) if j < 8 else 16 + (j-8)
        A(f"""
        v_cmp_eq_u32 vcc, {tgt}, v4
        v_mov_b32 v5, 0x3f80
        v_cndmask_b32 v{16+j}, 0, v5, vcc
        """)
    for j in range(6): A(f"v_lshl_or_b32 v{32+j}, v{17+2*j}, 16, v{16+2*j}")
    A(f"""
    s_mov_b32 s45, {SEL}
    v_lshlrev_b32 v7, 3, v1
    buffer_store_dwordx4 v[32:35], v2, s[8:11], s45 offen sc1
    buffer_store_dwordx2 v[36:37], v7, s[8:11], s45 offen offset:1024 sc1
    v_mov_b32 v40, 0
    v_mov_b32 v41, 0
    v_mov_b32 v42, 0
    v_mov_b32 v43, 0
    """)
    for j in range(FZERO_BYTES // 1024):
        A(f"s_mov_b32 s45, {FZERO_LO + j*1024}")
        A(f"buffer_store_dwordx4 v[40:43], v2, s[8:11], s45 offen sc1")
    A(f"""
    {name}_prep_done:
    s_waitcnt vmcnt(0)
    s_cmp_eq_u32 s36, 0
    s_cbranch_scc0 {name}_prep_npf
    """)
    prefetch_share(A, 20, 21, 22, 23, 4, 35)
    A(f"""
    {name}_prep_npf:
    s_barrier
    s_cmp_eq_u32 s32, 4
    s_cbranch_scc0 {name}_prep_w
    s_mov_b32 s50, {FPREP}
    """)
    signal_dbg(A, 50, 48, 49)
    check_prep(A, 48, 49)
    A(f"s_mov_b32 s50, {FBW}")
    A(f"s_sleep 127")
    A(f"s_sleep 127")
    tile_flags_voff(A, 7)
    poll_ws(A, 7, 50, 16, 60, sleep=64)
    A(f"""
    {name}_prep_w:
    s_barrier
    s_cmp_eq_u32 s36, 0
    s_cbranch_scc1 {name}_prep_q
    """)
    p2_stage_dma(A, 0)
    A(f"{name}_prep_q:")
    p2_q_loads(A)
    A(f"""
    s_waitcnt vmcnt(0)
    s_barrier
    s_branch {name}_p2entry
    """)

def gen_fused(A, name):
    kernel_begin(A, name)
    stamp(A, 10, real=True)
    gen_common(A, name)
    stamp(A, 0)
    prefetch_share(A, 24, 25, 26, 27, 8, 32)
    A(f"""
    s_cmp_eq_u32 s31, 1
    s_cbranch_scc1 {name}_prep
    s_cmp_eq_u32 s36, 1
    s_cbranch_scc1 {name}_loader
    """)
    p1_compute_setup(A)
    l2pf_setup(A)
    A(f"""
    s_cmp_ge_u32 s38, 10
    s_cbranch_scc1 {name}_compN
    """)
    p1_compute(A, name, "T")
    A(f"{name}_compN:")
    p1_compute(A, name, "N")
    A(f"{name}_prep:")
    p1_prep(A, name)
    A(f"{name}_loader:")
    p1_loader(A, name)
    A(f"{name}_p2entry:")
    stamp(A, 4)
    if STOP_AFTER == "P1":
        A("s_waitcnt vmcnt(0)")
        stamp(A, 9)
        stamp(A, 11, real=True)
        stamp_flush(A, 12, 0, 32, base=70)
        A("s_endpgm")
    else:
        import fused2
        fused2.gen_p2(A, name)
    A(f"{name}_done:")
    A("s_endpgm")
    return kernel_desc(name, 256)
```

```python
import os
from asmlib import *
from layout2 import *
import fused
from fused import (poll_ws, set_flag_ws, check_prep, tile_flags_voff, p2_stage_dma, frag_addr, QA_M, QB_M, QA_R, QB_R, SPIN_MAX, STOP_AFTER)

S0, S1, P0, P1, OA, OB = 16, 32, 48, 56, 64, 80
SETS = [dict(km=96, kr=100, v0=104, v1=108), dict(km=112, kr=116, v0=120, v1=124)]
AKM, AKR, AV = 128, 129, 130
NKM, NKR, NV = 133, 134, 135
PHQ = 136
KXM, KXR, QXR, VX0, VX1, WM, WR, SL16, SL8, QXM = 148, 152, 154, 156, 160, 164, 168, 172, 176, 180
KVL = 148
T0, T1, T2, T3 = 184, 185, 186, 187
DD, TT, PK, TB = 192, 208, 232, 244
KVF = 4 * SLOT
KVX = 98304
XO = 0

def mf16(A, D, a_, b_, C=None):
    A(f"v_mfma_f32_32x32x16_bf16 {v(D,16)}, {v(a_,4)}, {v(b_,4)}, {v(D,16) if C is None else C}")
def mf8(A, D, a_, b_, C=None):
    A(f"v_mfma_f32_32x32x8_bf16 {v(D,16)}, {v(a_,2)}, {v(b_,2)}, {v(D,16) if C is None else C}")

def phi(A, xm, xr, wm, wr, D, T, out):
    mf16(A, D, wm, xm, "0")
    mf8(A, D, wr, xr)
    mx, mn, t = T, T+1, T+2
    A(f"v_max3_f32 v{mx}, v{D}, v{D+1}, v{D+2}")
    A(f"v_min3_f32 v{mn}, v{D}, v{D+1}, v{D+2}")
    for r in (3, 5, 7):
        A(f"v_max3_f32 v{mx}, v{mx}, v{D+r}, v{D+r+1}")
        A(f"v_min3_f32 v{mn}, v{mn}, v{D+r}, v{D+r+1}")
    A(f"v_max_f32 v{mx}, v{mx}, v{D+9}")
    A(f"v_min_f32 v{mn}, v{mn}, v{D+9}")
    A(f"v_mov_b32 v{t}, v{mx}")
    A(f"v_mov_b32 v{t+1}, v{mn}")
    A(f"v_permlane32_swap_b32 v{mx}, v{t}")
    A(f"v_permlane32_swap_b32 v{mn}, v{t+1}")
    A(f"v_max_f32 v{mx}, v{mx}, v{t}")
    A(f"v_min_f32 v{mn}, v{mn}, v{t+1}")
    A(f"v_mul_f32 v{mx}, s41, v{mx}")
    A(f"v_mul_f32 v{mn}, s40, v{mn}")
    EP, EN = T+4, T+14
    for r in range(10):
        A(f"v_fma_f32 v{EP+r}, v{D+r}, s40, v{mx}")
        A(f"v_fma_f32 v{EN+r}, v{D+r}, s41, v{mn}")
    for r in range(10):
        A(f"v_exp_f32 v{EP+r}, v{EP+r}")
        A(f"v_exp_f32 v{EN+r}, v{EN+r}")
    sp, sn = T, T+1
    A(f"v_add_f32 v{sp}, v{EP}, v{EP+1}")
    A(f"v_add_f32 v{sn}, v{EN}, v{EN+1}")
    for r in range(2, 10):
        A(f"v_add_f32 v{sp}, v{sp}, v{EP+r}")
        A(f"v_add_f32 v{sn}, v{sn}, v{EN+r}")
    A(f"v_mov_b32 v{t}, v{sp}")
    A(f"v_mov_b32 v{t+1}, v{sn}")
    A(f"v_permlane32_swap_b32 v{sp}, v{t}")
    A(f"v_permlane32_swap_b32 v{sn}, v{t+1}")
    A(f"v_add_f32 v{sp}, v{sp}, v{t}")
    A(f"v_add_f32 v{sn}, v{sn}, v{t+1}")
    A(f"v_rcp_f32 v{sp}, v{sp}")
    A(f"v_rcp_f32 v{sn}, v{sn}")
    for r in range(10):
        A(f"v_mul_f32 v{EP+r}, v{EP+r}, v{sp}")
        A(f"v_mul_f32 v{EN+r}, v{EN+r}, v{sn}")
    for i in range(4):
        A(f"v_cvt_pk_bf16_f32 v{out+i}, v{EP+2*i}, v{EP+2*i+1}")
        A(f"v_cvt_pk_bf16_f32 v{out+6+i}, v{EN+2*i}, v{EN+2*i+1}")
    A(f"v_cvt_pk_bf16_f32 v{out+4}, v{EP+8}, v{EP+9}")
    A(f"v_cvt_pk_bf16_f32 v{out+10}, v{EN+8}, v{EN+9}")
    A(f"v_mov_b32 v{out+5}, 0")
    A(f"v_mov_b32 v{out+11}, 0")

def phase(A, Sc, Pc, Sn, qm, qr, kset, Oprev, Pprev, vset, do_qk=True, do_pv=True, do_exp=True, pre=None):
    pre = list(pre or [])
    def ex(i):
        if do_exp: A(f"v_exp_f32 v{Sc+i}, v{Sc+i}")
    def cv(i):
        if do_exp: A(f"v_cvt_pk_bf16_f32 v{Pc+i}, v{Sc+2*i}, v{Sc+2*i+1}")
    def sprinkle(n):
        for _ in range(n):
            if pre:
                for l in pre.pop(0): A(l)
    if do_qk: mf16(A, Sn, kset['km'], qm, "0")
    sprinkle(1)
    for i in range(0, 4): ex(i)
    if do_qk: mf8(A, Sn, kset['kr'], qr)
    sprinkle(1)
    for i in range(4, 8): ex(i)
    cv(0); cv(1)
    if do_pv: mf16(A, Oprev, vset['v0'], Pprev)
    for i in range(8, 12): ex(i)
    cv(2); cv(3)
    if do_pv: mf16(A, Oprev, vset['v1'], Pprev + 4)
    for i in range(12, 16): ex(i)
    cv(4); cv(5)
    sprinkle(8)
    cv(6); cv(7)

def o_addr(A, vd):
    A(f"""
    s_mul_i32 s55, s33, 20
    v_lshlrev_b32 v{vd}, 2, v131
    v_add_u32 v{vd}, s55, v{vd}
    v_and_b32 v{vd+1}, 7, v{vd}
    v_lshlrev_b32 v{vd+1}, 1, v{vd+1}
    v_lshrrev_b32 v{vd}, 3, v{vd}
    v_lshlrev_b32 v{vd}, 10, v{vd}
    v_add_u32 v{vd}, v{vd}, v{vd+1}
    s_lshl_b32 s55, s36, 5
    v_add_u32 v{vd+1}, s55, v3
    v_lshlrev_b32 v{vd+1}, 4, v{vd+1}
    v_add_u32 v{vd}, v{vd}, v{vd+1}
    s_lshl_b32 s55, s34, 2
    s_add_u32 s55, s55, s35
    s_mul_i32 s55, s55, {ORB}
    s_add_u32 s55, s55, {OOFF}
    """)
def store_o(A, R, tmp, vaddr, soff):
    for i in range(3):
        A(f"v_cvt_pk_bf16_f32 v{tmp+2*i}, v{R+4*i}, v{R+4*i+1}")
        A(f"v_cvt_pk_bf16_f32 v{tmp+1+2*i}, v{R+4*i+2}, v{R+4*i+3}")
    A(f"buffer_store_dwordx2 {v(tmp,2)}, v{vaddr}, s[8:11], s{soff} offen sc1")
    A(f"buffer_store_dwordx2 {v(tmp+2,2)}, v{vaddr}, s[8:11], s{soff} offen offset:1024 sc1")
    A("s_mov_b32 exec_hi, 0")
    A(f"buffer_store_dwordx2 {v(tmp+4,2)}, v{vaddr}, s[8:11], s{soff} offen offset:2048 sc1")
    A("s_mov_b64 exec, -1")
def fo_flag(A, br):
    A(f"""
    s_lshl_b32 s56, s34, 2
    s_add_u32 s56, s56, s35
    s_lshl_b32 s56, s56, 8
    s_lshl_b32 s57, s33, 3
    s_add_u32 s56, s56, s57
    s_lshl_b32 s57, s36, 2
    s_add_u32 s56, s56, s57
    s_add_u32 s56, s56, {FO + br*8192}
    """)
    set_flag_ws(A, 56, T0, T1)

def a_loads(A):
    frag_addr(A, T0, T1)
    A(f"""
    s_lshl_b32 s56, s34, 8
    s_lshl_b32 s57, s32, 5
    s_add_u32 s57, s57, s56
    s_lshl_b32 s57, s57, 4
    s_add_u32 s57, s57, {QKOFF}
    s_add_u32 s58, s66, 80
    s_lshl_b32 s58, s58, 15
    s_add_u32 s58, s58, s57
    buffer_load_dwordx4 {v(KXM,4)}, v{T0}, s[8:11], s58 offen sc1
    s_add_u32 s58, s67, 80
    s_lshl_b32 s58, s58, 15
    s_add_u32 s58, s58, s57
    buffer_load_dwordx2 {v(KXR,2)}, v{T1}, s[8:11], s58 offen sc1
    s_lshl_b32 s57, s35, 1
    s_add_u32 s57, s57, s36
    s_lshl_b32 s57, s57, 5
    s_add_u32 s57, s57, s56
    s_lshl_b32 s57, s57, 4
    s_add_u32 s57, s57, {QKOFF}
    s_lshl_b32 s58, s66, 15
    s_add_u32 s58, s58, s57
    buffer_load_dwordx4 {v(QXM,4)}, v{T0}, s[8:11], s58 offen sc1
    s_lshl_b32 s58, s67, 15
    s_add_u32 s58, s58, s57
    buffer_load_dwordx2 {v(QXR,2)}, v{T1}, s[8:11], s58 offen sc1
    v_mov_b32 v{T2}, 0x3f803f80
    v_cmp_eq_u32 vcc, 20, v3
    v_cndmask_b32 v{T2}, 0, v{T2}, vcc
    """)
    for r in range(VX0, VX0+8): A(f"v_mov_b32 v{r}, v{T2}")
    A(f"""
    v_mul_u32_u24 v{T2}, 320, v131
    v_lshlrev_b32 v{T3}, 4, v3
    v_add_u32 v{T2}, v{T2}, v{T3}
    s_lshl_b32 s56, s34, 1
    s_lshr_b32 s57, s32, 2
    s_add_u32 s56, s56, s57
    s_mul_i32 s56, s56, {VC}
    s_and_b32 s57, s32, 3
    s_mul_i32 s57, s57, 1280
    s_add_u32 s56, s56, s57
    s_mul_i32 s57, s33, {VH}
    s_add_u32 s56, s56, s57
    s_add_u32 s56, s56, {VOFF}
    s_mov_b64 exec, s[42:43]
    buffer_load_dwordx4 {v(VX0,4)}, v{T2}, s[8:11], s56 offen sc1
    buffer_load_dwordx4 {v(VX1,4)}, v{T2}, s[8:11], s56 offen offset:640 sc1
    s_mov_b64 exec, -1
    v_lshlrev_b32 v{T3}, 3, v1
    s_mul_i32 s56, s33, 1536
    s_add_u32 s56, s56, {WPH}
    buffer_load_dwordx4 {v(WM,4)}, v2, s[8:11], s56 offen sc1
    buffer_load_dwordx2 {v(WR,2)}, v{T3}, s[8:11], s56 offen offset:1024 sc1
    s_mov_b32 s56, {SEL}
    buffer_load_dwordx4 {v(SL16,4)}, v2, s[8:11], s56 offen sc1
    buffer_load_dwordx2 {v(SL8,2)}, v{T3}, s[8:11], s56 offen offset:1024 sc1
    """)

def a_compute(A):
    phi(A, KXM, KXR, WM, WR, DD, TT, PK)
    KA = TT
    A(f"s_mul_i32 s55, s32, 5120")
    A(f"s_add_u32 s55, s55, {KVX}")
    A(f"v_add_u32 v{T0}, s55, v2")
    for sign, (mo, ro) in enumerate(((PK, PK+4), (PK+6, PK+10))):
        mf16(A, DD, mo, SL16, "0")
        mf8(A, DD, ro, SL8)
        for i in range(8): A(f"v_cvt_pk_bf16_f32 v{TB+i}, v{DD+2*i}, v{DD+2*i+1}")
        mf16(A, KA, TB, VX0, "0")
        mf16(A, KA, TB+4, VX1)
        if sign == 0:
            A(f"ds_write_b128 v{T0}, {v(KA,4)}")
            A(f"ds_write_b128 v{T0}, {v(KA+4,4)} offset:1024")
            A(f"v_mov_b32 v{TT+16}, v{KA+8}")
            A(f"v_mov_b32 v{TT+17}, v{KA+9}")
        else:
            A(f"ds_write_b128 v{T0}, {v(KA,4)} offset:3072")
            A(f"ds_write_b128 v{T0}, {v(KA+4,4)} offset:4096")
            A(f"v_mov_b32 v{TT+18}, v{KA+8}")
            A(f"v_mov_b32 v{TT+19}, v{KA+9}")
            A(f"ds_write_b128 v{T0}, {v(TT+16,4)} offset:2048")
    phi(A, QXM, QXR, WM, WR, DD, TT, PHQ)

def kv_dma_setup(A):
    for e in range(3):
        L = A.new("kd")
        A(f"""
        s_mul_i32 s55, s32, 3
        s_add_u32 s55, s55, {e}
        s_min_u32 s55, s55, 21
        s_cmp_ge_u32 s55, 11
        s_cselect_b32 s56, 1, 0
        s_mul_i32 s57, s56, 11
        s_sub_u32 s55, s55, s57
        s_mul_i32 s57, s56, {PART}
        s_lshl_b32 s58, s55, 10
        s_add_u32 s{50+e}, s57, s58
        s_lshl_b32 s56, s56, 3
        s_cmp_ge_u32 s55, 6
        s_cbranch_scc1 {L}_v
        s_lshr_b32 s57, s55, 1
        s_add_u32 s58, s66, s57
        s_cmp_eq_u32 s57, 2
        s_cselect_b32 s58, s67, s58
        s_add_u32 s58, s58, 80
        s_lshl_b32 s58, s58, 15
        s_lshl_b32 s56, s56, 11
        s_add_u32 s58, s58, s56
        s_and_b32 s57, s55, 1
        s_lshl_b32 s57, s57, 10
        s_add_u32 s58, s58, s57
        s_add_u32 s{44+e}, s58, {BR + QKOFF}
        s_mov_b32 s{47+e}, 2048
        s_branch {L}_e
        {L}_v:
        s_mul_i32 s56, s56, {VC}
        s_sub_u32 s57, s55, 6
        s_lshl_b32 s57, s57, 10
        s_add_u32 s56, s56, s57
        s_add_u32 s{44+e}, s56, s53
        s_mov_b32 s{47+e}, {VC}
        {L}_e:
        s_add_u32 s{44+e}, s{44+e}, s{47+e}
        """)
def kv_dma_issue(A, SB):
    for e in range(3):
        A(f"s_add_u32 m0, s{SB}, s{50+e}")
        A(f"s_nop 0")
        A(f"buffer_load_dwordx4 v2, s[8:11], s{44+e} offen sc1 lds")
        A(f"s_add_u32 s{44+e}, s{44+e}, s{47+e}")

def gen_p2(A, name):
    SI, SB, MK1, MK3 = 60, 61, 62, 63
    kv_dma_setup(A)
    for st in (1, 2, 3):
        A(f"s_mov_b32 s{SB}, {st*SLOT}")
        kv_dma_issue(A, SB)
    A(f"""
    v_mov_b32 v{T0}, 0x3f803f80
    v_cmp_eq_u32 vcc, 20, v3
    v_cndmask_b32 v{T0}, 0, v{T0}, vcc
    """)
    for r in [SETS[0]['v0']+i for i in range(8)] + [SETS[1]['v0']+i for i in range(8)]: A(f"v_mov_b32 v{r}, v{T0}")
    A(f"""
    s_mul_i32 s55, s36, {PART}
    v_lshlrev_b32 v{T0}, 11, v131
    v_lshlrev_b32 v{T1}, 4, v3
    v_add3_u32 v{AKM}, v{T0}, v{T1}, s55
    s_add_u32 s56, s55, 4096
    s_add_u32 s56, s56, s68
    v_add_u32 v{AKR}, s56, v{T1}
    v_mul_u32_u24 v{T0}, 320, v131
    s_add_u32 s56, s55, 6144
    v_add3_u32 v{AV}, v{T0}, v{T1}, s56
    v_add_u32 v{NKM}, {SLOT}, v{AKM}
    v_add_u32 v{NKR}, {SLOT}, v{AKR}
    v_add_u32 v{NV}, {SLOT}, v{AV}
    """)
    for r in range(OA, OA+32): A(f"v_mov_b32 v{r}, 0")
    for r in range(P1, P1+8): A(f"v_mov_b32 v{r}, 0")
    A(f"""
    s_mov_b32 s{MK1}, {(1<<1)|(1<<6):#x}
    s_mov_b32 s{MK3}, {(1<<6):#x}
    s_cmp_eq_u32 s36, 1
    s_cselect_b32 s55, {1<<2:#x}, 0
    s_cselect_b32 s56, 0, {1<<1:#x}
    s_or_b32 s{MK1}, s{MK1}, s55
    s_or_b32 s{MK3}, s{MK3}, s56
    s_cmp_lt_u32 s32, 5
    s_cselect_b32 s55, {(1<<3)|(1<<5):#x}, 0
    s_cselect_b32 s56, {(1<<3)|(1<<4):#x}, 0
    s_or_b32 s{MK1}, s{MK1}, s55
    s_or_b32 s{MK3}, s{MK3}, s56
    s_cmp_eq_u32 s32, 0
    s_cselect_b32 s55, 1, 0
    s_andn2_b32 s55, s55, s31
    s_or_b32 s{MK1}, s{MK1}, s55
    """)
    if os.environ.get("NOHOOK") == "1":
        A(f"s_mov_b32 s{MK1}, 0"); A(f"s_mov_b32 s{MK3}, 0")
    def loads(kset, ktile, vset, vtile, nxtK, nxtV):
        L = []
        ak, akr = (NKM, NKR) if nxtK else (AKM, AKR)
        av = NV if nxtV else AV
        L.append([f"ds_read_b128 {v(kset['km'],4)}, v{ak} offset:{ktile*512}",
                  f"ds_read_b64 {v(kset['kr'],2)}, v{akr} offset:{ktile*512}"])
        if vset is not None:
            L.append(["s_mov_b64 exec, s[42:43]",
                      f"ds_read_b128 {v(vset['v0'],4)}, v{av} offset:{vtile*1280}",
                      f"ds_read_b128 {v(vset['v1'],4)}, v{av} offset:{vtile*1280+640}",
                      "s_mov_b64 exec, -1"])
        return L
    for g in loads(SETS[1], 0, None, 0, False, False) + loads(SETS[0], 1, SETS[0], 0, False, False):
        for l in g: A(l)
    A("s_waitcnt lgkmcnt(0)")
    mf16(A, S0, SETS[1]['km'], QA_M, "0"); mf8(A, S0, SETS[1]['kr'], QA_R)
    A("s_nop 7")
    phase(A, S0, P0, S1, QB_M, QB_R, SETS[1], OB, P1, SETS[1], do_pv=False)
    if os.environ.get("DIAG") != "stage": stamp(A, 5)
    A(f"s_mov_b32 s{SI}, 0")
    A(f"s_mov_b32 s{SB}, {3*SLOT}")
    A(f"{name}_stage:")
    for i in range(4):
        cur = SETS[i % 2]; nxt = SETS[(i + 1) % 2]
        kt, vt = i + 2, i + 1
        L = loads(nxt, kt % 4, nxt, vt % 4, kt >= 4, vt >= 4)
        A("s_waitcnt lgkmcnt(0)")
        if i == 1:
            A(f"""
            s_waitcnt vmcnt(0)
            s_barrier
            """)
            if STAMPS and os.environ.get("DIAG") == "stage":
                for s_ in range(8):
                    L_ = A.new("dg")
                    A(f"s_cmp_eq_u32 s{SI}, {s_}")
                    A(f"s_cbranch_scc0 {L_}")
                    stamp(A, 1 + s_)
                    A(f"{L_}:")
            A(f"""
            s_bitcmp1_b32 s{MK1}, s{SI}
            s_cbranch_scc1 {name}_hk1
            {name}_rt1:
            """)
        if i == 2:
            A(f"""
            s_sub_u32 s55, s{SI}, 1
            s_cmp_lt_u32 s55, 4
            s_cbranch_scc0 {name}_nodma
            s_add_u32 s{SB}, s{SB}, {SLOT}
            s_cmp_eq_u32 s{SB}, {4*SLOT}
            s_cselect_b32 s{SB}, 0, s{SB}
            """)
            kv_dma_issue(A, SB)
            A(f"{name}_nodma:")
        if i == 3:
            A(f"""
            s_bitcmp1_b32 s{MK3}, s{SI}
            s_cbranch_scc1 {name}_hk3
            {name}_rt3:
            """)
        phase(A, S1, P1, S0, QA_M, QA_R, cur, OA, P0, cur, pre=L)
        if i == 3:
            A(f"""
            s_cmp_eq_u32 s{SI}, 7
            s_cbranch_scc1 {name}_tail
            """)
        phase(A, S0, P0, S1, QB_M, QB_R, cur, OB, P1, cur)
    A(f"""
    v_mov_b32 v{AKM}, v{NKM}
    v_mov_b32 v{AKR}, v{NKR}
    v_mov_b32 v{AV}, v{NV}
    s_add_u32 s{SI}, s{SI}, 1
    s_and_b32 s55, s{SI}, 3
    s_cmp_eq_u32 s55, 3
    s_mov_b32 s55, {SLOT}
    s_cselect_b32 s55, {(-3*SLOT) & 0xffffffff:#x}, s55
    v_add_u32 v{NKM}, s55, v{NKM}
    v_add_u32 v{NKR}, s55, v{NKR}
    v_add_u32 v{NV}, s55, v{NV}
    s_branch {name}_stage
    """)
    A(f"{name}_hk1:")
    A(f"""
    s_cmp_eq_u32 s{SI}, 0
    s_cbranch_scc1 {name}_h10
    s_cmp_eq_u32 s{SI}, 1
    s_cbranch_scc1 {name}_h11
    s_cmp_eq_u32 s{SI}, 2
    s_cbranch_scc1 {name}_h21
    s_cmp_eq_u32 s{SI}, 3
    s_cbranch_scc1 {name}_h31
    s_cmp_eq_u32 s{SI}, 5
    s_cbranch_scc1 {name}_h51
    s_cmp_eq_u32 s{SI}, 6
    s_cbranch_scc1 {name}_h61
    s_branch {name}_rt1
    """)
    A(f"""
    {name}_h10:
    s_lshl_b32 s55, s38, 7
    s_lshl_b32 s56, s37, 2
    s_add_u32 s55, s55, s56
    s_add_u32 s55, s55, {FAW}
    """)
    set_flag_ws(A, 55, T0, T1)
    A(f"s_branch {name}_rt1")
    A(f"{name}_h11:")
    A(f"s_mov_b32 s55, {FAW}")
    tile_flags_voff(A, T0)
    poll_ws(A, T0, 55, DD, 60)
    a_loads(A)
    A(f"s_branch {name}_rt1")
    A(f"""
    {name}_h21:
    s_cmp_eq_u32 s36, 1
    s_cbranch_scc0 {name}_rt1
    """)
    a_compute(A)
    A(f"s_branch {name}_rt1")
    A(f"""
    {name}_h31:
    s_lshl_b32 s55, s32, 10
    s_add_u32 s55, s55, {KVX}
    v_add_u32 v{T0}, s55, v2
    """)
    for j in range(8): A(f"ds_read_b128 {v(DD+4*j,4)}, v{T0} offset:{j*5120}")
    A(f"""
    s_mul_i32 s55, s33, {8*5120}
    s_mul_i32 s56, s34, 5120
    s_add_u32 s55, s55, s56
    s_lshl_b32 s56, s32, 10
    s_add_u32 s55, s55, s56
    s_add_u32 s55, s55, {KVP}
    s_waitcnt lgkmcnt(0)
    """)
    for j in range(1, 8):
        for e in range(4): A(f"v_add_f32 v{DD+e}, v{DD+e}, v{DD+4*j+e}")
    A(f"""
    buffer_store_dwordx4 {v(DD,4)}, v2, s[8:11], s55 offen sc1
    s_branch {name}_rt1
    """)
    A(f"""
    {name}_h51:
    s_cmp_ge_u32 s32, 5
    s_cbranch_scc1 {name}_rt1
    """)
    for j in range(1, 8):
        for e in range(4): A(f"v_add_f32 v{KVL+e}, v{KVL+e}, v{KVL+4*j+e}")
    A(f"""
    v_cvt_pk_bf16_f32 v{DD}, v{KVL}, v{KVL+1}
    v_cvt_pk_bf16_f32 v{DD+1}, v{KVL+2}, v{KVL+3}
    s_cmp_eq_u32 s32, 2
    s_cbranch_scc1 {name}_kv2
    s_cmp_ge_u32 s32, 3
    s_cselect_b32 s55, 1024, 0
    s_cmp_eq_u32 s32, 1
    s_cselect_b32 s56, 8, 0
    s_cmp_eq_u32 s32, 4
    s_cselect_b32 s56, 8, s56
    s_add_u32 s55, s55, s56
    s_add_u32 s55, s55, {KVF}
    v_add_u32 v{T1}, s55, v2
    ds_write_b64 v{T1}, {v(DD,2)}
    s_branch {name}_rt1
    {name}_kv2:
    v_mov_b32 v{DD+2}, v{DD+1}
    v_mov_b32 v{DD+1}, 0
    v_mov_b32 v{DD+3}, 0
    v_lshlrev_b32 v{T1}, 3, v1
    v_add_u32 v{T1}, {KVF+2048}, v{T1}
    ds_write_b64 v{T1}, {v(DD,2)}
    ds_write_b64 v{T1}, {v(DD+2,2)} offset:512
    s_branch {name}_rt1
    """)
    A(f"""
    {name}_h61:
    v_add_u32 v{T1}, {KVF}, v2
    v_lshlrev_b32 v{T2}, 3, v1
    v_add_u32 v{T2}, {KVF+2048}, v{T2}
    ds_read_b128 {v(TT,4)}, v{T1}
    ds_read_b128 {v(TT+4,4)}, v{T1} offset:1024
    ds_read_b64 {v(TT+8,2)}, v{T2}
    ds_read_b64 {v(TT+10,2)}, v{T2} offset:512
    s_waitcnt lgkmcnt(0)
    """)
    mf16(A, DD, TT, PHQ, "0"); mf8(A, DD, TT+8, PHQ+4); mf16(A, DD, TT+4, PHQ+6); mf8(A, DD, TT+10, PHQ+10)
    o_addr(A, T2)
    A(f"""
    v_mov_b32 v{TT}, v{DD+8}
    v_mov_b32 v{TT+1}, v{DD+8}
    v_permlane32_swap_b32 v{TT}, v{TT+1}
    v_add_f32 v{TT+1}, 0x358637bd, v{TT+1}
    v_rcp_f32 v{TT+1}, v{TT+1}
    s_nop 0
    """)
    for r in range(12): A(f"v_mul_f32 v{DD+r}, v{DD+r}, v{TT+1}")
    store_o(A, DD, TT+2, T2, 55)
    A(f"s_branch {name}_rt1")
    A(f"""
    {name}_hk3:
    s_cmp_eq_u32 s{SI}, 1
    s_cbranch_scc1 {name}_h13
    s_cmp_eq_u32 s{SI}, 3
    s_cbranch_scc1 {name}_h33
    s_cmp_eq_u32 s{SI}, 4
    s_cbranch_scc1 {name}_h43
    s_cmp_eq_u32 s{SI}, 6
    s_cbranch_scc1 {name}_h63
    s_branch {name}_rt3
    """)
    A(f"""
    {name}_h13:
    s_cmp_eq_u32 s36, 0
    s_cbranch_scc0 {name}_rt3
    s_waitcnt vmcnt(0)
    """)
    a_compute(A)
    A(f"s_branch {name}_rt3")
    A(f"""
    {name}_h33:
    s_cmp_ge_u32 s32, 5
    s_cbranch_scc1 {name}_rt3
    s_waitcnt vmcnt(0)
    s_lshl_b32 s55, s33, 8
    s_lshl_b32 s56, s32, 5
    s_add_u32 s55, s55, s56
    s_lshl_b32 s56, s34, 2
    s_add_u32 s55, s55, s56
    s_add_u32 s55, s55, {FKVW}
    """)
    set_flag_ws(A, 55, T0, T1)
    A(f"s_branch {name}_rt3")
    A(f"""
    {name}_h43:
    s_cmp_ge_u32 s32, 5
    s_cbranch_scc1 {name}_rt3
    s_lshl_b32 s55, s33, 8
    s_lshl_b32 s56, s32, 5
    s_add_u32 s55, s55, s56
    s_add_u32 s55, s55, {FKVW}
    v_lshlrev_b32 v{T0}, 2, v1
    """)
    poll_ws(A, T0, 55, DD, 8, width=1)
    A(f"""
    s_mul_i32 s55, s33, {8*5120}
    s_lshl_b32 s56, s32, 10
    s_add_u32 s55, s55, s56
    s_add_u32 s55, s55, {KVP}
    """)
    for j in range(8):
        A(f"s_add_u32 s56, s55, {j*5120}")
        A(f"buffer_load_dwordx4 {v(KVL+4*j,4)}, v2, s[8:11], s56 offen sc1")
    A(f"s_branch {name}_rt3")
    A(f"""
    {name}_h63:
    s_waitcnt vmcnt(0)
    """)
    fo_flag(A, 0)
    A(f"s_branch {name}_rt3")
    A(f"{name}_tail:")
    cur = SETS[1]
    mf16(A, OB, cur['v0'], P1); mf16(A, OB, cur['v1'], P1 + 4)
    if os.environ.get("DIAG") != "stage": stamp(A, 6)
    A(f"""
    s_mul_i32 s55, s32, 3072
    s_add_u32 s55, s55, {XO}
    v_add_u32 v{T0}, s55, v2
    s_cmp_eq_u32 s36, 0
    s_cbranch_scc1 {name}_x0
    ds_write_b128 v{T0}, {v(OA,4)}
    ds_write_b128 v{T0}, {v(OA+4,4)} offset:1024
    ds_write_b128 v{T0}, {v(OA+8,4)} offset:2048
    """)
    for r in range(12): A(f"v_mov_b32 v{OA+r}, v{OB+r}")
    A(f"""
    s_branch {name}_x1
    {name}_x0:
    ds_write_b128 v{T0}, {v(OB,4)}
    ds_write_b128 v{T0}, {v(OB+4,4)} offset:1024
    ds_write_b128 v{T0}, {v(OB+8,4)} offset:2048
    {name}_x1:
    s_waitcnt lgkmcnt(0)
    s_barrier
    s_xor_b32 s55, s32, 4
    s_mul_i32 s55, s55, 3072
    s_add_u32 s55, s55, {XO}
    v_add_u32 v{T0}, s55, v2
    ds_read_b128 v[16:19], v{T0}
    ds_read_b128 v[20:23], v{T0} offset:1024
    ds_read_b128 v[24:27], v{T0} offset:2048
    """)
    o_addr(A, T2)
    A(f"s_add_u32 s55, s55, {BR}")
    A("s_waitcnt lgkmcnt(0)")
    for r in range(12): A(f"v_add_f32 v{OA+r}, v{OA+r}, v{16+r}")
    A(f"""
    v_mov_b32 v16, v{OA+8}
    v_mov_b32 v17, v{OA+8}
    v_permlane32_swap_b32 v16, v17
    v_max3_f32 v18, |v{OA}|, |v{OA+1}|, |v{OA+2}|
    v_max3_f32 v18, v18, |v{OA+3}|, |v{OA+4}|
    v_max3_f32 v18, v18, |v{OA+5}|, |v{OA+6}|
    v_max3_f32 v18, v18, |v{OA+7}|, |v{OA+8}|
    v_max3_f32 v18, v18, |v{OA+9}|, |v{OA+10}|
    v_max_f32 v18, v18, |v{OA+11}|
    v_mov_b32 v19, 0x21800000
    v_mov_b32 v20, 0x5d800000
    v_mov_b32 v21, 0x7f000000
    v_cmp_ge_f32 vcc, v17, v19
    v_cmp_le_f32 s[58:59], v17, v20
    s_and_b64 vcc, vcc, s[58:59]
    v_cmp_lt_f32 s[58:59], v18, v21
    s_and_b64 vcc, vcc, s[58:59]
    s_cmp_eq_u64 vcc, -1
    s_cbranch_scc0 {name}_slow
    {name}_fin:
    v_rcp_f32 v17, v17
    s_nop 0
    """)
    for r in range(12): A(f"v_mul_f32 v{OA+r}, v{OA+r}, v17")
    store_o(A, OA, 20, T2, 55)
    A("s_waitcnt vmcnt(0)")
    fo_flag(A, 1)
    if os.environ.get("DIAG") != "stage": stamp(A, 8)
    if STOP_AFTER == "P2":
        stamp(A, 9); stamp(A, 11, real=True)
        stamp_flush(A, 12, 0, 32, base=70)
        A("s_endpgm")
    else:
        A(f"s_branch {name}_p3")
    A(f"{name}_slow:")
    A(f"s_cmp_eq_u32 s36, 0")
    A(f"s_cbranch_scc1 {name}_sl0")
    for i in range(4): A(f"v_mov_b32 v{QA_M+i}, v{QB_M+i}")
    for i in range(2): A(f"v_mov_b32 v{QA_R+i}, v{QB_R+i}")
    A(f"{name}_sl0:")
    for r in range(16): A(f"v_mov_b32 v{OA+r}, 0")
    MX = 44
    frag_addr(A, 42, 43)
    A(f"""
    v_mov_b32 v{MX}, 0xff7fffff
    v_mul_u32_u24 v{T0}, 320, v131
    v_lshlrev_b32 v{T1}, 4, v3
    v_add_u32 v{T0}, v{T0}, v{T1}
    s_mov_b32 s57, 0
    {name}_sloop:
    s_lshl_b32 s56, s57, 9
    s_add_u32 s56, s56, {BR + QKOFF}
    s_add_u32 s58, s66, 80
    s_lshl_b32 s58, s58, 15
    s_add_u32 s58, s58, s56
    buffer_load_dwordx4 {v(SETS[0]['km'],4)}, v42, s[8:11], s58 offen sc1
    s_add_u32 s58, s67, 80
    s_lshl_b32 s58, s58, 15
    s_add_u32 s58, s58, s56
    buffer_load_dwordx2 {v(SETS[0]['kr'],2)}, v43, s[8:11], s58 offen sc1
    s_lshr_b32 s56, s57, 2
    s_mul_i32 s56, s56, {VC}
    s_and_b32 s58, s57, 3
    s_mul_i32 s58, s58, 1280
    s_add_u32 s58, s58, s56
    s_add_u32 s58, s58, s53
    s_mov_b64 exec, s[42:43]
    buffer_load_dwordx4 {v(SETS[0]['v0'],4)}, v{T0}, s[8:11], s58 offen sc1
    buffer_load_dwordx4 {v(SETS[0]['v1'],4)}, v{T0}, s[8:11], s58 offen offset:640 sc1
    s_mov_b64 exec, -1
    s_waitcnt vmcnt(0)
    """)
    mf16(A, S0, SETS[0]['km'], QA_M, "0"); mf8(A, S0, SETS[0]['kr'], QA_R)
    A(f"v_max3_f32 v45, v{S0}, v{S0+1}, v{S0+2}")
    for r in range(3, 15, 2): A(f"v_max3_f32 v45, v45, v{S0+r}, v{S0+r+1}")
    A(f"""
    v_max_f32 v45, v45, v{S0+15}
    v_mov_b32 v46, v45
    v_permlane32_swap_b32 v45, v46
    v_max3_f32 v45, v45, v46, v{MX}
    v_sub_f32 v46, v{MX}, v45
    v_exp_f32 v46, v46
    v_mov_b32 v{MX}, v45
    """)
    for r in range(16): A(f"v_sub_f32 v{S0+r}, v{S0+r}, v45")
    for r in range(16): A(f"v_exp_f32 v{S0+r}, v{S0+r}")
    for r in range(16): A(f"v_mul_f32 v{OA+r}, v{OA+r}, v46")
    for i in range(8): A(f"v_cvt_pk_bf16_f32 v{P0+i}, v{S0+2*i}, v{S0+2*i+1}")
    mf16(A, OA, SETS[0]['v0'], P0); mf16(A, OA, SETS[0]['v1'], P0 + 4)
    A(f"""
    s_add_u32 s57, s57, 1
    s_cmp_lt_u32 s57, 64
    s_cbranch_scc1 {name}_sloop
    s_nop 15
    v_mov_b32 v16, v{OA+8}
    v_mov_b32 v17, v{OA+8}
    v_permlane32_swap_b32 v16, v17
    s_branch {name}_fin
    """)
    if STOP_AFTER != "P2":
        import fused3
        A(f"{name}_p3:")
        fused3.gen_p3(A, name)
```

```python
import os
from asmlib import *
from layout2 import *
from fused import poll_ws, SPIN_MAX

ST3 = 18432; NS3 = 7; R3 = 24576
OUTB = R3 + NS3 * ST3
def gen_p3(A, name):
    A(f"""
    s_load_dwordx2 s[20:21], s[0:1], 24
    s_load_dwordx2 s[22:23], s[0:1], 48
    s_load_dwordx2 s[24:25], s[0:1], 56
    s_waitcnt lgkmcnt(0)
    """)
    srd(A, 28, 24, 25, OUT_BYTES)
    stamp(A, 1)
    A(f"""
    s_barrier
    s_cmp_eq_u32 s36, 1
    s_cbranch_scc1 {name}_p3load
    """)
    OA_, WA_ = 4, 5
    ACC = 64
    FBUF = [16, 40]
    A(f"""
    v_and_b32 v6, 15, v1
    v_lshrrev_b32 v7, 4, v1
    s_lshr_b32 s44, s35, 1
    s_lshl_b32 s44, s44, 5
    v_add_u32 v8, s44, v6
    v_lshlrev_b32 v8, 4, v8
    v_lshlrev_b32 v9, 10, v7
    v_add3_u32 v{OA_}, v8, v9, {R3}
    """.replace("v_add3_u32 v4, v8, v9, 24576", "v_add_u32 v4, v8, v9\nv_add_u32 v4, 24576, v4"))
    A(f"""
    v_lshrrev_b32 v8, 2, v6
    v_lshlrev_b32 v9, 3, v7
    v_add_u32 v8, v8, v9
    v_mul_u32_u24 v8, 160, v8
    v_and_b32 v9, 3, v1
    v_lshlrev_b32 v9, 3, v9
    v_add_u32 v8, v8, v9
    s_and_b32 s45, s35, 1
    s_lshl_b32 s45, s45, 6
    s_add_u32 s45, s45, {R3 + 8192}
    v_add_u32 v{WA_}, s45, v8
    """)
    A(f"""
    s_lshr_b32 s44, s35, 1
    s_lshl_b32 s44, s44, 5
    v_add_u32 v10, s44, v6
    v_mul_u32_u24 v10, 160, v10
    v_lshlrev_b32 v11, 3, v7
    s_and_b32 s45, s35, 1
    s_lshl_b32 s45, s45, 6
    s_add_u32 s45, s45, {OUTB}
    v_add3_u32 v10, v10, v11, s45
    """)
    for i in range(24): A(f"v_mov_b32 v{ACC+i}, 0")
    def reads(kk):
        b = FBUF[kk]; L = []
        for st in range(2): L.append(f"ds_read_b128 {v(b+4*st,4)}, v{OA_} offset:{kk*4096+st*256}")
        for j in range(3):
            for jj in range(2): L.append(f"ds_read_b64_tr_b16 {v(b+8+4*j+2*jj,2)}, v{WA_} offset:{kk*5120+jj*640+j*32}")
        return L
    def mf(kk):
        b = FBUF[kk]; L = []
        for j in range(3):
            for st in range(2):
                D = v(ACC+4*(2*j+st),4)
                L.append(f"v_mfma_f32_16x16x32_bf16 {D}, {v(b+8+4*j,4)}, {v(b+4*st,4)}, {D}")
        return L
    def inter(M, R):
        R = list(R)
        for m in M:
            A(m)
            for _ in range(2):
                if R: A(R.pop(0))
        for r in R: A(r)
    A(f"""
    s_mov_b32 s46, 0
    s_mov_b32 s47, 0
    s_barrier
    """)
    stamp(A, 2)
    for l in reads(0): A(l)
    A(f"{name}_p3c:")
    A("s_waitcnt lgkmcnt(0)")
    inter(mf(0), reads(1))
    A(f"""
    s_add_u32 s47, s47, {ST3}
    s_cmp_eq_u32 s47, {NS3*ST3}
    s_mov_b32 s48, {ST3}
    s_cselect_b32 s48, {(-(NS3-1)*ST3) & 0xffffffff:#x}, s48
    s_cselect_b32 s47, 0, s47
    s_waitcnt lgkmcnt(0)
    v_add_u32 v{OA_}, s48, v{OA_}
    v_add_u32 v{WA_}, s48, v{WA_}
    s_barrier
    """)
    inter(mf(1), reads(0))
    A(f"""
    s_add_u32 s46, s46, 1
    s_cmp_eq_u32 s46, 10
    s_cbranch_scc1 {name}_p3epi
    s_cmp_eq_u32 s46, 20
    s_cbranch_scc0 {name}_p3c
    {name}_p3epi:
    """)
    stamp(A, 3)
    for j in range(3):
        for st in range(2):
            r0 = ACC+4*(2*j+st); t = 100 + 2*((2*j+st) % 4)
            A(f"v_cvt_pk_bf16_f32 v{t}, v{r0}, v{r0+1}")
            A(f"v_cvt_pk_bf16_f32 v{t+1}, v{r0+2}, v{r0+3}")
            A(f"ds_write_b64 v10, {v(t,2)} offset:{st*16*160+j*32}")
    A(f"""
    s_waitcnt lgkmcnt(0)
    s_barrier
    s_mul_i32 s50, s33, {64*2560}
    s_mul_i32 s51, s34, 160
    s_add_u32 s50, s50, s51
    s_cmp_eq_u32 s46, 20
    s_cselect_b32 s51, 1280, 0
    s_add_u32 s50, s50, s51
    """)
    for r in range(3):
        L = A.new("oe")
        if r == 2:
            A(f"s_cmp_ge_u32 s35, 2")
            A(f"s_cbranch_scc1 {L}")
        A(f"""
        s_lshl_b32 s51, s35, 6
        s_add_u32 s51, s51, {r*256}
        v_add_u32 v11, s51, v1
        v_lshlrev_b32 v12, 4, v11
        v_add_u32 v12, {OUTB}, v12
        ds_read_b128 {v(108+4*r,4)}, v12
        v_mul_u32_u24 v13, 6554, v11
        v_lshrrev_b32 v13, 16, v13
        v_mul_u32_u24 v14, 10, v13
        v_sub_u32 v14, v11, v14
        v_lshlrev_b32 v14, 4, v14
        v_mul_u32_u24 v13, 2560, v13
        v_add_u32 v{120+r}, v13, v14
        s_waitcnt lgkmcnt(0)
        buffer_store_dwordx4 {v(108+4*r,4)}, v{120+r}, s[28:31], s50 offen
        """)
        if r == 2: A(f"{L}:")
    A(f"""
    s_cmp_eq_u32 s46, 20
    s_cbranch_scc1 {name}_p3done
    """)
    for i in range(24): A(f"v_mov_b32 v{ACC+i}, 0")
    A(f"s_branch {name}_p3c")
    A(f"{name}_p3load:")
    for r in range(3):
        A(f"""
        s_lshl_b32 s44, s35, 6
        s_add_u32 s44, s44, {r*256}
        v_add_u32 v10, s44, v1
        v_mul_u32_u24 v11, 6554, v10
        v_lshrrev_b32 v11, 16, v11
        v_mul_u32_u24 v12, 10, v11
        v_sub_u32 v12, v10, v12
        v_lshlrev_b32 v12, 4, v12
        v_mul_u32_u24 v11, 1280, v11
        v_add_u32 v{4+r}, v11, v12
        """)
    srd(A, 12, 20, 21, WO_BYTES)
    A(f"""
    s_mul_i32 s44, s33, {ORB}
    s_add_u32 s44, s44, {OOFF}
    s_lshl_b32 s45, s35, 10
    s_add_u32 s44, s44, s45
    s_mul_i32 s46, s34, 160
    s_mov_b32 s47, {R3}
    s_mov_b32 s48, 0
    v_lshlrev_b32 v7, 2, v1
    s_lshl_b32 s50, s33, 8
    s_add_u32 s50, s50, {FO}
    """)
    poll_ws(A, 7, 50, 16, 64, width=1)
    def issue(tag):
        A(f"""
        s_cmp_eq_u32 s48, 10
        s_cbranch_scc0 {name}_p3i_{tag}
        s_lshl_b32 s50, s33, 8
        s_add_u32 s50, s50, {FO + 8192}
        """)
        poll_ws(A, 7, 50, 16, 64, width=1)
        srd(A, 12, 22, 23, WO_BYTES)
        A(f"""
        s_add_u32 s44, s44, {BR - 10*8192}
        s_mul_i32 s46, s34, 160
        {name}_p3i_{tag}:
        s_lshl_b32 s51, s35, 10
        s_add_u32 s51, s51, s47
        s_mov_b32 m0, s51
        s_add_u32 s52, s44, 4096
        buffer_load_dwordx4 v2, s[8:11], s44 offen sc1 lds
        s_add_u32 m0, s51, 4096
        s_nop 0
        buffer_load_dwordx4 v2, s[8:11], s52 offen sc1 lds
        s_add_u32 m0, s51, 8192
        s_nop 0
        buffer_load_dwordx4 v4, s[12:15], s46 offen lds
        s_add_u32 m0, s51, {8192 + 4096}
        s_nop 0
        buffer_load_dwordx4 v5, s[12:15], s46 offen lds
        s_cmp_ge_u32 s35, 2
        s_cbranch_scc1 {name}_p3j_{tag}
        s_add_u32 m0, s51, {8192 + 8192}
        s_nop 0
        buffer_load_dwordx4 v6, s[12:15], s46 offen lds
        {name}_p3j_{tag}:
        s_add_u32 s44, s44, 8192
        s_add_u32 s46, s46, {64*1280}
        s_add_u32 s47, s47, {ST3}
        s_cmp_eq_u32 s47, {R3 + NS3*ST3}
        s_cselect_b32 s47, {R3}, s47
        s_add_u32 s48, s48, 1
        """)
    A(f"s_mov_b32 s49, 0")
    A(f"{name}_p3pro:")
    issue("a")
    A(f"""
    s_cmp_lt_u32 s48, {NS3-1}
    s_cbranch_scc1 {name}_p3pro
    {name}_p3l:
    s_cmp_ge_u32 s49, 14
    s_cbranch_scc1 {name}_p3l0
    s_waitcnt vmcnt({4*(NS3-2)})
    s_branch {name}_p3l1
    {name}_p3l0:
    s_waitcnt vmcnt(0)
    {name}_p3l1:
    s_barrier
    s_cmp_ge_u32 s48, 20
    s_cbranch_scc1 {name}_p3ni
    """)
    issue("b")
    A(f"""
    {name}_p3ni:
    s_add_u32 s49, s49, 1
    s_cmp_eq_u32 s49, 11
    s_cbranch_scc0 {name}_p3nx
    s_barrier
    {name}_p3nx:
    s_cmp_lt_u32 s49, 21
    s_cbranch_scc1 {name}_p3l
    s_barrier
    {name}_p3done:
    """)
    stamp(A, 9); stamp(A, 11, real=True)
    stamp_flush(A, 12, 0, 32, base=70)
    A("s_endpgm")
```

```python
BR    = 0x1000000
QKOFF = 0x000000
QKG   = 32768
VOFF  = 0x500000
VH, VC = 81920, 5120
OOFF  = 0x800000
ORB   = 81920
KVP   = 0xB00000
WPH   = 0xD00000
SEL   = 0xD10000
FO    = 0xD20000
WS_BYTES = 2 * BR
X_BYTES = 2048 * 640 * 2
W_BYTES = 640 * 1920 * 2
WO_BYTES = 640 * 640 * 2
OUT_BYTES = 2048 * 1280 * 2
FB, FA, FPREP, FKV = 0, 16, 31, 32
PART = 11264
SLOT = 2 * PART
FBW = 0xD24000
FAW = 0xD25000
FKVW = 0xD26000
FZERO_LO, FZERO_BYTES = 0xD20000, 0x8000
WOP = 0xE00000
FXS = 0xD24800
```

```python
import sys
from asmlib import *
import hazard, fused
NAME = "concat_heads__linear_kernel_hedgehog__mha_block__prompt"
HDR = """; Kernarg layout (80 bytes, ptrs only): 0 A_x, 8 A_wqkv, 16 A_w_phi, 24 A_wo, 32 B_x, 40 B_wqkv, 48 B_wo, 56 d_out, 64 d_debug, 72 d_ws
"""
A = Asm()
nm = NAME + "_kernel"
d = fused.gen_fused(A, nm)
lines, n = hazard.fix(A.L, verbose='-v' in sys.argv)
print(f"{nm}: {len(lines)} lines, {n} nop states inserted")
txt = HDR + f"; @launch grid=(256,1,1) block=(512,1,1) lds={fused.LDS}\n" + '.amdgcn_target "amdgcn-amd-amdhsa--gfx950"\n' + "\n".join(lines) + "\n" + d
open(sys.argv[1], "w").write(txt)
```

```python
import os
from asmlib import *
from layout2 import *

LDS = 163840
SPIN_MAX = 50000
R1 = 32768; ST1 = 32768; NS1 = 4
LOG2E = 0x3fb8aa3b
QSCALE = 0x3ea52b5c
LSTAMP = os.environ.get('LSTAMP', '0') == '1'
STOP_AFTER = os.environ.get("STOP_AFTER", "")

def poll_dbg(A, lane_off_v, tmp_v, mask_lo, target, sleep=4):
    L = A.new("poll")
    A(f"""
    s_mov_b32 s59, 0
    {L}:
    global_load_dword v{tmp_v}, v{lane_off_v}, s[4:5] sc1
    s_waitcnt vmcnt(0)
    v_cmp_le_u32 vcc, {target}, v{tmp_v}
    s_and_b32 s58, vcc_lo, {mask_lo:#x}
    s_cmp_eq_u32 s58, {mask_lo:#x}
    s_cbranch_scc1 {L}_ok
    s_sleep {sleep}
    s_add_u32 s59, s59, 1
    s_cmp_lt_u32 s59, {SPIN_MAX}
    s_cbranch_scc1 {L}
    {L}_ok:
    """)

def poll_ws(A, voff, soff, T, nlanes, width=4, target=1, sleep=8):
    L = A.new("pw")
    mask = (1 << nlanes) - 1
    ld = {4: "buffer_load_dwordx4 " + v(T,4), 1: f"buffer_load_dword v{T}"}[width]
    def check():
        A("s_waitcnt vmcnt(0)")
        if width == 4:
            A(f"v_and_b32 v{T}, v{T}, v{T+1}")
            A(f"v_and_b32 v{T+2}, v{T+2}, v{T+3}")
            A(f"v_and_b32 v{T}, v{T}, v{T+2}")
        A(f"v_cmp_eq_u32 vcc, {target}, v{T}")
        if nlanes >= 64:
            A(f"s_cmp_eq_u64 vcc, -1")
        else:
            A(f"s_and_b32 s58, vcc_hi, {(mask >> 32):#x}") if nlanes > 32 else None
            if nlanes > 32:
                A(f"s_cmp_eq_u32 s58, {(mask >> 32):#x}")
                A(f"s_cselect_b32 s58, vcc_lo, 0")
                A(f"s_cmp_eq_u32 s58, -1")
            else:
                A(f"s_and_b32 s58, vcc_lo, {mask:#x}")
                A(f"s_cmp_eq_u32 s58, {mask:#x}")
    A(f"{ld}, v{voff}, s[8:11], s{soff} offen")
    check()
    A(f"s_cbranch_scc1 {L}_ok")
    A(f"s_mov_b32 s59, 0")
    A(f"{L}:")
    A(f"s_sleep {sleep}")
    A(f"{ld}, v{voff}, s[8:11], s{soff} offen sc1")
    check()
    A(f"""
    s_cbranch_scc1 {L}_ok
    s_add_u32 s59, s59, 1
    s_cmp_lt_u32 s59, {SPIN_MAX}
    s_cbranch_scc1 {L}
    {L}_ok:
    """)

def set_flag_ws(A, soff, tv0, tv1):
    A(f"""
    v_mov_b32 v{tv0}, 0
    v_mov_b32 v{tv1}, 1
    s_mov_b64 exec, 1
    buffer_store_dword v{tv1}, v{tv0}, s[8:11], s{soff} offen sc1
    s_mov_b64 exec, -1
    """)

def check_prep(A, tv0, tv1):
    L = A.new("cp")
    A(f"""
    v_mov_b32 v{tv0}, {FPREP*4}
    global_load_dword v{tv1}, v{tv0}, s[4:5]
    s_mov_b32 s59, 0
    {L}:
    s_waitcnt vmcnt(0)
    v_readfirstlane_b32 s58, v{tv1}
    s_cmp_ge_u32 s58, 16
    s_cbranch_scc1 {L}_ok
    s_sleep 16
    global_load_dword v{tv1}, v{tv0}, s[4:5] sc1
    s_add_u32 s59, s59, 1
    s_cmp_lt_u32 s59, {SPIN_MAX}
    s_cbranch_scc1 {L}
    {L}_ok:
    """)

def tile_flags_voff(A, vd):
    A(f"""
    v_lshrrev_b32 v{vd}, 2, v1
    v_lshlrev_b32 v{vd}, 7, v{vd}
    v_and_b32 v{vd+1}, 3, v1
    v_lshlrev_b32 v{vd+1}, 4, v{vd+1}
    v_add_u32 v{vd}, v{vd}, v{vd+1}
    """)

def signal_dbg(A, idx_s, tv0, tv1):
    A(f"""
    s_lshl_b32 s58, s{idx_s}, 2
    v_mov_b32 v{tv0}, s58
    v_mov_b32 v{tv1}, 1
    s_mov_b64 exec, 1
    global_atomic_add v{tv0}, v{tv1}, s[4:5] sc1
    s_mov_b64 exec, -1
    """)

def gen_common(A, name):
    A(f"""
    s_cmp_ge_u32 s2, 256
    s_cbranch_scc1 {name}_done
    s_load_dwordx4 s[20:23], s[0:1], 0
    s_load_dwordx4 s[24:27], s[0:1], 32
    s_load_dwordx4 s[4:7], s[0:1], 64
    s_load_dwordx2 s[28:29], s[0:1], 16
    v_and_b32 v1, 63, v0
    v_lshrrev_b32 v2, 6, v0
    v_and_b32 v3, 31, v1
    v_readfirstlane_b32 s32, v2
    v_lshrrev_b32 v131, 5, v1
    v_lshlrev_b32 v2, 4, v1
    v_lshlrev_b32 v132, 3, v3
    s_and_b32 s39, s2, 7
    s_lshr_b32 s64, s2, 3
    s_lshl_b32 s33, s39, 2
    s_lshr_b32 s45, s64, 3
    s_add_u32 s33, s33, s45
    s_and_b32 s34, s64, 7
    s_and_b32 s35, s32, 3
    s_lshr_b32 s36, s32, 2
    s_lshr_b32 s65, s39, 1
    s_lshl_b32 s37, s65, 2
    s_and_b32 s30, s39, 1
    s_cmp_eq_u32 s30, 0
    s_cbranch_scc0 {name}_map1
    s_lshr_b32 s46, s64, 3
    s_add_u32 s37, s37, s46
    s_and_b32 s38, s64, 7
    s_mov_b32 s31, 0
    s_branch {name}_map2
    {name}_map1:
    s_mul_i32 s46, s64, 37
    s_lshr_b32 s46, s46, 8
    s_add_u32 s37, s37, s46
    s_mul_i32 s46, s46, 7
    s_sub_u32 s38, s64, s46
    s_add_u32 s38, s38, 8
    s_cmp_ge_u32 s64, 28
    s_cselect_b32 s31, 1, 0
    {name}_map2:
    s_mov_b32 s40, {LOG2E:#x}
    s_mov_b32 s41, {LOG2E | 0x80000000:#x}
    s_mov_b32 s42, 0x000fffff
    s_mov_b32 s43, 0x000fffff
    s_and_b32 s45, s33, 1
    s_mul_i32 s66, s33, 5
    s_add_u32 s66, s66, s45
    s_lshr_b32 s66, s66, 1
    s_add_u32 s67, s66, 2
    s_cmp_eq_u32 s45, 1
    s_cselect_b32 s46, 3, 0
    s_sub_u32 s67, s67, s46
    s_lshl_b32 s68, s45, 3
    s_mul_i32 s53, s33, {VH}
    s_add_u32 s53, s53, {BR + VOFF}
    s_waitcnt lgkmcnt(0)
    """)
    srd(A, 8, 6, 7, WS_BYTES)

def p2_stage_dma(A, st, dyn=None):
    L = A.new("sd")
    if dyn is None:
        A(f"""
        s_lshr_b32 s56, s35, 1
        s_mul_i32 s57, s56, {PART}
        s_add_u32 s57, s57, {(st % 4) * SLOT}
        s_lshl_b32 s56, s56, 3
        s_add_u32 s56, s56, {st}
        """)
    else:
        A(f"""
        s_lshr_b32 s56, s35, 1
        s_mul_i32 s57, s56, {PART}
        s_add_u32 s57, s57, s{dyn[0]}
        s_lshl_b32 s56, s56, 3
        s_add_u32 s56, s56, s{dyn[1]}
        """)
    A(f"""
    s_bitcmp1_b32 s35, 0
    s_cbranch_scc1 {L}_v
    s_lshl_b32 s56, s56, 11
    s_add_u32 s58, s66, 80
    s_lshl_b32 s58, s58, 15
    s_add_u32 s58, s58, s56
    s_add_u32 s58, s58, {BR + QKOFF}
    s_add_u32 s59, s67, 80
    s_lshl_b32 s59, s59, 15
    s_add_u32 s59, s59, s56
    s_add_u32 s59, s59, {BR + QKOFF}
    """)
    for e, (src, off) in enumerate(((58, 0), (58, 1024), (58, QKG), (58, QKG + 1024), (59, 0), (59, 1024))):
        A(f"s_add_u32 m0, s57, {e*1024}")
        A(f"s_add_u32 s56, s{src}, {off}")
        A(f"buffer_load_dwordx4 v2, s[8:11], s56 offen sc1 lds")
    A(f"""
    s_branch {L}_e
    {L}_v:
    s_mul_i32 s56, s56, {VC}
    s_add_u32 s56, s56, s53
    """)
    for e in range(5):
        A(f"s_add_u32 m0, s57, {6144 + e*1024}")
        A(f"s_add_u32 s58, s56, {e*1024}")
        A(f"buffer_load_dwordx4 v2, s[8:11], s58 offen sc1 lds")
    A(f"{L}_e:")

QA_M, QB_M, QA_R, QB_R = 4, 8, 12, 14
def frag_addr(A, vm, vr):
    A(f"""
    v_lshlrev_b32 v{vm}, 15, v131
    v_lshlrev_b32 v{vr}, 4, v3
    v_add_u32 v{vm}, v{vm}, v{vr}
    v_add_u32 v{vr}, s68, v{vr}
    """)
def p2_q_loads(A, tm=133, tr=134):
    frag_addr(A, tm, tr)
    A(f"""
    s_lshl_b32 s56, s34, 8
    s_lshl_b32 s57, s35, 6
    s_add_u32 s56, s56, s57
    s_lshl_b32 s56, s56, 4
    s_add_u32 s56, s56, {BR + QKOFF}
    s_lshl_b32 s57, s66, 15
    s_add_u32 s57, s57, s56
    buffer_load_dwordx4 {v(QA_M,4)}, v{tm}, s[8:11], s57 offen sc1
    buffer_load_dwordx4 {v(QB_M,4)}, v{tm}, s[8:11], s57 offen offset:512 sc1
    v_mov_b32 v{QA_R}, 0
    v_mov_b32 v{QA_R+1}, 0
    v_mov_b32 v{QA_R+2}, 0
    v_mov_b32 v{QA_R+3}, 0
    s_lshl_b32 s57, s67, 15
    s_add_u32 s57, s57, s56
    s_mov_b32 exec_hi, 0
    buffer_load_dwordx2 {v(QA_R,2)}, v{tr}, s[8:11], s57 offen sc1
    buffer_load_dwordx2 {v(QB_R,2)}, v{tr}, s[8:11], s57 offen offset:512 sc1
    s_mov_b64 exec, -1
    """)

XV, WV = 192, 196
XA, WA = 192, 196
EA = 200
ACC = 64
def p1_loader(A, name):
    A.c("P1 loader")
    A(f"""
    v_lshrrev_b32 v7, 3, v1
    s_lshl_b32 s44, s35, 5
    v_add_u32 v7, s44, v7
    v_mul_u32_u24 v7, 1280, v7
    v_lshrrev_b32 v8, 4, v1
    v_and_b32 v9, 7, v1
    """)
    for i in range(4):
        A(f"""
        v_add_u32 v10, {4*i}, v8
        v_and_b32 v10, 7, v10
        v_xor_b32 v10, v10, v9
        v_lshlrev_b32 v10, 4, v10
        v_add_u32 v10, v10, v7
        v_add_u32 v{XV+i}, {8*i*1280}, v10
        """)
    A(f"""
    s_lshl_b32 s44, s35, 4
    v_add_u32 v7, s44, v8
    v_mul_u32_u24 v7, 3840, v7
    v_lshrrev_b32 v9, 2, v1
    v_xor_b32 v9, v9, v8
    v_and_b32 v9, 3, v9
    v_lshlrev_b32 v9, 6, v9
    v_and_b32 v10, 3, v1
    v_lshlrev_b32 v10, 4, v10
    v_add3_u32 v{WV}, v7, v9, v10
    s_lshl_b32 s44, s35, 12
    s_add_u32 s45, s44, 16384
    s_mul_i32 s46, s37, {128*1280}
    s_lshl_b32 s47, s38, 8
    s_mov_b32 s48, {R1}
    s_mov_b32 s49, 0
    """)
    srd(A, 12, 24, 25, X_BYTES)
    srd(A, 16, 26, 27, W_BYTES)
    def issue(tag):
        for i in range(4):
            A(f"s_add_u32 s50, s48, s44")
            A(f"s_add_u32 m0, s50, {i*1024}")
            A(f"s_add_u32 s51, s47, {i*4*3840}")
            A(f"buffer_load_dwordx4 v{XV+i}, s[12:15], s46 offen lds")
            A(f"s_add_u32 s50, s48, s45")
            A(f"s_add_u32 m0, s50, {i*1024}")
            A(f"s_nop 0")
            A(f"buffer_load_dwordx4 v{WV}, s[16:19], s51 offen lds")
        A(f"""
        s_add_u32 s46, s46, 128
        s_add_u32 s47, s47, {64*3840}
        s_add_u32 s48, s48, {ST1}
        s_cmp_eq_u32 s48, {R1+NS1*ST1}
        s_cselect_b32 s48, {R1}, s48
        s_add_u32 s49, s49, 1
        s_cmp_eq_u32 s49, 10
        s_cbranch_scc0 {name}_ld_{tag}
        """)
        srd(A, 12, 20, 21, X_BYTES)
        srd(A, 16, 22, 23, W_BYTES)
        A(f"""
        s_mul_i32 s46, s37, {128*1280}
        s_lshl_b32 s47, s38, 8
        {name}_ld_{tag}:
        """)
    issue("p0"); issue("p1"); issue("p2")
    stamp(A, 1)
    if STAMPS: A("s_mov_b32 s74, 0\ns_mov_b32 s75, 0\ns_mov_b32 s76, 0\ns_mov_b32 s77, 0\ns_mov_b32 s80, 0\ns_mov_b32 s81, 0")
    A(f"""
    s_mov_b32 s52, 0
    {name}_lloop:
    """)
    if STAMPS and LSTAMP:
        A("""
        s_memtime s[86:87]
        s_waitcnt lgkmcnt(0)
        s_waitcnt vmcnt(16)
        s_memtime s[88:89]
        s_waitcnt lgkmcnt(0)
        s_sub_u32 s90, s88, s86
        s_add_u32 s74, s74, s90
        s_barrier
        s_memtime s[86:87]
        s_waitcnt lgkmcnt(0)
        s_sub_u32 s90, s86, s88
        s_add_u32 s76, s76, s90
        """)
    else:
        A("s_waitcnt vmcnt(16)")
        A("s_barrier")
    issue("lp")
    if STAMPS and LSTAMP:
        A("""
        s_memtime s[88:89]
        s_waitcnt lgkmcnt(0)
        s_sub_u32 s90, s88, s86
        s_add_u32 s80, s80, s90
        """)
    A(f"""
    s_add_u32 s52, s52, 1
    s_cmp_lt_u32 s52, 17
    s_cbranch_scc1 {name}_lloop
    s_waitcnt vmcnt(16)
    s_barrier
    s_cmp_eq_u32 s32, 4
    s_cbranch_scc0 {name}_lnp
    s_mov_b32 s50, {FBW}
    """)
    stamp(A, 7)
    tile_flags_voff(A, 7)
    poll_ws(A, 7, 50, 16, 60)
    stamp(A, 8)
    A(f"""
    {name}_lnp:
    s_waitcnt vmcnt(8)
    s_barrier
    """)
    p2_stage_dma(A, 0)
    p2_q_loads(A)
    A(f"""
    s_waitcnt vmcnt(9)
    s_barrier
    s_waitcnt vmcnt(0)
    s_barrier
    """)

PF_MODE = os.environ.get('PF_MODE', 'plain')
def prefetch_share(A, xl, xh, wl, wh, nw, widx):
    if PF_MODE == 'off': return
    srd(A, 12, xl, xh, X_BYTES)
    srd(A, 16, wl, wh, W_BYTES)
    A(f"""
    s_mul_i32 s50, s2, 10240
    s_mul_i32 s51, s2, 9600
    s_lshl_b32 s52, s{widx}, 10
    s_add_u32 s50, s50, s52
    s_add_u32 s51, s51, s52
    """)
    for r in range(-(-10 // nw)):
        L = A.new("pf")
        lim = 10 - r * nw
        if lim < nw:
            A(f"s_cmp_ge_u32 s{widx}, {lim}")
            A(f"s_cbranch_scc1 {L}")
        A(f"s_add_u32 s52, s50, {r*nw*1024}")
        A(f"buffer_load_dwordx4 v[216:219], v2, s[12:15], s52 offen")
        A(f"s_add_u32 s52, s51, {r*nw*1024}")
        A(f"buffer_load_dwordx4 v[220:223], v2, s[16:19], s52 offen")
        if lim < nw: A(f"{L}:")

L2PF = int(os.environ.get('L2PF', '5'))
def l2pf_setup(A):
    L = A.new("l2")
    A(f"""
    s_mov_b32 s69, 0
    s_cmp_lg_u32 s32, 1
    s_cbranch_scc1 {L}_e
    s_cmp_ge_u32 s64, 24
    s_cbranch_scc1 {L}_e
    s_mov_b32 s69, 1
    s_cmp_ge_u32 s64, 8
    s_cbranch_scc1 {L}_w
    s_lshl_b32 s44, s65, 9
    s_lshl_b32 s45, s64, 6
    s_add_u32 s44, s44, s45
    v_add_u32 v5, s44, v1
    v_mul_u32_u24 v5, 1280, v5
    s_mov_b32 s55, 128
    """)
    srd(A, 96, 24, 25, X_BYTES)
    A(f"""
    s_branch {L}_go
    {L}_w:
    s_sub_u32 s44, s64, 8
    s_lshl_b32 s44, s44, 2
    v_lshrrev_b32 v5, 4, v1
    v_add_u32 v5, s44, v5
    v_mul_u32_u24 v5, 3840, v5
    v_and_b32 v6, 15, v1
    v_lshlrev_b32 v6, 7, v6
    s_lshl_b32 s44, s30, 11
    v_add3_u32 v5, v5, v6, s44
    s_mov_b32 s55, {64*3840}
    """)
    srd(A, 96, 26, 27, W_BYTES)
    A(f"""
    {L}_go:
    s_mul_i32 s54, s55, 4
    s_mov_b32 s57, 4
    {L}_e:
    """)
def l2pf_one(A):
    if not L2PF: return
    L = A.new("l2o")
    A(f"""
    s_cmp_eq_u32 s69, 1
    s_cbranch_scc0 {L}_e
    s_cmp_ge_u32 s57, 20
    s_cbranch_scc1 {L}_e
    s_cmp_eq_u32 s57, 10
    s_cbranch_scc0 {L}_n
    s_mov_b32 s54, 0
    s_cmp_ge_u32 s64, 8
    s_cbranch_scc1 {L}_w
    """)
    srd(A, 96, 20, 21, X_BYTES)
    A(f"s_branch {L}_n")
    A(f"{L}_w:")
    srd(A, 96, 22, 23, W_BYTES)
    A(f"""
    {L}_n:
    buffer_load_dword v224, v5, s[96:99], s54 offen
    s_add_u32 s54, s54, s55
    s_add_u32 s57, s57, 1
    {L}_e:
    """)

def p1_compute(A, name, orient):
    tag = f"{name}_c{orient}"
    FB_ = [16, 32, 48, 144]
    XA2, WA2 = 202, 206
    def reads(q, kk):
        b = FB_[kk]
        xa = (XA if q < 2 else XA2) + kk; wa = WA if q < 2 else WA2
        so = (q & 1) * ST1
        L = []
        L.append(f"ds_read_b128 {v(b,4)}, v{xa} offset:{so}")
        for jj in range(2): L.append(f"ds_read_b64_tr_b16 {v(b+8+2*jj,2)}, v{wa} offset:{so+kk*4096+jj*1024}")
        L.append(f"ds_read_b128 {v(b+4,4)}, v{xa} offset:{so+4096}")
        for jj in range(2): L.append(f"ds_read_b64_tr_b16 {v(b+12+2*jj,2)}, v{wa+1} offset:{so+kk*4096+jj*1024}")
        return L
    def mf(kk):
        b = FB_[kk]
        L = []
        for nt in range(2):
            for st in range(2):
                X = v(b+4*st,4); W = v(b+8+4*nt,4)
                if orient == "T":
                    D = v(ACC+16*(2*nt+st),16); L.append(f"v_mfma_f32_32x32x16_bf16 {D}, {W}, {X}, {D}")
                else:
                    D = v(ACC+16*(2*st+nt),16); L.append(f"v_mfma_f32_32x32x16_bf16 {D}, {X}, {W}, {D}")
        return L
    def step(M, R):
        R = list(R)
        per = -(-len(R) // 3) if R else 0
        for m in M:
            A(m)
            for _ in range(per):
                if R: A(R.pop(0))
    if orient == "T":
        A(f"""
        s_lshl_b32 s44, s38, 4
        s_and_b32 s45, s35, 1
        s_lshl_b32 s45, s45, 3
        s_add_u32 s44, s44, s45
        v_add_u32 v15, s44, v131
        v_lshlrev_b32 v15, 15, v15
        s_lshl_b32 s44, s37, 7
        s_lshr_b32 s45, s35, 1
        s_lshl_b32 s45, s45, 6
        s_add_u32 s44, s44, s45
        v_add_u32 v16, s44, v3
        v_lshlrev_b32 v16, 4, v16
        v_add_u32 v{EA}, v15, v16
        s_mov_b32 s60, {QKOFF}
        s_mov_b32 s61, 1.0
        s_cmp_lt_u32 s38, 5
        s_cselect_b32 s61, {QSCALE:#x}, s61
        """)
    else:
        A(f"""
        s_sub_u32 s44, s38, 10
        s_lshl_b32 s44, s44, 7
        s_and_b32 s45, s35, 1
        s_lshl_b32 s45, s45, 6
        s_add_u32 s44, s44, s45
        s_mul_i32 s60, s37, {VC}
        s_add_u32 s60, s60, {VOFF}
        s_lshr_b32 s45, s35, 1
        s_mul_i32 s45, s45, {4*640}
        s_add_u32 s60, s60, s45
        v_mul_u32_u24 v15, 320, v131
        s_mov_b32 s45, {VH}
        """)
        for nt in range(2):
            A(f"""
            v_add_u32 v18, s44, v3
            v_add_u32 v18, {32*nt}, v18
            v_mul_u32_u24 v19, 3277, v18
            v_lshrrev_b32 v19, 16, v19
            v_mul_u32_u24 v20, 20, v19
            v_sub_u32 v20, v18, v20
            v_lshlrev_b32 v20, 4, v20
            v_mul_lo_u32 v19, v19, s45
            v_add3_u32 v{EA+nt}, v19, v20, v15
            """)
    for i in range(64): A(f"v_mov_b32 v{ACC+i}, 0")
    for kk in range(4): A(f"v_add_u32 v{XA2+kk}, {2*ST1}, v{XA+kk}")
    for nt in range(2): A(f"v_add_u32 v{WA2+nt}, {2*ST1}, v{WA+nt}")
    stamp(A, 1)
    A(f"""
    s_mov_b32 s62, {BR}
    s_mov_b32 s63, 0
    s_mov_b32 s46, 0
    s_barrier
    """)
    stamp(A, 2)
    for l in reads(0, 0) + reads(0, 1): A(l)
    A(f"{tag}_loop:")
    for q in range(4):
        A("s_waitcnt lgkmcnt(6)")
        step(mf(0), reads(q, 2) + reads(q, 3))
        A("s_waitcnt lgkmcnt(12)")
        M = mf(1)
        A(M[0]); A(M[1])
        if q == 0:
            A(f"s_cmp_eq_u32 s46, 3")
            A(f"s_cbranch_scc1 {tag}_hk_vm")
            A(f"{tag}_rt_vm:")
        A(M[2]); A(M[3])
        A("s_waitcnt lgkmcnt(0)")
        A("s_barrier")
        step(mf(2), reads((q+1) % 4, 0) + reads((q+1) % 4, 1))
        M = mf(3)
        A(M[0])
        if q == 0:
            A(f"s_cmp_eq_u32 s46, 0")
            A(f"s_cbranch_scc1 {tag}_hk_pf")
            A(f"{tag}_rt_pf:")
            A(M[1])
            A(f"s_cmp_eq_u32 s46, 3")
            A(f"s_cbranch_scc1 {tag}_hk_sig")
            A(f"{tag}_rt_sig:")
            A(M[2]); A(M[3])
        elif q == 2:
            A(M[1])
            A(f"s_cmp_eq_u32 s46, 4")
            A(f"s_cbranch_scc1 {tag}_hk_q")
            A(f"{tag}_rt_q:")
            A(M[2]); A(M[3])
        elif q == 1:
            A(M[1]); A(M[2]); A(M[3])
            A(f"s_cmp_eq_u32 s46, 2")
            A(f"s_cbranch_scc1 {tag}_epi")
            A(f"{tag}_rt_epi:")
        else:
            A(M[1])
            A(f"s_add_u32 s46, s46, 1")
            A(f"s_cmp_lt_u32 s46, 5")
            A(M[2]); A(M[3])
            A(f"s_cbranch_scc1 {tag}_loop")
    stamp(A, 3)
    A("s_waitcnt vmcnt(0)")
    A(f"s_branch {tag}_epi2")
    A(f"{tag}_hk_vm:")
    A("s_waitcnt vmcnt(0)")
    A(f"s_branch {tag}_rt_vm")
    A(f"{tag}_hk_pf:")
    prefetch_share(A, 20, 21, 22, 23, 4, 35)
    A(f"s_branch {tag}_rt_pf")
    A(f"{tag}_hk_sig:")
    A(f"s_cmp_eq_u32 s32, 0")
    A(f"s_cbranch_scc0 {tag}_rt_sig")
    stamp(A, 7)
    check_prep(A, 226, 227)
    A(f"""
    s_lshl_b32 s50, s38, 7
    s_lshl_b32 s51, s37, 2
    s_add_u32 s50, s50, s51
    s_add_u32 s50, s50, {FBW}
    """)
    set_flag_ws(A, 50, 226, 227)
    A(f"s_branch {tag}_rt_sig")
    A(f"{tag}_hk_q:")
    p2_q_loads(A)
    A(f"s_branch {tag}_rt_q")
    A(f"{tag}_epi:")
    stamp(A, 5)
    A(f"{tag}_epi2:")
    T = 160
    if orient == "T":
        A(f"s_add_u32 s50, s60, s62")
        A(f"s_cmp_eq_u32 s63, 0")
        A(f"s_cselect_b32 s51, s61, 1.0")
        n = 0
        for nt in range(2):
            for st in range(2):
                r0 = ACC+16*(2*nt+st)
                for ip in range(2):
                    t = T + 4*(n % 4); n += 1
                    for e in range(8): A(f"v_mul_f32 v{r0+8*ip+e}, s51, v{r0+8*ip+e}")
                    for e in range(4): A(f"v_cvt_pk_bf16_f32 v{t+e}, v{r0+8*ip+2*e}, v{r0+8*ip+2*e+1}")
                    A(f"v_permlane32_swap_b32 v{t}, v{t+2}")
                    A(f"v_permlane32_swap_b32 v{t+1}, v{t+3}")
                    A(f"s_add_u32 s52, s50, {(4*nt+2*ip)*QKG + st*512}")
                    A(f"buffer_store_dwordx4 {v(t,4)}, v{EA}, s[8:11], s52 offen sc1")
    else:
        A(f"s_add_u32 s50, s60, s62")
        for nt in range(2):
            for st in range(2):
                for m in range(2):
                    r0 = ACC+16*(2*st+nt)+8*m
                    t = T + 4*((2*st+m) % 4)
                    for e in range(4): A(f"v_cvt_pk_bf16_f32 v{t+e}, v{r0+2*e}, v{r0+2*e+1}")
                    A(f"buffer_store_dwordx4 {v(t,4)}, v{EA+nt}, s[8:11], s50 offen offset:{(2*st+m)*640} sc1")
    A(f"""
    s_cmp_eq_u32 s63, 1
    s_cbranch_scc1 {name}_p2entry
    """)
    stamp(A, 6)
    for i in range(64): A(f"v_mov_b32 v{ACC+i}, 0")
    A(f"""
    s_mov_b32 s63, 1
    s_mov_b32 s62, 0
    s_branch {tag}_rt_epi
    """)

def p1_compute_setup(A):
    A(f"""
    s_lshr_b32 s44, s35, 1
    s_lshl_b32 s44, s44, 6
    v_add_u32 v7, s44, v3
    v_lshlrev_b32 v7, 7, v7
    v_add_u32 v7, {R1}, v7
    v_lshrrev_b32 v16, 1, v3
    v_and_b32 v16, 7, v16
    v_xor_b32 v16, v16, v131
    """)
    for kk in range(4):
        A(f"""
        v_xor_b32 v17, {2*kk}, v16
        v_lshlrev_b32 v17, 4, v17
        v_add_u32 v{XA+kk}, v7, v17
        """)
    A(f"""
    v_lshrrev_b32 v16, 2, v1
    v_and_b32 v16, 3, v16
    v_lshlrev_b32 v17, 11, v131
    v_lshlrev_b32 v18, 8, v16
    v_add_u32 v17, v17, v18
    v_lshrrev_b32 v18, 4, v1
    v_and_b32 v18, 1, v18
    v_lshlrev_b32 v18, 5, v18
    v_add_u32 v17, v17, v18
    v_and_b32 v18, 3, v1
    v_lshlrev_b32 v18, 3, v18
    v_add_u32 v17, v17, v18
    v_add_u32 v17, {R1+16384}, v17
    s_and_b32 s44, s35, 1
    s_lshl_b32 s44, s44, 1
    """)
    for nt in range(2):
        A(f"""
        s_add_u32 s45, s44, {nt}
        v_xor_b32 v18, s45, v16
        v_lshlrev_b32 v18, 6, v18
        v_add_u32 v{WA+nt}, v17, v18
        """)

def p1_prep(A, name):
    A.c("prep WGs")
    A(f"""
    s_lshl_b32 s69, s65, 2
    s_add_u32 s69, s69, s64
    s_sub_u32 s69, s69, 28
    s_cmp_ge_u32 s32, 3
    s_cbranch_scc1 {name}_prep_done
    """)
    srd(A, 12, 28, 29, 32*20*20*2)
    A(f"""
    s_cmp_eq_u32 s32, 2
    s_cbranch_scc1 {name}_sel
    s_lshl_b32 s44, s69, 1
    s_add_u32 s44, s44, s32
    v_subrev_u32 v4, 2, v3
    v_cmp_gt_u32 vcc, 18, v3
    v_cndmask_b32 v4, v4, v3, vcc
    v_and_b32 v5, 30, v3
    v_cmp_eq_u32 s[46:47], 20, v5
    s_or_b64 s[46:47], s[46:47], vcc
    v_lshlrev_b32 v4, 1, v4
    s_mul_i32 s45, s44, 800
    v_add_u32 v4, s45, v4
    s_and_b32 s45, s44, 1
    s_mul_i32 s48, s45, {4*40}
    v_mul_u32_u24 v5, {8*40}, v131
    v_add3_u32 v5, v4, v5, s48
    v_mov_b32 v6, 0x7fffffff
    v_cndmask_b32 v5, v6, v5, s[46:47]
    v_cmp_eq_u32 vcc, 0, v131
    s_and_b64 s[46:47], s[46:47], vcc
    s_cmp_eq_u32 s45, 1
    s_cselect_b32 s48, 0, {16*40}
    v_add_u32 v4, s48, v4
    v_cndmask_b32 v4, v6, v4, s[46:47]
    """)
    for j in range(8): A(f"buffer_load_ushort v{16+j}, v5, s[12:15], 0 offen offset:{40*j}")
    for j in range(4): A(f"buffer_load_ushort v{24+j}, v4, s[12:15], 0 offen offset:{40*j}")
    A("s_waitcnt vmcnt(0)")
    for j in range(6): A(f"v_lshl_or_b32 v{32+j}, v{17+2*j}, 16, v{16+2*j}")
    A(f"""
    s_mul_i32 s45, s44, 1536
    s_add_u32 s45, s45, {WPH}
    v_lshlrev_b32 v7, 3, v1
    buffer_store_dwordx4 v[32:35], v2, s[8:11], s45 offen sc1
    buffer_store_dwordx2 v[36:37], v7, s[8:11], s45 offen offset:1024 sc1
    s_branch {name}_prep_done
    {name}_sel:
    s_cmp_lg_u32 s69, 0
    s_cbranch_scc1 {name}_prep_done
    v_lshlrev_b32 v4, 2, v131
    v_sub_u32 v4, v3, v4
    """)
    for j in range(12):
        tgt = (8*(j//4) + (j%4)) if j < 8 else 16 + (j-8)
        A(f"""
        v_cmp_eq_u32 vcc, {tgt}, v4
        v_mov_b32 v5, 0x3f80
        v_cndmask_b32 v{16+j}, 0, v5, vcc
        """)
    for j in range(6): A(f"v_lshl_or_b32 v{32+j}, v{17+2*j}, 16, v{16+2*j}")
    A(f"""
    s_mov_b32 s45, {SEL}
    v_lshlrev_b32 v7, 3, v1
    buffer_store_dwordx4 v[32:35], v2, s[8:11], s45 offen sc1
    buffer_store_dwordx2 v[36:37], v7, s[8:11], s45 offen offset:1024 sc1
    v_mov_b32 v40, 0
    v_mov_b32 v41, 0
    v_mov_b32 v42, 0
    v_mov_b32 v43, 0
    """)
    for j in range(FZERO_BYTES // 1024):
        A(f"s_mov_b32 s45, {FZERO_LO + j*1024}")
        A(f"buffer_store_dwordx4 v[40:43], v2, s[8:11], s45 offen sc1")
    A(f"""
    {name}_prep_done:
    s_waitcnt vmcnt(0)
    s_cmp_eq_u32 s36, 0
    s_cbranch_scc0 {name}_prep_npf
    """)
    prefetch_share(A, 20, 21, 22, 23, 4, 35)
    A(f"""
    {name}_prep_npf:
    s_barrier
    s_cmp_eq_u32 s32, 4
    s_cbranch_scc0 {name}_prep_w
    s_mov_b32 s50, {FPREP}
    """)
    signal_dbg(A, 50, 48, 49)
    check_prep(A, 48, 49)
    A(f"s_mov_b32 s50, {FBW}")
    A(f"s_sleep 127")
    A(f"s_sleep 127")
    tile_flags_voff(A, 7)
    poll_ws(A, 7, 50, 16, 60, sleep=64)
    A(f"""
    {name}_prep_w:
    s_barrier
    s_cmp_eq_u32 s36, 0
    s_cbranch_scc1 {name}_prep_q
    """)
    p2_stage_dma(A, 0)
    A(f"{name}_prep_q:")
    p2_q_loads(A)
    A(f"""
    s_waitcnt vmcnt(0)
    s_barrier
    s_branch {name}_p2entry
    """)

def code_prefetch(A, name, nblk=6):
    if os.environ.get("CODEPF", "1") != "1": return
    L = A.new("cpf")
    A(f"""
    s_cmp_eq_u32 s32, 7
    s_cbranch_scc0 {L}
    s_getpc_b64 s[54:55]
    {L}_pc:
    s_sub_u32 s54, s54, {L}_pc-{name}
    s_subb_u32 s55, s55, 0
    s_mov_b32 s56, {name}_end-{name}
    v_lshlrev_b32 v228, 7, v1
    """)
    for i in range(nblk):
        A(f"""
        v_cmp_gt_u32 vcc, s56, v228
        s_and_b64 exec, vcc, vcc
        s_cbranch_execz {L}_x
        global_load_dword v229, v228, s[54:55]
        v_add_u32 v228, 8192, v228
        """)
    A(f"""
    {L}_x:
    s_mov_b64 exec, -1
    {L}:
    """)

def gen_fused(A, name):
    kernel_begin(A, name)
    stamp(A, 10, real=True)
    gen_common(A, name)
    stamp(A, 0)
    code_prefetch(A, name)
    prefetch_share(A, 24, 25, 26, 27, 8, 32)
    A(f"""
    s_cmp_eq_u32 s31, 1
    s_cbranch_scc1 {name}_prep
    s_cmp_eq_u32 s36, 1
    s_cbranch_scc1 {name}_loader
    """)
    p1_compute_setup(A)
    l2pf_setup(A)
    A(f"""
    s_cmp_ge_u32 s38, 10
    s_cbranch_scc1 {name}_compN
    """)
    p1_compute(A, name, "T")
    A(f"{name}_compN:")
    p1_compute(A, name, "N")
    A(f"{name}_prep:")
    p1_prep(A, name)
    A(f"{name}_loader:")
    p1_loader(A, name)
    A(f"{name}_p2entry:")
    stamp(A, 4)
    if STOP_AFTER == "P1":
        A("s_waitcnt vmcnt(0)")
        stamp(A, 9)
        stamp(A, 11, real=True)
        stamp_flush(A, 12, 0, 32, base=70)
        A("s_endpgm")
    else:
        import fused2
        fused2.gen_p2(A, name)
    A(f"{name}_done:")
    A("s_endpgm")
    A(f"{name}_end:")
    return kernel_desc(name, 256)
```

```python
import os
from asmlib import *
from layout2 import *

LDS = 163840
SPIN_MAX = 50000
R1 = 32768; ST1 = 32768; NS1 = 4
LOG2E = 0x3fb8aa3b
QSCALE = 0x3ea52b5c
LSTAMP = os.environ.get('LSTAMP', '0') == '1'
NTX = ' nt' if os.environ.get('NTX', '0') == '1' else ''
NTW = ' nt' if os.environ.get('NTW', '0') == '1' else ''
STOP_AFTER = os.environ.get("STOP_AFTER", "")

def poll_dbg(A, lane_off_v, tmp_v, mask_lo, target, sleep=4):
    L = A.new("poll")
    A(f"""
    s_mov_b32 s59, 0
    {L}:
    global_load_dword v{tmp_v}, v{lane_off_v}, s[4:5] sc1
    s_waitcnt vmcnt(0)
    v_cmp_le_u32 vcc, {target}, v{tmp_v}
    s_and_b32 s58, vcc_lo, {mask_lo:#x}
    s_cmp_eq_u32 s58, {mask_lo:#x}
    s_cbranch_scc1 {L}_ok
    s_sleep {sleep}
    s_add_u32 s59, s59, 1
    s_cmp_lt_u32 s59, {SPIN_MAX}
    s_cbranch_scc1 {L}
    {L}_ok:
    """)

def poll_ws(A, voff, soff, T, nlanes, width=4, target=1, sleep=8):
    L = A.new("pw")
    mask = (1 << nlanes) - 1
    ld = {4: "buffer_load_dwordx4 " + v(T,4), 1: f"buffer_load_dword v{T}"}[width]
    def check():
        A("s_waitcnt vmcnt(0)")
        if width == 4:
            A(f"v_and_b32 v{T}, v{T}, v{T+1}")
            A(f"v_and_b32 v{T+2}, v{T+2}, v{T+3}")
            A(f"v_and_b32 v{T}, v{T}, v{T+2}")
        A(f"v_cmp_eq_u32 vcc, {target}, v{T}")
        if nlanes >= 64:
            A(f"s_cmp_eq_u64 vcc, -1")
        else:
            A(f"s_and_b32 s58, vcc_hi, {(mask >> 32):#x}") if nlanes > 32 else None
            if nlanes > 32:
                A(f"s_cmp_eq_u32 s58, {(mask >> 32):#x}")
                A(f"s_cselect_b32 s58, vcc_lo, 0")
                A(f"s_cmp_eq_u32 s58, -1")
            else:
                A(f"s_and_b32 s58, vcc_lo, {mask:#x}")
                A(f"s_cmp_eq_u32 s58, {mask:#x}")
    A(f"{ld}, v{voff}, s[8:11], s{soff} offen")
    check()
    A(f"s_cbranch_scc1 {L}_ok")
    A(f"s_mov_b32 s59, 0")
    A(f"{L}:")
    A(f"s_sleep {sleep}")
    A(f"{ld}, v{voff}, s[8:11], s{soff} offen sc1")
    check()
    A(f"""
    s_cbranch_scc1 {L}_ok
    s_add_u32 s59, s59, 1
    s_cmp_lt_u32 s59, {SPIN_MAX}
    s_cbranch_scc1 {L}
    {L}_ok:
    """)

def set_flag_ws(A, soff, tv0, tv1):
    A(f"""
    v_mov_b32 v{tv0}, 0
    v_mov_b32 v{tv1}, 1
    s_mov_b64 exec, 1
    buffer_store_dword v{tv1}, v{tv0}, s[8:11], s{soff} offen sc1
    s_mov_b64 exec, -1
    """)

def check_prep(A, tv0, tv1):
    L = A.new("cp")
    A(f"""
    v_mov_b32 v{tv0}, {FPREP*4}
    global_load_dword v{tv1}, v{tv0}, s[4:5]
    s_mov_b32 s59, 0
    {L}:
    s_waitcnt vmcnt(0)
    v_readfirstlane_b32 s58, v{tv1}
    s_cmp_ge_u32 s58, 16
    s_cbranch_scc1 {L}_ok
    s_sleep 16
    global_load_dword v{tv1}, v{tv0}, s[4:5] sc1
    s_add_u32 s59, s59, 1
    s_cmp_lt_u32 s59, {SPIN_MAX}
    s_cbranch_scc1 {L}
    {L}_ok:
    """)

def tile_flags_voff(A, vd):
    A(f"""
    v_lshrrev_b32 v{vd}, 2, v1
    v_lshlrev_b32 v{vd}, 7, v{vd}
    v_and_b32 v{vd+1}, 3, v1
    v_lshlrev_b32 v{vd+1}, 4, v{vd+1}
    v_add_u32 v{vd}, v{vd}, v{vd+1}
    """)

def signal_dbg(A, idx_s, tv0, tv1):
    A(f"""
    s_lshl_b32 s58, s{idx_s}, 2
    v_mov_b32 v{tv0}, s58
    v_mov_b32 v{tv1}, 1
    s_mov_b64 exec, 1
    global_atomic_add v{tv0}, v{tv1}, s[4:5] sc1
    s_mov_b64 exec, -1
    """)

def gen_common(A, name):
    A(f"""
    s_cmp_ge_u32 s2, 256
    s_cbranch_scc1 {name}_done
    s_load_dwordx4 s[20:23], s[0:1], 0
    s_load_dwordx4 s[24:27], s[0:1], 32
    s_load_dwordx4 s[4:7], s[0:1], 64
    s_load_dwordx2 s[28:29], s[0:1], 16
    v_and_b32 v1, 63, v0
    v_lshrrev_b32 v2, 6, v0
    v_and_b32 v3, 31, v1
    v_readfirstlane_b32 s32, v2
    v_lshrrev_b32 v131, 5, v1
    v_lshlrev_b32 v2, 4, v1
    v_lshlrev_b32 v132, 3, v3
    s_and_b32 s39, s2, 7
    s_lshr_b32 s64, s2, 3
    s_lshl_b32 s33, s39, 2
    s_lshr_b32 s45, s64, 3
    s_add_u32 s33, s33, s45
    s_and_b32 s34, s64, 7
    s_and_b32 s35, s32, 3
    s_lshr_b32 s36, s32, 2
    s_lshr_b32 s65, s39, 1
    s_lshl_b32 s37, s65, 2
    s_and_b32 s30, s39, 1
    s_cmp_eq_u32 s30, 0
    s_cbranch_scc0 {name}_map1
    s_lshr_b32 s46, s64, 3
    s_add_u32 s37, s37, s46
    s_and_b32 s38, s64, 7
    s_mov_b32 s31, 0
    s_branch {name}_map2
    {name}_map1:
    s_mul_i32 s46, s64, 37
    s_lshr_b32 s46, s46, 8
    s_add_u32 s37, s37, s46
    s_mul_i32 s46, s46, 7
    s_sub_u32 s38, s64, s46
    s_add_u32 s38, s38, 8
    s_cmp_ge_u32 s64, 28
    s_cselect_b32 s31, 1, 0
    {name}_map2:
    s_mov_b32 s40, {LOG2E:#x}
    s_mov_b32 s41, {LOG2E | 0x80000000:#x}
    s_mov_b32 s42, 0x000fffff
    s_mov_b32 s43, 0x000fffff
    s_and_b32 s45, s33, 1
    s_mul_i32 s66, s33, 5
    s_add_u32 s66, s66, s45
    s_lshr_b32 s66, s66, 1
    s_add_u32 s67, s66, 2
    s_cmp_eq_u32 s45, 1
    s_cselect_b32 s46, 3, 0
    s_sub_u32 s67, s67, s46
    s_lshl_b32 s68, s45, 3
    s_mul_i32 s53, s33, {VH}
    s_add_u32 s53, s53, {BR + VOFF}
    s_waitcnt lgkmcnt(0)
    """)
    srd(A, 8, 6, 7, WS_BYTES)
    for r in range(200, 204): A(f"v_mov_b32 v{r}, 0")

def p2_stage_dma(A, st, dyn=None):
    L = A.new("sd")
    if dyn is None:
        A(f"""
        s_lshr_b32 s56, s35, 1
        s_mul_i32 s57, s56, {PART}
        s_add_u32 s57, s57, {(st % 4) * SLOT}
        s_lshl_b32 s56, s56, 3
        s_add_u32 s56, s56, {st}
        """)
    else:
        A(f"""
        s_lshr_b32 s56, s35, 1
        s_mul_i32 s57, s56, {PART}
        s_add_u32 s57, s57, s{dyn[0]}
        s_lshl_b32 s56, s56, 3
        s_add_u32 s56, s56, s{dyn[1]}
        """)
    A(f"""
    s_bitcmp1_b32 s35, 0
    s_cbranch_scc1 {L}_v
    s_lshl_b32 s56, s56, 11
    s_add_u32 s58, s66, 80
    s_lshl_b32 s58, s58, 15
    s_add_u32 s58, s58, s56
    s_add_u32 s58, s58, {BR + QKOFF}
    s_add_u32 s59, s67, 80
    s_lshl_b32 s59, s59, 15
    s_add_u32 s59, s59, s56
    s_add_u32 s59, s59, {BR + QKOFF}
    """)
    for e, (src, off) in enumerate(((58, 0), (58, 1024), (58, QKG), (58, QKG + 1024), (59, 0), (59, 1024))):
        A(f"s_add_u32 m0, s57, {e*1024}")
        A(f"s_add_u32 s56, s{src}, {off}")
        A(f"buffer_load_dwordx4 v2, s[8:11], s56 offen sc1 lds")
    A(f"""
    s_branch {L}_e
    {L}_v:
    s_mul_i32 s56, s56, {VC}
    s_add_u32 s56, s56, s53
    """)
    for e in range(5):
        A(f"s_add_u32 m0, s57, {6144 + e*1024}")
        A(f"s_add_u32 s58, s56, {e*1024}")
        A(f"buffer_load_dwordx4 v2, s[8:11], s58 offen sc1 lds")
    A(f"{L}_e:")

QA_M, QB_M, QA_R, QB_R = 4, 8, 12, 14
def frag_addr(A, vm, vr):
    A(f"""
    v_lshlrev_b32 v{vm}, 15, v131
    v_lshlrev_b32 v{vr}, 4, v3
    v_add_u32 v{vm}, v{vm}, v{vr}
    v_add_u32 v{vr}, s68, v{vr}
    """)
QL = 98304
def p2_q_dma(A):
    A(f"""
    s_lshl_b32 s56, s34, 8
    s_lshl_b32 s57, s35, 6
    s_add_u32 s56, s56, s57
    s_lshl_b32 s56, s56, 4
    s_add_u32 s56, s56, {BR + QKOFF}
    s_lshl_b32 s57, s35, 10
    s_add_u32 s57, s57, {QL}
    s_lshl_b32 s58, s66, 15
    s_add_u32 s58, s58, s56
    s_mov_b32 m0, s57
    s_add_u32 s59, s58, {QKG}
    buffer_load_dwordx4 v2, s[8:11], s58 offen sc1 lds
    s_add_u32 m0, s57, 4096
    s_lshl_b32 s58, s67, 15
    buffer_load_dwordx4 v2, s[8:11], s59 offen sc1 lds
    s_add_u32 m0, s57, 8192
    s_add_u32 s58, s58, s56
    buffer_load_dwordx4 v2, s[8:11], s58 offen sc1 lds
    """)
def p2_q_reads(A, tm=133, tr=134):
    A(f"""
    s_lshl_b32 s56, s35, 10
    s_add_u32 s56, s56, {QL}
    v_lshlrev_b32 v{tm}, 12, v131
    v_lshlrev_b32 v{tr}, 4, v3
    v_add3_u32 v{tm}, v{tm}, v{tr}, s56
    s_add_u32 s56, s56, 8192
    s_add_u32 s56, s56, s68
    v_add_u32 v{tr}, s56, v{tr}
    v_mov_b32 v{QA_R}, 0
    v_mov_b32 v{QA_R+1}, 0
    v_mov_b32 v{QA_R+2}, 0
    v_mov_b32 v{QA_R+3}, 0
    ds_read_b128 {v(QA_M,4)}, v{tm}
    ds_read_b128 {v(QB_M,4)}, v{tm} offset:512
    s_mov_b32 exec_hi, 0
    ds_read_b64 {v(QA_R,2)}, v{tr}
    ds_read_b64 {v(QB_R,2)}, v{tr} offset:512
    s_mov_b64 exec, -1
    """)

XV, WV = 192, 196
CXA, CWA, CXA2, CWA2, CEA = 4, 8, 10, 14, 128
EA = 200
ACC = 64
def p1_loader(A, name):
    A.c("P1 loader")
    A(f"""
    v_lshrrev_b32 v7, 3, v1
    s_lshl_b32 s44, s35, 5
    v_add_u32 v7, s44, v7
    v_mul_u32_u24 v7, 1280, v7
    v_lshrrev_b32 v8, 4, v1
    v_and_b32 v9, 7, v1
    """)
    for i in range(4):
        A(f"""
        v_add_u32 v10, {4*i}, v8
        v_and_b32 v10, 7, v10
        v_xor_b32 v10, v10, v9
        v_lshlrev_b32 v10, 4, v10
        v_add_u32 v10, v10, v7
        v_add_u32 v{XV+i}, {8*i*1280}, v10
        """)
    A(f"""
    s_lshl_b32 s44, s35, 4
    v_add_u32 v7, s44, v8
    v_mul_u32_u24 v7, 3840, v7
    v_lshrrev_b32 v9, 2, v1
    v_xor_b32 v9, v9, v8
    v_and_b32 v9, 3, v9
    v_lshlrev_b32 v9, 6, v9
    v_and_b32 v10, 3, v1
    v_lshlrev_b32 v10, 4, v10
    v_add3_u32 v{WV}, v7, v9, v10
    s_lshl_b32 s44, s35, 12
    s_add_u32 s45, s44, 16384
    s_and_b32 s52, s37, 3
    s_mul_i32 s52, s52, 3
    s_add_u32 s52, s52, s38
    s_lshl_b32 s54, s65, 1
    s_add_u32 s52, s52, s54
    s_cmp_ge_u32 s52, 20
    s_cselect_b32 s54, 20, 0
    s_sub_u32 s52, s52, s54
    s_cmp_ge_u32 s52, 10
    s_cselect_b32 s54, 10, 0
    s_sub_u32 s52, s52, s54
    """)
    if os.environ.get("ROT", "1") != "1": A("s_mov_b32 s52, 0")
    A(f"""
    s_mov_b32 s55, s52
    s_mul_i32 s46, s37, {128*1280}
    s_lshl_b32 s54, s55, 7
    s_add_u32 s46, s46, s54
    s_lshl_b32 s47, s38, 8
    s_mul_i32 s54, s55, {64*3840}
    s_add_u32 s47, s47, s54
    s_mov_b32 s56, s55
    s_mov_b32 s48, {R1}
    s_mov_b32 s49, 0
    """)
    srd(A, 12, 24, 25, X_BYTES)
    srd(A, 16, 26, 27, W_BYTES)
    def issue(tag):
        for i in range(4 if not (os.environ.get("XP") == "nodma" and tag == "lp") else 0):
            A(f"s_add_u32 s50, s48, s44")
            A(f"s_add_u32 m0, s50, {i*1024}")
            A(f"s_add_u32 s51, s47, {i*4*3840}")
            A(f"buffer_load_dwordx4 v{XV+i}, s[12:15], s46 offen{NTX} lds")
            A(f"s_add_u32 s50, s48, s45")
            A(f"s_add_u32 m0, s50, {i*1024}")
            A(f"s_nop 0")
            A(f"buffer_load_dwordx4 v{WV}, s[16:19], s51 offen{NTW} lds")
        A(f"""
        s_add_u32 s46, s46, 128
        s_add_u32 s47, s47, {64*3840}
        s_add_u32 s48, s48, {ST1}
        s_cmp_eq_u32 s48, {R1+NS1*ST1}
        s_cselect_b32 s48, {R1}, s48
        s_add_u32 s56, s56, 1
        s_cmp_eq_u32 s56, 10
        s_cselect_b32 s54, {10*128}, 0
        s_sub_u32 s46, s46, s54
        s_cmp_eq_u32 s56, 10
        s_cselect_b32 s54, {10*64*3840}, 0
        s_sub_u32 s47, s47, s54
        s_cmp_eq_u32 s56, 10
        s_cselect_b32 s56, 0, s56
        s_add_u32 s49, s49, 1
        s_cmp_eq_u32 s49, 10
        s_cbranch_scc0 {name}_ld_{tag}
        """)
        srd(A, 12, 20, 21, X_BYTES)
        srd(A, 16, 22, 23, W_BYTES)
        A(f"""
        {name}_ld_{tag}:
        """)
    SPD = int(os.environ.get("SPD", "6"))
    def spf_bases(xl, xh, wl, wh):
        A(f"""
        s_lshl_b32 s54, s64, 2
        s_add_u32 s54, s54, s35
        s_lshl_b32 s55, s65, 9
        s_lshl_b32 s57, s54, 2
        s_add_u32 s55, s55, s57
        s_mul_i32 s55, s55, 1280
        s_add_u32 s60, s{xl}, s55
        s_addc_u32 s61, s{xh}, 0
        s_lshr_b32 s55, s54, 1
        s_mul_i32 s55, s55, 3840
        s_and_b32 s57, s54, 1
        s_lshl_b32 s57, s57, 10
        s_add_u32 s55, s55, s57
        s_lshl_b32 s57, s30, 11
        s_add_u32 s55, s55, s57
        s_add_u32 s62, s{wl}, s55
        s_addc_u32 s63, s{wh}, 0
        """)
    def spf_one():
        for r in range(4): A(f"s_load_dword s94, s[60:61], {r*1280}")
        for r in range(8): A(f"s_load_dword s95, s[62:63], {r*128}")
        A(f"""
        s_add_u32 s60, s60, 128
        s_addc_u32 s61, s61, 0
        s_add_u32 s62, s62, {64*3840}
        s_addc_u32 s63, s63, 0
        """)
    issue("p0"); issue("p1"); issue("p2")
    if SPD:
        spf_bases(24, 25, 26, 27)
        A(f"""
        s_add_u32 s60, s60, {3*128}
        s_addc_u32 s61, s61, 0
        s_add_u32 s62, s62, {3*64*3840}
        s_addc_u32 s63, s63, 0
        s_mov_b32 s100, 3
        """)
        for _ in range(SPD - 3):
            spf_one(); A("s_add_u32 s100, s100, 1")
    stamp(A, 1)
    if STAMPS: A("s_mov_b32 s74, 0\ns_mov_b32 s75, 0\ns_mov_b32 s76, 0\ns_mov_b32 s77, 0\ns_mov_b32 s80, 0\ns_mov_b32 s81, 0")
    if os.environ.get("XP") == "nobar":
        A(f"""
        s_mov_b32 s52, 0
        {name}_xl:
        s_waitcnt vmcnt({os.environ.get("XVM", "16")})
        """)
        issue("xp")
        A(f"""
        s_add_u32 s52, s52, 1
        s_cmp_lt_u32 s52, 17
        s_cbranch_scc1 {name}_xl
        s_waitcnt vmcnt(0)
        """)
        stamp(A, 4); stamp(A, 9); stamp(A, 11, real=True)
        stamp_flush(A, 12, 0, 32, base=70)
        A("s_endpgm")
    A(f"""
    s_mov_b32 s52, 0
    {name}_lloop:
    """)
    if STAMPS and LSTAMP:
        A("""
        s_memtime s[86:87]
        s_waitcnt lgkmcnt(0)
        s_waitcnt vmcnt(16)
        s_memtime s[88:89]
        s_waitcnt lgkmcnt(0)
        s_sub_u32 s90, s88, s86
        s_add_u32 s74, s74, s90
        s_barrier
        s_memtime s[86:87]
        s_waitcnt lgkmcnt(0)
        s_sub_u32 s90, s86, s88
        s_add_u32 s76, s76, s90
        """)
    else:
        A("s_waitcnt vmcnt(16)")
        A("s_barrier")
    issue("lp")
    if SPD:
        A(f"""
        s_cmp_ge_u32 s100, 20
        s_cbranch_scc1 {name}_nsp
        s_cmp_eq_u32 s100, 10
        s_cbranch_scc0 {name}_sp1
        """)
        spf_bases(20, 21, 22, 23)
        A(f"{name}_sp1:")
        spf_one()
        A(f"""
        s_add_u32 s100, s100, 1
        {name}_nsp:
        """)
    if STAMPS and LSTAMP:
        A("""
        s_memtime s[88:89]
        s_waitcnt lgkmcnt(0)
        s_sub_u32 s90, s88, s86
        s_add_u32 s80, s80, s90
        """)
    A(f"""
    s_add_u32 s52, s52, 1
    s_cmp_lt_u32 s52, 17
    s_cbranch_scc1 {name}_lloop
    s_waitcnt vmcnt(16)
    s_barrier
    s_waitcnt vmcnt(8)
    s_barrier
    s_waitcnt vmcnt(0)
    s_barrier
    s_barrier
    s_mov_b32 s50, {FBW}
    """)
    stamp(A, 7)
    tile_flags_voff(A, 7)
    poll_ws(A, 7, 50, 16, 60)
    stamp(A, 8)
    p2_stage_dma(A, 0)
    p2_q_dma(A)
    A(f"""
    s_waitcnt vmcnt(0)
    s_barrier
    """)

PF_MODE = os.environ.get('PF_MODE', 'plain')
def prefetch_share(A, xl, xh, wl, wh, nw, widx):
    if PF_MODE == 'off': return
    srd(A, 12, xl, xh, X_BYTES)
    srd(A, 16, wl, wh, W_BYTES)
    A(f"""
    s_mul_i32 s50, s2, 10240
    s_mul_i32 s51, s2, 9600
    s_lshl_b32 s52, s{widx}, 10
    s_add_u32 s50, s50, s52
    s_add_u32 s51, s51, s52
    """)
    for r in range(-(-10 // nw)):
        L = A.new("pf")
        lim = 10 - r * nw
        if lim < nw:
            A(f"s_cmp_ge_u32 s{widx}, {lim}")
            A(f"s_cbranch_scc1 {L}")
        A(f"s_add_u32 s52, s50, {r*nw*1024}")
        A(f"buffer_load_dwordx4 v[216:219], v2, s[12:15], s52 offen")
        A(f"s_add_u32 s52, s51, {r*nw*1024}")
        A(f"buffer_load_dwordx4 v[220:223], v2, s[16:19], s52 offen")
        if lim < nw: A(f"{L}:")

L2PF = int(os.environ.get('L2PF', '5'))
def l2pf_setup(A):
    L = A.new("l2")
    A(f"""
    s_mov_b32 s69, 0
    s_cmp_lg_u32 s32, 1
    s_cbranch_scc1 {L}_e
    s_cmp_ge_u32 s64, 24
    s_cbranch_scc1 {L}_e
    s_mov_b32 s69, 1
    s_cmp_ge_u32 s64, 8
    s_cbranch_scc1 {L}_w
    s_lshl_b32 s44, s65, 9
    s_lshl_b32 s45, s64, 6
    s_add_u32 s44, s44, s45
    v_add_u32 v5, s44, v1
    v_mul_u32_u24 v5, 1280, v5
    s_mov_b32 s55, 128
    """)
    srd(A, 96, 24, 25, X_BYTES)
    A(f"""
    s_branch {L}_go
    {L}_w:
    s_sub_u32 s44, s64, 8
    s_lshl_b32 s44, s44, 2
    v_lshrrev_b32 v5, 4, v1
    v_add_u32 v5, s44, v5
    v_mul_u32_u24 v5, 3840, v5
    v_and_b32 v6, 15, v1
    v_lshlrev_b32 v6, 7, v6
    s_lshl_b32 s44, s30, 11
    v_add3_u32 v5, v5, v6, s44
    s_mov_b32 s55, {64*3840}
    """)
    srd(A, 96, 26, 27, W_BYTES)
    A(f"""
    {L}_go:
    s_mul_i32 s54, s55, 4
    s_mov_b32 s57, 4
    {L}_e:
    """)
def l2pf_one(A):
    if not L2PF: return
    L = A.new("l2o")
    A(f"""
    s_cmp_eq_u32 s69, 1
    s_cbranch_scc0 {L}_e
    s_cmp_ge_u32 s57, 20
    s_cbranch_scc1 {L}_e
    s_cmp_eq_u32 s57, 10
    s_cbranch_scc0 {L}_n
    s_mov_b32 s54, 0
    s_cmp_ge_u32 s64, 8
    s_cbranch_scc1 {L}_w
    """)
    srd(A, 96, 20, 21, X_BYTES)
    A(f"s_branch {L}_n")
    A(f"{L}_w:")
    srd(A, 96, 22, 23, W_BYTES)
    A(f"""
    {L}_n:
    buffer_load_dword v224, v5, s[96:99], s54 offen
    s_add_u32 s54, s54, s55
    s_add_u32 s57, s57, 1
    {L}_e:
    """)

def p1_compute(A, name, orient):
    tag = f"{name}_c{orient}"
    FB_ = [16, 32, 48, 144]
    ACCS = [64, 160]
    T = 224
    def reads(c, kk):
        q = c % 4
        b = FB_[kk]
        xa = (CXA if q < 2 else CXA2) + kk; wa = CWA if q < 2 else CWA2
        so = (q & 1) * ST1
        L = []
        L.append(f"ds_read_b128 {v(b,4)}, v{xa} offset:{so}")
        for jj in range(2): L.append(f"ds_read_b64_tr_b16 {v(b+8+2*jj,2)}, v{wa} offset:{so+kk*4096+jj*1024}")
        L.append(f"ds_read_b128 {v(b+4,4)}, v{xa} offset:{so+4096}")
        for jj in range(2): L.append(f"ds_read_b64_tr_b16 {v(b+12+2*jj,2)}, v{wa+1} offset:{so+kk*4096+jj*1024}")
        return L
    def mf(c, kk):
        b = FB_[kk]; acc = ACCS[c // 10]
        first = (c % 10 == 0 and kk == 0)
        L = []
        for nt in range(2):
            for st in range(2):
                X = v(b+4*st,4); W = v(b+8+4*nt,4)
                if orient == "T":
                    D = v(acc+16*(2*nt+st),16); L.append(f"v_mfma_f32_32x32x16_bf16 {D}, {W}, {X}, {'0' if first else D}")
                else:
                    D = v(acc+16*(2*st+nt),16); L.append(f"v_mfma_f32_32x32x16_bf16 {D}, {X}, {W}, {'0' if first else D}")
        return L
    def epilogue(br_is_B):
        acc = ACCS[0 if br_is_B else 1]
        L = []
        if orient == "T":
            n = 0
            for nt in range(2):
                for st in range(2):
                    r0 = acc+16*(2*nt+st)
                    for ip in range(2):
                        t_ = T + 4*(n % 4); n += 1
                        if br_is_B:
                            for e in range(8): L.append(f"v_mul_f32 v{r0+8*ip+e}, s51, v{r0+8*ip+e}")
                        for e in range(4): L.append(f"v_cvt_pk_bf16_f32 v{t_+e}, v{r0+8*ip+2*e}, v{r0+8*ip+2*e+1}")
                        L.append(f"s_add_u32 s52, s50, {(4*nt+2*ip)*QKG + st*512}")
                        L.append(f"s_nop 0")
                        L.append(f"v_permlane32_swap_b32 v{t_}, v{t_+2}")
                        L.append(f"v_permlane32_swap_b32 v{t_+1}, v{t_+3}")
                        L.append(f"buffer_store_dwordx4 {v(t_,4)}, v{CEA}, s[8:11], s52 offen sc1")
        else:
            for nt in range(2):
                for st in range(2):
                    for m in range(2):
                        r0 = acc+16*(2*st+nt)+8*m
                        t_ = T + 4*((2*st+m) % 4)
                        for e in range(4): L.append(f"v_cvt_pk_bf16_f32 v{t_+e}, v{r0+2*e}, v{r0+2*e+1}")
                        L.append(f"buffer_store_dwordx4 {v(t_,4)}, v{CEA+nt}, s[8:11], s50 offen offset:{(2*st+m)*640} sc1")
        return L
    if orient == "T":
        A(f"""
        s_lshl_b32 s44, s38, 4
        s_and_b32 s45, s35, 1
        s_lshl_b32 s45, s45, 3
        s_add_u32 s44, s44, s45
        v_add_u32 v{T}, s44, v131
        v_lshlrev_b32 v{T}, 15, v{T}
        s_lshl_b32 s44, s37, 7
        s_lshr_b32 s45, s35, 1
        s_lshl_b32 s45, s45, 6
        s_add_u32 s44, s44, s45
        v_add_u32 v{T+1}, s44, v3
        v_lshlrev_b32 v{T+1}, 4, v{T+1}
        v_add_u32 v{CEA}, v{T}, v{T+1}
        s_mov_b32 s60, {QKOFF}
        s_mov_b32 s51, 1.0
        s_cmp_lt_u32 s38, 5
        s_cselect_b32 s51, {QSCALE:#x}, s51
        """)
    else:
        A(f"""
        s_sub_u32 s44, s38, 10
        s_lshl_b32 s44, s44, 7
        s_and_b32 s45, s35, 1
        s_lshl_b32 s45, s45, 6
        s_add_u32 s44, s44, s45
        s_mul_i32 s60, s37, {VC}
        s_add_u32 s60, s60, {VOFF}
        s_lshr_b32 s45, s35, 1
        s_mul_i32 s45, s45, {4*640}
        s_add_u32 s60, s60, s45
        v_mul_u32_u24 v{T}, 320, v131
        s_mov_b32 s45, {VH}
        """)
        for nt in range(2):
            A(f"""
            v_add_u32 v{T+1}, s44, v3
            v_add_u32 v{T+1}, {32*nt}, v{T+1}
            v_mul_u32_u24 v{T+2}, 3277, v{T+1}
            v_lshrrev_b32 v{T+2}, 16, v{T+2}
            v_mul_u32_u24 v{T+3}, 20, v{T+2}
            v_sub_u32 v{T+3}, v{T+1}, v{T+3}
            v_lshlrev_b32 v{T+3}, 4, v{T+3}
            v_mul_lo_u32 v{T+2}, v{T+2}, s45
            v_add3_u32 v{CEA+nt}, v{T+2}, v{T+3}, v{T}
            """)
    for kk in range(4): A(f"v_add_u32 v{CXA2+kk}, {2*ST1}, v{CXA+kk}")
    for nt in range(2): A(f"v_add_u32 v{CWA2+nt}, {2*ST1}, v{CWA+nt}")
    A(f"s_add_u32 s50, s60, {BR}")
    stamp(A, 1)
    A("s_barrier")
    stamp(A, 2)
    for l in reads(0, 0) + reads(0, 1): A(l)
    EPI = epilogue(True)
    def emit(M, R, extra_per=0):
        R = list(R)
        for i_, m in enumerate(M):
            A(m)
            for _ in range(3):
                if R: A(R.pop(0))
            for _ in range(extra_per):
                if EPI: A(EPI.pop(0))
    for c in range(20):
        ex = 0
        if c in (10, 11): ex = -(-len(epilogue(True)) // 30)
        A("s_waitcnt lgkmcnt(6)")
        emit(mf(c, 0), reads(c, 2), ex if c != 10 else 0)
        A("s_waitcnt lgkmcnt(6)")
        emit(mf(c, 1), reads(c, 3), ex)
        if c == 13: A("s_waitcnt vmcnt(0)")
        A("s_waitcnt lgkmcnt(0)")
        A("s_barrier")
        emit(mf(c, 2), reads(c + 1, 0), ex)
        A("s_waitcnt lgkmcnt(6)")
        emit(mf(c, 3), reads(c + 1, 1), ex)
        if c == 11:
            while EPI: A(EPI.pop(0))
        if c == 4:
            L = A.new("fp")
            A(f"""
            s_cmp_eq_u32 s32, 0
            s_cbranch_scc0 {L}
            v_mov_b32 v240, {FPREP*4}
            global_load_dword v241, v240, s[4:5]
            {L}:
            """)
        if c == 9: stamp(A, 5)
        if c == 13:
            A(f"s_cmp_eq_u32 s32, 0")
            A(f"s_cbranch_scc1 {tag}_hk_sig")
            A(f"{tag}_rt_sig:")
    stamp(A, 3)
    A(f"s_mov_b32 s50, s60")
    for l in epilogue(False): A(l)
    A(f"s_branch {name}_cdone")
    A(f"{tag}_hk_sig:")
    stamp(A, 7)
    L = A.new("cp")
    A(f"""
    v_readfirstlane_b32 s58, v241
    s_cmp_ge_u32 s58, 16
    s_cbranch_scc1 {L}
    """)
    check_prep(A, 240, 241)
    A(f"""
    {L}:
    s_lshl_b32 s54, s38, 7
    s_lshl_b32 s55, s37, 2
    s_add_u32 s54, s54, s55
    s_add_u32 s54, s54, {FBW}
    """)
    set_flag_ws(A, 54, 240, 241)
    A(f"s_branch {tag}_rt_sig")

def p1_compute_setup(A):
    A(f"""
    s_lshr_b32 s44, s35, 1
    s_lshl_b32 s44, s44, 6
    v_add_u32 v20, s44, v3
    v_lshlrev_b32 v20, 7, v20
    v_add_u32 v20, {R1}, v20
    v_lshrrev_b32 v16, 1, v3
    v_and_b32 v16, 7, v16
    v_xor_b32 v16, v16, v131
    """)
    for kk in range(4):
        A(f"""
        v_xor_b32 v17, {2*kk}, v16
        v_lshlrev_b32 v17, 4, v17
        v_add_u32 v{CXA+kk}, v20, v17
        """)
    A(f"""
    v_lshrrev_b32 v16, 2, v1
    v_and_b32 v16, 3, v16
    v_lshlrev_b32 v17, 11, v131
    v_lshlrev_b32 v18, 8, v16
    v_add_u32 v17, v17, v18
    v_lshrrev_b32 v18, 4, v1
    v_and_b32 v18, 1, v18
    v_lshlrev_b32 v18, 5, v18
    v_add_u32 v17, v17, v18
    v_and_b32 v18, 3, v1
    v_lshlrev_b32 v18, 3, v18
    v_add_u32 v17, v17, v18
    v_add_u32 v17, {R1+16384}, v17
    s_and_b32 s44, s35, 1
    s_lshl_b32 s44, s44, 1
    """)
    for nt in range(2):
        A(f"""
        s_add_u32 s45, s44, {nt}
        v_xor_b32 v18, s45, v16
        v_lshlrev_b32 v18, 6, v18
        v_add_u32 v{CWA+nt}, v17, v18
        """)

def p1_prep(A, name):
    A.c("prep WGs")
    A(f"""
    s_lshl_b32 s69, s65, 2
    s_add_u32 s69, s69, s64
    s_sub_u32 s69, s69, 28
    s_cmp_ge_u32 s32, 3
    s_cbranch_scc1 {name}_prep_done
    """)
    srd(A, 12, 28, 29, 32*20*20*2)
    A(f"""
    s_cmp_eq_u32 s32, 2
    s_cbranch_scc1 {name}_sel
    s_lshl_b32 s44, s69, 1
    s_add_u32 s44, s44, s32
    v_subrev_u32 v4, 2, v3
    v_cmp_gt_u32 vcc, 18, v3
    v_cndmask_b32 v4, v4, v3, vcc
    v_and_b32 v5, 30, v3
    v_cmp_eq_u32 s[46:47], 20, v5
    s_or_b64 s[46:47], s[46:47], vcc
    v_lshlrev_b32 v4, 1, v4
    s_mul_i32 s45, s44, 800
    v_add_u32 v4, s45, v4
    s_and_b32 s45, s44, 1
    s_mul_i32 s48, s45, {4*40}
    v_mul_u32_u24 v5, {8*40}, v131
    v_add3_u32 v5, v4, v5, s48
    v_mov_b32 v6, 0x7fffffff
    v_cndmask_b32 v5, v6, v5, s[46:47]
    v_cmp_eq_u32 vcc, 0, v131
    s_and_b64 s[46:47], s[46:47], vcc
    s_cmp_eq_u32 s45, 1
    s_cselect_b32 s48, 0, {16*40}
    v_add_u32 v4, s48, v4
    v_cndmask_b32 v4, v6, v4, s[46:47]
    """)
    for j in range(8): A(f"buffer_load_ushort v{16+j}, v5, s[12:15], 0 offen offset:{40*j}")
    for j in range(4): A(f"buffer_load_ushort v{24+j}, v4, s[12:15], 0 offen offset:{40*j}")
    A("s_waitcnt vmcnt(0)")
    for j in range(6): A(f"v_lshl_or_b32 v{32+j}, v{17+2*j}, 16, v{16+2*j}")
    A(f"""
    s_mul_i32 s45, s44, 1536
    s_add_u32 s45, s45, {WPH}
    v_lshlrev_b32 v7, 3, v1
    buffer_store_dwordx4 v[32:35], v2, s[8:11], s45 offen sc1
    buffer_store_dwordx2 v[36:37], v7, s[8:11], s45 offen offset:1024 sc1
    s_branch {name}_prep_done
    {name}_sel:
    s_cmp_lg_u32 s69, 0
    s_cbranch_scc1 {name}_prep_done
    v_lshlrev_b32 v4, 2, v131
    v_sub_u32 v4, v3, v4
    """)
    for j in range(12):
        tgt = (8*(j//4) + (j%4)) if j < 8 else 16 + (j-8)
        A(f"""
        v_cmp_eq_u32 vcc, {tgt}, v4
        v_mov_b32 v5, 0x3f80
        v_cndmask_b32 v{16+j}, 0, v5, vcc
        """)
    for j in range(6): A(f"v_lshl_or_b32 v{32+j}, v{17+2*j}, 16, v{16+2*j}")
    A(f"""
    s_mov_b32 s45, {SEL}
    v_lshlrev_b32 v7, 3, v1
    buffer_store_dwordx4 v[32:35], v2, s[8:11], s45 offen sc1
    buffer_store_dwordx2 v[36:37], v7, s[8:11], s45 offen offset:1024 sc1
    v_mov_b32 v40, 0
    v_mov_b32 v41, 0
    v_mov_b32 v42, 0
    v_mov_b32 v43, 0
    """)
    for j in range(FZERO_BYTES // 1024):
        A(f"s_mov_b32 s45, {FZERO_LO + j*1024}")
        A(f"buffer_store_dwordx4 v[40:43], v2, s[8:11], s45 offen sc1")
    A(f"""
    {name}_prep_done:
    """)
    stamp(A, 1)
    A(f"""
    s_load_dwordx2 s[44:45], s[0:1], 24
    s_load_dwordx2 s[46:47], s[0:1], 48
    s_waitcnt lgkmcnt(0)
    """)
    srd(A, 12, 44, 45, WO_BYTES)
    srd(A, 16, 46, 47, WO_BYTES)
    for i in range(13):
        L = A.new("wr")
        tv = 64 + 4 * i
        A(f"""
        s_add_u32 s48, s32, {8*i}
        s_cmp_ge_u32 s48, 100
        s_cbranch_scc1 {L}
        s_mul_i32 s49, s48, 205
        s_lshr_b32 s49, s49, 11
        s_mul_i32 s50, s49, 10
        s_sub_u32 s50, s48, s50
        s_mul_i32 s51, s69, 10
        s_add_u32 s49, s49, s51
        s_lshl_b32 s50, s50, 6
        v_add_u32 v10, s50, v1
        v_mul_u32_u24 v11, 6554, v10
        v_lshrrev_b32 v11, 16, v11
        v_mul_u32_u24 v12, 10, v11
        v_sub_u32 v12, v10, v12
        v_lshlrev_b32 v12, 4, v12
        v_mul_u32_u24 v11, 1280, v11
        v_add_u32 v10, v11, v12
        s_cmp_ge_u32 s49, 80
        s_cselect_b32 s51, 80, 0
        s_sub_u32 s51, s49, s51
        s_mul_i32 s52, s51, 205
        s_lshr_b32 s52, s52, 11
        s_mul_i32 s54, s52, 10
        s_sub_u32 s54, s51, s54
        s_mul_i32 s54, s54, {64*1280}
        s_mul_i32 s52, s52, 160
        s_add_u32 s54, s54, s52
        s_cmp_ge_u32 s49, 80
        s_cbranch_scc1 {L}_b
        buffer_load_dwordx4 {v(tv,4)}, v10, s[12:15], s54 offen
        s_branch {L}
        {L}_b:
        buffer_load_dwordx4 {v(tv,4)}, v10, s[16:19], s54 offen
        {L}:
        """)
    stamp(A, 2)
    A("s_waitcnt vmcnt(0)")
    stamp(A, 3)
    for i in range(13):
        L = A.new("ws")
        tv = 64 + 4 * i
        A(f"""
        s_add_u32 s48, s32, {8*i}
        s_cmp_ge_u32 s48, 100
        s_cbranch_scc1 {L}
        s_mul_i32 s49, s69, 100
        s_add_u32 s49, s49, s48
        s_lshl_b32 s49, s49, 10
        s_add_u32 s49, s49, {WOP}
        buffer_store_dwordx4 {v(tv,4)}, v2, s[8:11], s49 offen sc1
        {L}:
        """)
    A("s_waitcnt vmcnt(0)")
    stamp(A, 7)
    A(f"""
    s_cmp_eq_u32 s36, 0
    s_cbranch_scc0 {name}_prep_npf
    """)
    prefetch_share(A, 20, 21, 22, 23, 4, 35)
    A(f"""
    {name}_prep_npf:
    s_barrier
    s_cmp_eq_u32 s32, 4
    s_cbranch_scc0 {name}_prep_w
    s_mov_b32 s50, {FPREP}
    """)
    signal_dbg(A, 50, 48, 49)
    check_prep(A, 48, 49)
    A(f"s_mov_b32 s50, {FBW}")
    tile_flags_voff(A, 7)
    poll_ws(A, 7, 50, 16, 60, sleep=64)
    A(f"""
    {name}_prep_w:
    s_barrier
    s_cmp_eq_u32 s36, 0
    s_cbranch_scc1 {name}_prep_q
    """)
    p2_stage_dma(A, 0)
    p2_q_dma(A)
    A(f"""
    {name}_prep_q:
    s_waitcnt vmcnt(0)
    s_barrier
    s_branch {name}_p2entry
    """)

def code_prefetch(A, name, nblk=6):
    if os.environ.get("CODEPF", "1") != "1": return
    L = A.new("cpf")
    A(f"""
    s_cmp_eq_u32 s32, 7
    s_cbranch_scc0 {L}
    s_and_b32 s54, s64, {int(os.environ.get("CPFMASK", "15"))}
    s_cmp_eq_u32 s54, 0
    s_cbranch_scc0 {L}
    s_getpc_b64 s[54:55]
    {L}_pc:
    s_sub_u32 s54, s54, {L}_pc-{name}
    s_subb_u32 s55, s55, 0
    s_mov_b32 s56, {name}_end-{name}
    v_lshlrev_b32 v228, 7, v1
    """)
    for i in range(nblk):
        A(f"""
        v_cmp_gt_u32 vcc, s56, v228
        s_and_b64 exec, vcc, vcc
        s_cbranch_execz {L}_x
        global_load_dword v229, v228, s[54:55]
        v_add_u32 v228, 8192, v228
        """)
    A(f"""
    {L}_x:
    s_mov_b64 exec, -1
    {L}:
    """)

def tlb_warm(A, name):
    mode = os.environ.get("TLBW", "1")
    if mode == "0": return
    L = A.new("tw")
    A(f"""
    s_cmp_eq_u32 s32, 6
    s_cbranch_scc0 {L}
    s_cmp_ge_u32 s64, {32 - int(os.environ.get("TLBN", "1"))}
    s_cbranch_scc0 {L}
    s_load_dwordx2 s[44:45], s[0:1], 24
    s_load_dwordx2 s[46:47], s[0:1], 48
    s_load_dwordx2 s[48:49], s[0:1], 56
    v_lshlrev_b32 v230, 16, v1
    s_waitcnt lgkmcnt(0)
    """)
    for (lo, hi, sz) in ((20, 21, X_BYTES), (22, 23, W_BYTES), (24, 25, X_BYTES), (26, 27, W_BYTES), (44, 45, WO_BYTES), (46, 47, WO_BYTES)):
        srd(A, 12, lo, hi, sz)
        A("buffer_load_dword v231, v230, s[12:15], 0 offen")
    srd(A, 12, 48, 49, OUT_BYTES)
    A("buffer_load_dword v231, v230, s[12:15], 0 offen")
    A("s_mov_b32 s50, 0x400000")
    A("buffer_load_dword v231, v230, s[12:15], s50 offen")
    for i in range(8):
        A(f"s_mov_b32 s50, {i*0x400000:#x}")
        A("buffer_load_dword v231, v230, s[8:11], s50 offen")
    A(f"{L}:")

def gen_fused(A, name):
    kernel_begin(A, name)
    stamp(A, 10, real=True)
    gen_common(A, name)
    stamp(A, 0)
    tlb_warm(A, name)
    code_prefetch(A, name)
    prefetch_share(A, 24, 25, 26, 27, 8, 32)
    A(f"""
    s_cmp_eq_u32 s31, 1
    s_cbranch_scc1 {name}_prep
    s_cmp_eq_u32 s36, 1
    s_cbranch_scc1 {name}_loader
    """)
    if os.environ.get("XP") == "nobar": A("s_endpgm")
    p1_compute_setup(A)

    A(f"""
    s_cmp_ge_u32 s38, 10
    s_cbranch_scc1 {name}_compN
    """)
    p1_compute(A, name, "T")
    A(f"{name}_compN:")
    p1_compute(A, name, "N")
    A(f"{name}_cdone:")
    A("s_barrier")
    A(f"s_branch {name}_p2entry")
    A(f"{name}_prep:")
    p1_prep(A, name)
    A(f"{name}_loader:")
    p1_loader(A, name)
    A(f"{name}_p2entry:")
    stamp(A, 4)
    if STOP_AFTER == "P1":
        A("s_waitcnt vmcnt(0)")
        stamp(A, 9)
        stamp(A, 11, real=True)
        stamp_flush(A, 12, 0, 32, base=70)
        A("s_endpgm")
    else:
        import fused2
        fused2.gen_p2(A, name)
    A(f"{name}_done:")
    A("s_endpgm")
    A(f"{name}_end:")
    return kernel_desc(name, 256)
```

```python
import os
from asmlib import *
from layout2 import *
import fused
from fused import (poll_ws, set_flag_ws, check_prep, tile_flags_voff, p2_stage_dma, frag_addr, QA_M, QB_M, QA_R, QB_R, SPIN_MAX, STOP_AFTER)

S0, S1, P0, P1, OA, OB = 16, 32, 48, 56, 64, 80
SETS = [dict(km=96, kr=100, v0=104, v1=108), dict(km=112, kr=116, v0=120, v1=124)]
AKM, AKR, AV = 128, 129, 130
NKM, NKR, NV = 133, 134, 135
PHQ = 136
KXM, KXR, QXR, VX0, VX1, WM, WR, SL16, SL8, QXM = 148, 152, 154, 156, 160, 164, 168, 172, 176, 180
KVL = 148
T0, T1, T2, T3 = 184, 185, 186, 187
DD, TT, PK, TB = 192, 208, 232, 244
KVF = 4 * SLOT
KVX = 98304
XO = 0

def mf16(A, D, a_, b_, C=None):
    A(f"v_mfma_f32_32x32x16_bf16 {v(D,16)}, {v(a_,4)}, {v(b_,4)}, {v(D,16) if C is None else C}")
def mf8(A, D, a_, b_, C=None):
    A(f"v_mfma_f32_32x32x8_bf16 {v(D,16)}, {v(a_,2)}, {v(b_,2)}, {v(D,16) if C is None else C}")

def phi(A, xm, xr, wm, wr, D, T, out):
    mf16(A, D, wm, xm, "0")
    mf8(A, D, wr, xr)
    mx, mn, t = T, T+1, T+2
    A(f"v_max3_f32 v{mx}, v{D}, v{D+1}, v{D+2}")
    A(f"v_min3_f32 v{mn}, v{D}, v{D+1}, v{D+2}")
    for r in (3, 5, 7):
        A(f"v_max3_f32 v{mx}, v{mx}, v{D+r}, v{D+r+1}")
        A(f"v_min3_f32 v{mn}, v{mn}, v{D+r}, v{D+r+1}")
    A(f"v_max_f32 v{mx}, v{mx}, v{D+9}")
    A(f"v_min_f32 v{mn}, v{mn}, v{D+9}")
    A(f"v_mov_b32 v{t}, v{mx}")
    A(f"v_mov_b32 v{t+1}, v{mn}")
    A(f"v_permlane32_swap_b32 v{mx}, v{t}")
    A(f"v_permlane32_swap_b32 v{mn}, v{t+1}")
    A(f"v_max_f32 v{mx}, v{mx}, v{t}")
    A(f"v_min_f32 v{mn}, v{mn}, v{t+1}")
    A(f"v_mul_f32 v{mx}, s41, v{mx}")
    A(f"v_mul_f32 v{mn}, s40, v{mn}")
    EP, EN = T+4, T+14
    for r in range(10):
        A(f"v_fma_f32 v{EP+r}, v{D+r}, s40, v{mx}")
        A(f"v_fma_f32 v{EN+r}, v{D+r}, s41, v{mn}")
    for r in range(10):
        A(f"v_exp_f32 v{EP+r}, v{EP+r}")
        A(f"v_exp_f32 v{EN+r}, v{EN+r}")
    sp, sn = T, T+1
    A(f"v_add_f32 v{sp}, v{EP}, v{EP+1}")
    A(f"v_add_f32 v{sn}, v{EN}, v{EN+1}")
    for r in range(2, 10):
        A(f"v_add_f32 v{sp}, v{sp}, v{EP+r}")
        A(f"v_add_f32 v{sn}, v{sn}, v{EN+r}")
    A(f"v_mov_b32 v{t}, v{sp}")
    A(f"v_mov_b32 v{t+1}, v{sn}")
    A(f"v_permlane32_swap_b32 v{sp}, v{t}")
    A(f"v_permlane32_swap_b32 v{sn}, v{t+1}")
    A(f"v_add_f32 v{sp}, v{sp}, v{t}")
    A(f"v_add_f32 v{sn}, v{sn}, v{t+1}")
    A(f"v_rcp_f32 v{sp}, v{sp}")
    A(f"v_rcp_f32 v{sn}, v{sn}")
    for r in range(10):
        A(f"v_mul_f32 v{EP+r}, v{EP+r}, v{sp}")
        A(f"v_mul_f32 v{EN+r}, v{EN+r}, v{sn}")
    for i in range(4):
        A(f"v_cvt_pk_bf16_f32 v{out+i}, v{EP+2*i}, v{EP+2*i+1}")
        A(f"v_cvt_pk_bf16_f32 v{out+6+i}, v{EN+2*i}, v{EN+2*i+1}")
    A(f"v_cvt_pk_bf16_f32 v{out+4}, v{EP+8}, v{EP+9}")
    A(f"v_cvt_pk_bf16_f32 v{out+10}, v{EN+8}, v{EN+9}")
    A(f"v_mov_b32 v{out+5}, 0")
    A(f"v_mov_b32 v{out+11}, 0")

def phase(A, Sc, Pc, Sn, qm, qr, kset, Oprev, Pprev, vset, do_qk=True, do_pv=True, do_exp=True, pre=None):
    pre = list(pre or [])
    def ex(i):
        if do_exp: A(f"v_exp_f32 v{Sc+i}, v{Sc+i}")
    def cv(i):
        if do_exp: A(f"v_cvt_pk_bf16_f32 v{Pc+i}, v{Sc+2*i}, v{Sc+2*i+1}")
    def sprinkle(n):
        for _ in range(n):
            if pre:
                for l in pre.pop(0): A(l)
    if do_qk: mf16(A, Sn, kset['km'], qm, "0")
    sprinkle(1)
    for i in range(0, 4): ex(i)
    if do_qk: mf8(A, Sn, kset['kr'], qr)
    sprinkle(1)
    for i in range(4, 8): ex(i)
    cv(0); cv(1)
    if do_pv: mf16(A, Oprev, vset['v0'], Pprev)
    for i in range(8, 12): ex(i)
    cv(2); cv(3)
    if do_pv: mf16(A, Oprev, vset['v1'], Pprev + 4)
    for i in range(12, 16): ex(i)
    cv(4); cv(5)
    sprinkle(8)
    cv(6); cv(7)

def o_addr(A, vd):
    A(f"""
    s_mul_i32 s55, s33, 20
    v_lshlrev_b32 v{vd}, 2, v131
    v_add_u32 v{vd}, s55, v{vd}
    v_and_b32 v{vd+1}, 7, v{vd}
    v_lshlrev_b32 v{vd+1}, 1, v{vd+1}
    v_lshrrev_b32 v{vd}, 3, v{vd}
    v_lshlrev_b32 v{vd}, 10, v{vd}
    v_add_u32 v{vd}, v{vd}, v{vd+1}
    s_lshl_b32 s55, s36, 5
    v_add_u32 v{vd+1}, s55, v3
    v_lshlrev_b32 v{vd+1}, 4, v{vd+1}
    v_add_u32 v{vd}, v{vd}, v{vd+1}
    s_lshl_b32 s55, s34, 2
    s_add_u32 s55, s55, s35
    s_mul_i32 s55, s55, {ORB}
    s_add_u32 s55, s55, {OOFF}
    """)
def store_o(A, R, tmp, vaddr, soff):
    for i in range(3):
        A(f"v_cvt_pk_bf16_f32 v{tmp+2*i}, v{R+4*i}, v{R+4*i+1}")
        A(f"v_cvt_pk_bf16_f32 v{tmp+1+2*i}, v{R+4*i+2}, v{R+4*i+3}")
    A(f"buffer_store_dwordx2 {v(tmp,2)}, v{vaddr}, s[8:11], s{soff} offen sc1")
    A(f"buffer_store_dwordx2 {v(tmp+2,2)}, v{vaddr}, s[8:11], s{soff} offen offset:1024 sc1")
    A("s_mov_b32 exec_hi, 0")
    A(f"buffer_store_dwordx2 {v(tmp+4,2)}, v{vaddr}, s[8:11], s{soff} offen offset:2048 sc1")
    A("s_mov_b64 exec, -1")
def fo_flag(A, br):
    A(f"""
    s_lshl_b32 s56, s34, 2
    s_add_u32 s56, s56, s35
    s_lshl_b32 s56, s56, 8
    s_lshl_b32 s57, s33, 3
    s_add_u32 s56, s56, s57
    s_lshl_b32 s57, s36, 2
    s_add_u32 s56, s56, s57
    s_add_u32 s56, s56, {FO + br*8192}
    """)
    set_flag_ws(A, 56, T0, T1)

def a_loads(A):
    frag_addr(A, T0, T1)
    A(f"""
    s_lshl_b32 s56, s34, 8
    s_lshl_b32 s57, s32, 5
    s_add_u32 s57, s57, s56
    s_lshl_b32 s57, s57, 4
    s_add_u32 s57, s57, {QKOFF}
    s_add_u32 s58, s66, 80
    s_lshl_b32 s58, s58, 15
    s_add_u32 s58, s58, s57
    buffer_load_dwordx4 {v(KXM,4)}, v{T0}, s[8:11], s58 offen sc1
    s_add_u32 s58, s67, 80
    s_lshl_b32 s58, s58, 15
    s_add_u32 s58, s58, s57
    buffer_load_dwordx2 {v(KXR,2)}, v{T1}, s[8:11], s58 offen sc1
    s_lshl_b32 s57, s35, 1
    s_add_u32 s57, s57, s36
    s_lshl_b32 s57, s57, 5
    s_add_u32 s57, s57, s56
    s_lshl_b32 s57, s57, 4
    s_add_u32 s57, s57, {QKOFF}
    s_lshl_b32 s58, s66, 15
    s_add_u32 s58, s58, s57
    buffer_load_dwordx4 {v(QXM,4)}, v{T0}, s[8:11], s58 offen sc1
    s_lshl_b32 s58, s67, 15
    s_add_u32 s58, s58, s57
    buffer_load_dwordx2 {v(QXR,2)}, v{T1}, s[8:11], s58 offen sc1
    v_mov_b32 v{T2}, 0x3f803f80
    v_cmp_eq_u32 vcc, 20, v3
    v_cndmask_b32 v{T2}, 0, v{T2}, vcc
    """)
    for r in range(VX0, VX0+8): A(f"v_mov_b32 v{r}, v{T2}")
    A(f"""
    v_mul_u32_u24 v{T2}, 320, v131
    v_lshlrev_b32 v{T3}, 4, v3
    v_add_u32 v{T2}, v{T2}, v{T3}
    s_lshl_b32 s56, s34, 1
    s_lshr_b32 s57, s32, 2
    s_add_u32 s56, s56, s57
    s_mul_i32 s56, s56, {VC}
    s_and_b32 s57, s32, 3
    s_mul_i32 s57, s57, 1280
    s_add_u32 s56, s56, s57
    s_mul_i32 s57, s33, {VH}
    s_add_u32 s56, s56, s57
    s_add_u32 s56, s56, {VOFF}
    s_mov_b64 exec, s[42:43]
    buffer_load_dwordx4 {v(VX0,4)}, v{T2}, s[8:11], s56 offen sc1
    buffer_load_dwordx4 {v(VX1,4)}, v{T2}, s[8:11], s56 offen offset:640 sc1
    s_mov_b64 exec, -1
    v_lshlrev_b32 v{T3}, 3, v1
    s_mul_i32 s56, s33, 1536
    s_add_u32 s56, s56, {WPH}
    buffer_load_dwordx4 {v(WM,4)}, v2, s[8:11], s56 offen sc1
    buffer_load_dwordx2 {v(WR,2)}, v{T3}, s[8:11], s56 offen offset:1024 sc1
    s_mov_b32 s56, {SEL}
    buffer_load_dwordx4 {v(SL16,4)}, v2, s[8:11], s56 offen sc1
    buffer_load_dwordx2 {v(SL8,2)}, v{T3}, s[8:11], s56 offen offset:1024 sc1
    """)

def phi_list(xm, xr, wm, wr, D, EN, out):
    L = []
    mx, mn, t, u = D+10, D+11, D+12, D+13
    L.append(f"v_mfma_f32_32x32x16_bf16 {v(D,16)}, {v(wm,4)}, {v(xm,4)}, 0")
    L.append(f"v_mfma_f32_32x32x8_bf16 {v(D,16)}, {v(wr,2)}, {v(xr,2)}, {v(D,16)}")
    L.append(f"v_max3_f32 v{mx}, v{D}, v{D+1}, v{D+2}")
    L.append(f"v_min3_f32 v{mn}, v{D}, v{D+1}, v{D+2}")
    for r in (3, 5, 7):
        L.append(f"v_max3_f32 v{mx}, v{mx}, v{D+r}, v{D+r+1}")
        L.append(f"v_min3_f32 v{mn}, v{mn}, v{D+r}, v{D+r+1}")
    L.append(f"v_max_f32 v{mx}, v{mx}, v{D+9}")
    L.append(f"v_min_f32 v{mn}, v{mn}, v{D+9}")
    L.append(f"v_mov_b32 v{t}, v{mx}")
    L.append(f"v_mov_b32 v{u}, v{mn}")
    L.append(f"v_permlane32_swap_b32 v{mx}, v{t}")
    L.append(f"v_permlane32_swap_b32 v{mn}, v{u}")
    L.append(f"v_max_f32 v{mx}, v{mx}, v{t}")
    L.append(f"v_min_f32 v{mn}, v{mn}, v{u}")
    L.append(f"v_mul_f32 v{mx}, s41, v{mx}")
    L.append(f"v_mul_f32 v{mn}, s40, v{mn}")
    for r in range(10):
        L.append(f"v_fma_f32 v{EN+r}, v{D+r}, s41, v{mn}")
        L.append(f"v_fma_f32 v{D+r}, v{D+r}, s40, v{mx}")
    for r in range(10):
        L.append(f"v_exp_f32 v{EN+r}, v{EN+r}")
        L.append(f"v_exp_f32 v{D+r}, v{D+r}")
    sp, sn = mx, mn
    L.append(f"v_add_f32 v{sp}, v{D}, v{D+1}")
    L.append(f"v_add_f32 v{sn}, v{EN}, v{EN+1}")
    for r in range(2, 10):
        L.append(f"v_add_f32 v{sp}, v{sp}, v{D+r}")
        L.append(f"v_add_f32 v{sn}, v{sn}, v{EN+r}")
    L.append(f"v_mov_b32 v{t}, v{sp}")
    L.append(f"v_mov_b32 v{u}, v{sn}")
    L.append(f"v_permlane32_swap_b32 v{sp}, v{t}")
    L.append(f"v_permlane32_swap_b32 v{sn}, v{u}")
    L.append(f"v_add_f32 v{sp}, v{sp}, v{t}")
    L.append(f"v_add_f32 v{sn}, v{sn}, v{u}")
    L.append(f"v_rcp_f32 v{sp}, v{sp}")
    L.append(f"v_rcp_f32 v{sn}, v{sn}")
    for r in range(10):
        L.append(f"v_mul_f32 v{D+r}, v{D+r}, v{sp}")
        L.append(f"v_mul_f32 v{EN+r}, v{EN+r}, v{sn}")
    for i in range(4):
        L.append(f"v_cvt_pk_bf16_f32 v{out+i}, v{D+2*i}, v{D+2*i+1}")
        L.append(f"v_cvt_pk_bf16_f32 v{out+6+i}, v{EN+2*i}, v{EN+2*i+1}")
    L.append(f"v_cvt_pk_bf16_f32 v{out+4}, v{D+8}, v{D+9}")
    L.append(f"v_cvt_pk_bf16_f32 v{out+10}, v{EN+8}, v{EN+9}")
    L.append(f"v_mov_b32 v{out+5}, 0")
    L.append(f"v_mov_b32 v{out+11}, 0")
    return L

def a_compute(A):
    DK, ENK, DQ, ENQ, PKK = 192, 208, 218, 234, 244
    Lk = phi_list(KXM, KXR, WM, WR, DK, ENK, PKK)
    Lq = phi_list(QXM, QXR, WM, WR, DQ, ENQ, PHQ)
    for a_, b_ in zip(Lk, Lq):
        A(a_); A(b_)
    TP0, TP1 = 192, 208
    TB0, TB1 = 224, 232
    A(f"s_mul_i32 s55, s32, 5120")
    A(f"s_add_u32 s55, s55, {KVX}")
    A(f"v_add_u32 v{T0}, s55, v2")
    mf16(A, TP0, PKK, SL16, "0"); mf16(A, TP1, PKK+6, SL16, "0")
    mf8(A, TP0, PKK+4, SL8); mf8(A, TP1, PKK+10, SL8)
    for i in range(8): A(f"v_cvt_pk_bf16_f32 v{TB0+i}, v{TP0+2*i}, v{TP0+2*i+1}")
    for i in range(8): A(f"v_cvt_pk_bf16_f32 v{TB1+i}, v{TP1+2*i}, v{TP1+2*i+1}")
    KA0, KA1 = 192, 208
    mf16(A, KA0, TB0, VX0, "0"); mf16(A, KA1, TB1, VX0, "0")
    mf16(A, KA0, TB0+4, VX1); mf16(A, KA1, TB1+4, VX1)
    A(f"ds_write_b128 v{T0}, {v(KA0,4)}")
    A(f"ds_write_b128 v{T0}, {v(KA0+4,4)} offset:1024")
    A(f"v_mov_b32 v{KA0+10}, v{KA1+8}")
    A(f"v_mov_b32 v{KA0+11}, v{KA1+9}")
    A(f"ds_write_b128 v{T0}, {v(KA1,4)} offset:3072")
    A(f"ds_write_b128 v{T0}, {v(KA1+4,4)} offset:4096")
    A(f"ds_write_b128 v{T0}, {v(KA0+8,4)} offset:2048")

def kv_dma_setup(A):
    for e in range(3):
        L = A.new("kd")
        A(f"""
        s_mul_i32 s55, s32, 3
        s_add_u32 s55, s55, {e}
        s_min_u32 s55, s55, 21
        s_cmp_ge_u32 s55, 11
        s_cselect_b32 s56, 1, 0
        s_mul_i32 s57, s56, 11
        s_sub_u32 s55, s55, s57
        s_mul_i32 s57, s56, {PART}
        s_lshl_b32 s58, s55, 10
        s_add_u32 s{50+e}, s57, s58
        s_lshl_b32 s56, s56, 3
        s_cmp_ge_u32 s55, 6
        s_cbranch_scc1 {L}_v
        s_lshr_b32 s57, s55, 1
        s_add_u32 s58, s66, s57
        s_cmp_eq_u32 s57, 2
        s_cselect_b32 s58, s67, s58
        s_add_u32 s58, s58, 80
        s_lshl_b32 s58, s58, 15
        s_lshl_b32 s56, s56, 11
        s_add_u32 s58, s58, s56
        s_and_b32 s57, s55, 1
        s_lshl_b32 s57, s57, 10
        s_add_u32 s58, s58, s57
        s_add_u32 s{44+e}, s58, {BR + QKOFF}
        s_mov_b32 s{47+e}, 2048
        s_branch {L}_e
        {L}_v:
        s_mul_i32 s56, s56, {VC}
        s_sub_u32 s57, s55, 6
        s_lshl_b32 s57, s57, 10
        s_add_u32 s56, s56, s57
        s_add_u32 s{44+e}, s56, s53
        s_mov_b32 s{47+e}, {VC}
        {L}_e:
        s_add_u32 s{44+e}, s{44+e}, s{47+e}
        """)
def kv_dma_issue(A, SB):
    for e in range(3):
        A(f"s_add_u32 m0, s{SB}, s{50+e}")
        A(f"s_nop 0")
        A(f"buffer_load_dwordx4 v2, s[8:11], s{44+e} offen sc1 lds")
        A(f"s_add_u32 s{44+e}, s{44+e}, s{47+e}")

def wo_prefetch(A, level):
    A(f"""
    s_mul_i32 s55, s64, 51200
    s_lshl_b32 s56, s32, 10
    s_add_u32 s55, s55, s56
    s_add_u32 s55, s55, {WOP}
    """)
    for r in range(7):
        if r == 6:
            A("s_cmp_ge_u32 s32, 2")
            A("s_cbranch_scc1 WOPFC")
        A(f"s_add_u32 s56, s55, {r*8192}")
        A(f"buffer_load_dwordx4 v[252:255], v2, s[8:11], s56 offen")
    A("WOPFC:")

def gen_p2(A, name):
    SI, SB, MK1, MK3 = 60, 61, 62, 63
    fused.p2_q_reads(A)
    kv_dma_setup(A)
    for st in (1, 2, 3):
        A(f"s_mov_b32 s{SB}, {st*SLOT}")
        kv_dma_issue(A, SB)
    A(f"""
    v_mov_b32 v{T0}, 0x3f803f80
    v_cmp_eq_u32 vcc, 20, v3
    v_cndmask_b32 v{T0}, 0, v{T0}, vcc
    """)
    for r in [SETS[0]['v0']+i for i in range(8)] + [SETS[1]['v0']+i for i in range(8)]: A(f"v_mov_b32 v{r}, v{T0}")
    A(f"""
    s_mul_i32 s55, s36, {PART}
    v_lshlrev_b32 v{T0}, 11, v131
    v_lshlrev_b32 v{T1}, 4, v3
    v_add3_u32 v{AKM}, v{T0}, v{T1}, s55
    s_add_u32 s56, s55, 4096
    s_add_u32 s56, s56, s68
    v_add_u32 v{AKR}, s56, v{T1}
    v_mul_u32_u24 v{T0}, 320, v131
    s_add_u32 s56, s55, 6144
    v_add3_u32 v{AV}, v{T0}, v{T1}, s56
    v_add_u32 v{NKM}, {SLOT}, v{AKM}
    v_add_u32 v{NKR}, {SLOT}, v{AKR}
    v_add_u32 v{NV}, {SLOT}, v{AV}
    """)
    for r in range(OA, OA+32): A(f"v_mov_b32 v{r}, 0")
    for r in range(P1, P1+8): A(f"v_mov_b32 v{r}, 0")
    A(f"""
    s_mov_b32 s{MK1}, {(1<<2)|(1<<4)|(1<<6):#x}
    s_mov_b32 s{MK3}, {(1<<2)|(1<<6):#x}
    s_cmp_eq_u32 s36, 1
    s_cselect_b32 s56, {1<<7:#x}, 0
    s_or_b32 s{MK3}, s{MK3}, s56
    s_cmp_eq_u32 s32, 0
    s_cselect_b32 s56, {1<<1:#x}, 0
    s_or_b32 s{MK1}, s{MK1}, s56
    s_cmp_lt_u32 s32, 5
    s_cselect_b32 s55, {(1<<3)|(1<<5):#x}, 0
    s_cselect_b32 s56, {(1<<3)|(1<<4):#x}, 0
    s_or_b32 s{MK1}, s{MK1}, s55
    s_or_b32 s{MK3}, s{MK3}, s56
    s_cmp_eq_u32 s32, 0
    s_cselect_b32 s55, 1, 0
    s_andn2_b32 s55, s55, s31
    s_or_b32 s{MK1}, s{MK1}, s55
    """)
    if os.environ.get("NOHOOK") == "1":
        A(f"s_mov_b32 s{MK1}, 0"); A(f"s_mov_b32 s{MK3}, 0")
    def loads(kset, ktile, vset, vtile, nxtK, nxtV):
        L = []
        ak, akr = (NKM, NKR) if nxtK else (AKM, AKR)
        av = NV if nxtV else AV
        L.append([f"ds_read_b128 {v(kset['km'],4)}, v{ak} offset:{ktile*512}",
                  f"ds_read_b64 {v(kset['kr'],2)}, v{akr} offset:{ktile*512}"])
        if vset is not None:
            L.append(["s_mov_b64 exec, s[42:43]",
                      f"ds_read_b128 {v(vset['v0'],4)}, v{av} offset:{vtile*1280}",
                      f"ds_read_b128 {v(vset['v1'],4)}, v{av} offset:{vtile*1280+640}",
                      "s_mov_b64 exec, -1"])
        return L
    for g in loads(SETS[1], 0, None, 0, False, False) + loads(SETS[0], 1, SETS[0], 0, False, False):
        for l in g: A(l)
    A("s_waitcnt lgkmcnt(0)")
    mf16(A, S0, SETS[1]['km'], QA_M, "0"); mf8(A, S0, SETS[1]['kr'], QA_R)
    A("s_nop 7")
    phase(A, S0, P0, S1, QB_M, QB_R, SETS[1], OB, P1, SETS[1], do_pv=False)
    if os.environ.get("DIAG") != "stage": stamp(A, 5)
    A(f"s_mov_b32 s{SI}, 0")
    A(f"s_mov_b32 s{SB}, {3*SLOT}")
    A(f"{name}_stage:")
    for i in range(4):
        cur = SETS[i % 2]; nxt = SETS[(i + 1) % 2]
        kt, vt = i + 2, i + 1
        L = loads(nxt, kt % 4, nxt, vt % 4, kt >= 4, vt >= 4)
        A("s_waitcnt lgkmcnt(0)")
        if i == 1:
            A(f"""
            s_waitcnt vmcnt(0)
            s_barrier
            """)
            if STAMPS and os.environ.get("DIAG") == "stage":
                for s_ in range(8):
                    L_ = A.new("dg")
                    A(f"s_cmp_eq_u32 s{SI}, {s_}")
                    A(f"s_cbranch_scc0 {L_}")
                    stamp(A, 1 + s_)
                    A(f"{L_}:")
            A(f"""
            s_bitcmp1_b32 s{MK1}, s{SI}
            s_cbranch_scc1 {name}_hk1
            {name}_rt1:
            """)
        if i == 2:
            A(f"""
            s_sub_u32 s55, s{SI}, 1
            s_cmp_lt_u32 s55, 4
            s_cbranch_scc0 {name}_nodma
            s_add_u32 s{SB}, s{SB}, {SLOT}
            s_cmp_eq_u32 s{SB}, {4*SLOT}
            s_cselect_b32 s{SB}, 0, s{SB}
            """)
            kv_dma_issue(A, SB)
            A(f"{name}_nodma:")
        if i == 3:
            A(f"""
            s_bitcmp1_b32 s{MK3}, s{SI}
            s_cbranch_scc1 {name}_hk3
            {name}_rt3:
            """)
        phase(A, S1, P1, S0, QA_M, QA_R, cur, OA, P0, cur, pre=L)
        if i == 3:
            A(f"""
            s_cmp_eq_u32 s{SI}, 7
            s_cbranch_scc1 {name}_tail
            """)
        phase(A, S0, P0, S1, QB_M, QB_R, cur, OB, P1, cur)
    A(f"""
    v_mov_b32 v{AKM}, v{NKM}
    v_mov_b32 v{AKR}, v{NKR}
    v_mov_b32 v{AV}, v{NV}
    s_add_u32 s{SI}, s{SI}, 1
    s_and_b32 s55, s{SI}, 3
    s_cmp_eq_u32 s55, 3
    s_mov_b32 s55, {SLOT}
    s_cselect_b32 s55, {(-3*SLOT) & 0xffffffff:#x}, s55
    v_add_u32 v{NKM}, s55, v{NKM}
    v_add_u32 v{NKR}, s55, v{NKR}
    v_add_u32 v{NV}, s55, v{NV}
    s_branch {name}_stage
    """)
    A(f"{name}_hk1:")
    A(f"""
    s_cmp_eq_u32 s{SI}, 0
    s_cbranch_scc1 {name}_h10
    s_cmp_eq_u32 s{SI}, 1
    s_cbranch_scc1 {name}_h11
    s_cmp_eq_u32 s{SI}, 2
    s_cbranch_scc1 {name}_h21
    s_cmp_eq_u32 s{SI}, 3
    s_cbranch_scc1 {name}_h31
    s_cmp_eq_u32 s{SI}, 4
    s_cbranch_scc1 {name}_h41
    s_cmp_eq_u32 s{SI}, 5
    s_cbranch_scc1 {name}_h51
    s_cmp_eq_u32 s{SI}, 6
    s_cbranch_scc1 {name}_h61
    s_branch {name}_rt1
    """)
    A(f"""
    {name}_h10:
    s_lshl_b32 s55, s38, 7
    s_lshl_b32 s56, s37, 2
    s_add_u32 s55, s55, s56
    s_add_u32 s55, s55, {FAW}
    """)
    set_flag_ws(A, 55, T0, T1)
    A(f"s_branch {name}_rt1")
    A(f"{name}_h11:")
    A(f"s_mov_b32 s55, {FAW}")
    tile_flags_voff(A, T0)
    poll_ws(A, T0, 55, DD, 60)
    A(f"s_branch {name}_rt1")
    A(f"{name}_h21:")
    a_loads(A)
    A(f"s_branch {name}_rt1")
    A(f"""
    {name}_h31:
    s_lshl_b32 s55, s32, 10
    s_add_u32 s55, s55, {KVX}
    v_add_u32 v{T0}, s55, v2
    """)
    for j in range(8): A(f"ds_read_b128 {v(DD+4*j,4)}, v{T0} offset:{j*5120}")
    A(f"""
    s_mul_i32 s55, s33, {8*5120}
    s_mul_i32 s56, s34, 5120
    s_add_u32 s55, s55, s56
    s_lshl_b32 s56, s32, 10
    s_add_u32 s55, s55, s56
    s_add_u32 s55, s55, {KVP}
    s_waitcnt lgkmcnt(0)
    """)
    for j in range(1, 8):
        for e in range(4): A(f"v_add_f32 v{DD+e}, v{DD+e}, v{DD+4*j+e}")
    A(f"""
    buffer_store_dwordx4 {v(DD,4)}, v2, s[8:11], s55 offen sc1
    s_branch {name}_rt1
    """)
    A(f"{name}_h41:")
    wo_prefetch(A, 1)
    A(f"s_branch {name}_rt1")
    A(f"""
    {name}_h51:
    s_cmp_ge_u32 s32, 5
    s_cbranch_scc1 {name}_rt1
    """)
    for j in range(1, 8):
        for e in range(4): A(f"v_add_f32 v{KVL+e}, v{KVL+e}, v{KVL+4*j+e}")
    A(f"""
    v_cvt_pk_bf16_f32 v{DD}, v{KVL}, v{KVL+1}
    v_cvt_pk_bf16_f32 v{DD+1}, v{KVL+2}, v{KVL+3}
    s_cmp_eq_u32 s32, 2
    s_cbranch_scc1 {name}_kv2
    s_cmp_ge_u32 s32, 3
    s_cselect_b32 s55, 1024, 0
    s_cmp_eq_u32 s32, 1
    s_cselect_b32 s56, 8, 0
    s_cmp_eq_u32 s32, 4
    s_cselect_b32 s56, 8, s56
    s_add_u32 s55, s55, s56
    s_add_u32 s55, s55, {KVF}
    v_add_u32 v{T1}, s55, v2
    ds_write_b64 v{T1}, {v(DD,2)}
    s_branch {name}_rt1
    {name}_kv2:
    v_mov_b32 v{DD+2}, v{DD+1}
    v_mov_b32 v{DD+1}, 0
    v_mov_b32 v{DD+3}, 0
    v_lshlrev_b32 v{T1}, 3, v1
    v_add_u32 v{T1}, {KVF+2048}, v{T1}
    ds_write_b64 v{T1}, {v(DD,2)}
    ds_write_b64 v{T1}, {v(DD+2,2)} offset:512
    s_branch {name}_rt1
    """)
    A(f"""
    {name}_h61:
    v_add_u32 v{T1}, {KVF}, v2
    v_lshlrev_b32 v{T2}, 3, v1
    v_add_u32 v{T2}, {KVF+2048}, v{T2}
    ds_read_b128 {v(TT,4)}, v{T1}
    ds_read_b128 {v(TT+4,4)}, v{T1} offset:1024
    ds_read_b64 {v(TT+8,2)}, v{T2}
    ds_read_b64 {v(TT+10,2)}, v{T2} offset:512
    s_waitcnt lgkmcnt(0)
    """)
    mf16(A, DD, TT, PHQ, "0"); mf8(A, DD, TT+8, PHQ+4); mf16(A, DD, TT+4, PHQ+6); mf8(A, DD, TT+10, PHQ+10)
    o_addr(A, T2)
    A(f"""
    v_mov_b32 v{TT}, v{DD+8}
    v_mov_b32 v{TT+1}, v{DD+8}
    v_permlane32_swap_b32 v{TT}, v{TT+1}
    v_add_f32 v{TT+1}, 0x358637bd, v{TT+1}
    v_rcp_f32 v{TT+1}, v{TT+1}
    s_nop 0
    """)
    for r in range(12): A(f"v_mul_f32 v{DD+r}, v{DD+r}, v{TT+1}")
    store_o(A, DD, TT+2, T2, 55)
    A(f"s_branch {name}_rt1")
    A(f"""
    {name}_hk3:
    s_cmp_eq_u32 s{SI}, 1
    s_cbranch_scc1 {name}_h13
    s_cmp_eq_u32 s{SI}, 2
    s_cbranch_scc1 {name}_h23
    s_cmp_eq_u32 s{SI}, 3
    s_cbranch_scc1 {name}_h33
    s_cmp_eq_u32 s{SI}, 4
    s_cbranch_scc1 {name}_h43
    s_cmp_eq_u32 s{SI}, 6
    s_cbranch_scc1 {name}_h63
    s_cmp_eq_u32 s{SI}, 7
    s_cbranch_scc1 {name}_h73
    s_branch {name}_rt3
    """)
    if STOP_AFTER != "P2":
        import fused3
        A(f"{name}_h73:")
        fused3.p3_prefetch(A, name)
        A(f"s_branch {name}_rt3")
    else:
        A(f"{name}_h73:")
        A(f"s_branch {name}_rt3")
    A(f"{name}_h23:")
    A("s_waitcnt vmcnt(0)")
    a_compute(A)
    A(f"s_branch {name}_rt3")
    A(f"{name}_h13:")
    A(f"s_branch {name}_rt3")
    A(f"""
    {name}_h33:
    s_cmp_ge_u32 s32, 5
    s_cbranch_scc1 {name}_rt3
    s_waitcnt vmcnt(0)
    s_lshl_b32 s55, s33, 8
    s_lshl_b32 s56, s32, 5
    s_add_u32 s55, s55, s56
    s_lshl_b32 s56, s34, 2
    s_add_u32 s55, s55, s56
    s_add_u32 s55, s55, {FKVW}
    """)
    set_flag_ws(A, 55, T0, T1)
    A(f"s_branch {name}_rt3")
    A(f"""
    {name}_h43:
    s_cmp_ge_u32 s32, 5
    s_cbranch_scc1 {name}_rt3
    s_lshl_b32 s55, s33, 8
    s_lshl_b32 s56, s32, 5
    s_add_u32 s55, s55, s56
    s_add_u32 s55, s55, {FKVW}
    v_lshlrev_b32 v{T0}, 2, v1
    """)
    poll_ws(A, T0, 55, DD, 8, width=1)
    A(f"""
    s_mul_i32 s55, s33, {8*5120}
    s_lshl_b32 s56, s32, 10
    s_add_u32 s55, s55, s56
    s_add_u32 s55, s55, {KVP}
    """)
    for j in range(8):
        A(f"s_add_u32 s56, s55, {j*5120}")
        A(f"buffer_load_dwordx4 {v(KVL+4*j,4)}, v2, s[8:11], s56 offen sc1")
    A(f"s_branch {name}_rt3")
    A(f"""
    {name}_h63:
    s_waitcnt vmcnt(0)
    """)
    fo_flag(A, 0)
    A(f"s_branch {name}_rt3")
    A(f"{name}_tail:")
    cur = SETS[1]
    mf16(A, OB, cur['v0'], P1); mf16(A, OB, cur['v1'], P1 + 4)
    if os.environ.get("DIAG") != "stage": stamp(A, 6)
    A(f"""
    s_mul_i32 s55, s32, 3072
    s_add_u32 s55, s55, {XO}
    v_add_u32 v{T0}, s55, v2
    s_cmp_eq_u32 s36, 0
    s_cbranch_scc1 {name}_x0
    ds_write_b128 v{T0}, {v(OA,4)}
    ds_write_b128 v{T0}, {v(OA+4,4)} offset:1024
    ds_write_b128 v{T0}, {v(OA+8,4)} offset:2048
    """)
    for r in range(12): A(f"v_mov_b32 v{OA+r}, v{OB+r}")
    A(f"""
    s_branch {name}_x1
    {name}_x0:
    ds_write_b128 v{T0}, {v(OB,4)}
    ds_write_b128 v{T0}, {v(OB+4,4)} offset:1024
    ds_write_b128 v{T0}, {v(OB+8,4)} offset:2048
    {name}_x1:
    s_waitcnt lgkmcnt(0)
    s_barrier
    s_xor_b32 s55, s32, 4
    s_mul_i32 s55, s55, 3072
    s_add_u32 s55, s55, {XO}
    v_add_u32 v{T0}, s55, v2
    ds_read_b128 v[16:19], v{T0}
    ds_read_b128 v[20:23], v{T0} offset:1024
    ds_read_b128 v[24:27], v{T0} offset:2048
    """)
    o_addr(A, T2)
    A(f"s_add_u32 s55, s55, {BR}")
    A("s_waitcnt lgkmcnt(0)")
    for r in range(12): A(f"v_add_f32 v{OA+r}, v{OA+r}, v{16+r}")
    A(f"""
    v_mov_b32 v16, v{OA+8}
    v_mov_b32 v17, v{OA+8}
    v_permlane32_swap_b32 v16, v17
    v_max3_f32 v18, |v{OA}|, |v{OA+1}|, |v{OA+2}|
    v_max3_f32 v18, v18, |v{OA+3}|, |v{OA+4}|
    v_max3_f32 v18, v18, |v{OA+5}|, |v{OA+6}|
    v_max3_f32 v18, v18, |v{OA+7}|, |v{OA+8}|
    v_max3_f32 v18, v18, |v{OA+9}|, |v{OA+10}|
    v_max_f32 v18, v18, |v{OA+11}|
    v_mov_b32 v19, 0x21800000
    v_mov_b32 v20, 0x5d800000
    v_mov_b32 v21, 0x7f000000
    v_cmp_ge_f32 vcc, v17, v19
    v_cmp_le_f32 s[58:59], v17, v20
    s_and_b64 vcc, vcc, s[58:59]
    v_cmp_lt_f32 s[58:59], v18, v21
    s_and_b64 vcc, vcc, s[58:59]
    s_cmp_eq_u64 vcc, -1
    s_cbranch_scc0 {name}_slow
    {name}_fin:
    v_rcp_f32 v17, v17
    s_nop 0
    """)
    for r in range(12): A(f"v_mul_f32 v{OA+r}, v{OA+r}, v17")
    store_o(A, OA, 20, T2, 55)
    if os.environ.get("DIAG") != "stage": stamp(A, 8)
    if STOP_AFTER == "P2":
        A("s_waitcnt vmcnt(0)")
        fo_flag(A, 1)
        stamp(A, 9); stamp(A, 11, real=True)
        stamp_flush(A, 12, 0, 32, base=70)
        A("s_endpgm")
    else:
        A(f"s_branch {name}_p3")
    A(f"{name}_slow:")
    A(f"s_cmp_eq_u32 s36, 0")
    A(f"s_cbranch_scc1 {name}_sl0")
    for i in range(4): A(f"v_mov_b32 v{QA_M+i}, v{QB_M+i}")
    for i in range(2): A(f"v_mov_b32 v{QA_R+i}, v{QB_R+i}")
    A(f"{name}_sl0:")
    for r in range(16): A(f"v_mov_b32 v{OA+r}, 0")
    MX = 44
    frag_addr(A, 42, 43)
    A(f"""
    v_mov_b32 v{MX}, 0xff7fffff
    v_mul_u32_u24 v{T0}, 320, v131
    v_lshlrev_b32 v{T1}, 4, v3
    v_add_u32 v{T0}, v{T0}, v{T1}
    s_mov_b32 s57, 0
    {name}_sloop:
    s_lshl_b32 s56, s57, 9
    s_add_u32 s56, s56, {BR + QKOFF}
    s_add_u32 s58, s66, 80
    s_lshl_b32 s58, s58, 15
    s_add_u32 s58, s58, s56
    buffer_load_dwordx4 {v(SETS[0]['km'],4)}, v42, s[8:11], s58 offen sc1
    s_add_u32 s58, s67, 80
    s_lshl_b32 s58, s58, 15
    s_add_u32 s58, s58, s56
    buffer_load_dwordx2 {v(SETS[0]['kr'],2)}, v43, s[8:11], s58 offen sc1
    s_lshr_b32 s56, s57, 2
    s_mul_i32 s56, s56, {VC}
    s_and_b32 s58, s57, 3
    s_mul_i32 s58, s58, 1280
    s_add_u32 s58, s58, s56
    s_add_u32 s58, s58, s53
    s_mov_b64 exec, s[42:43]
    buffer_load_dwordx4 {v(SETS[0]['v0'],4)}, v{T0}, s[8:11], s58 offen sc1
    buffer_load_dwordx4 {v(SETS[0]['v1'],4)}, v{T0}, s[8:11], s58 offen offset:640 sc1
    s_mov_b64 exec, -1
    s_waitcnt vmcnt(0)
    """)
    mf16(A, S0, SETS[0]['km'], QA_M, "0"); mf8(A, S0, SETS[0]['kr'], QA_R)
    A(f"v_max3_f32 v45, v{S0}, v{S0+1}, v{S0+2}")
    for r in range(3, 15, 2): A(f"v_max3_f32 v45, v45, v{S0+r}, v{S0+r+1}")
    A(f"""
    v_max_f32 v45, v45, v{S0+15}
    v_mov_b32 v46, v45
    v_permlane32_swap_b32 v45, v46
    v_max3_f32 v45, v45, v46, v{MX}
    v_sub_f32 v46, v{MX}, v45
    v_exp_f32 v46, v46
    v_mov_b32 v{MX}, v45
    """)
    for r in range(16): A(f"v_sub_f32 v{S0+r}, v{S0+r}, v45")
    for r in range(16): A(f"v_exp_f32 v{S0+r}, v{S0+r}")
    for r in range(16): A(f"v_mul_f32 v{OA+r}, v{OA+r}, v46")
    for i in range(8): A(f"v_cvt_pk_bf16_f32 v{P0+i}, v{S0+2*i}, v{S0+2*i+1}")
    mf16(A, OA, SETS[0]['v0'], P0); mf16(A, OA, SETS[0]['v1'], P0 + 4)
    A(f"""
    s_add_u32 s57, s57, 1
    s_cmp_lt_u32 s57, 64
    s_cbranch_scc1 {name}_sloop
    s_nop 15
    v_mov_b32 v16, v{OA+8}
    v_mov_b32 v17, v{OA+8}
    v_permlane32_swap_b32 v16, v17
    s_branch {name}_fin
    """)
    if STOP_AFTER != "P2":
        import fused3
        A(f"{name}_p3:")
        fused3.gen_p3(A, name, fo_flag)
```

```python
import os
from asmlib import *
from layout2 import *
from fused import poll_ws, set_flag_ws, SPIN_MAX

ST3 = 18432; NS3 = 7
def stage_addr(j): return 98304 + j * ST3 if j < 3 else 24576 + (j - 3) * ST3
OUTB = 153600
LO, LW, LL, LC = 94, 95, 100, 101
def p3_loader_setup(A):
    A(f"""
    v_lshlrev_b32 v203, 2, v1
    s_mul_i32 s{LO}, s33, {ORB}
    s_add_u32 s{LO}, s{LO}, {OOFF}
    s_lshl_b32 s55, s35, 10
    s_add_u32 s{LO}, s{LO}, s55
    s_mul_i32 s{LW}, s34, {10*10240}
    s_add_u32 s{LW}, s{LW}, {WOP}
    s_add_u32 s{LW}, s{LW}, s55
    """)

def p3_issue(A, name, c, do_o=True, do_w=True):
    sa = stage_addr(c % NS3)
    br, kc = c // 10, c % 10
    A(f"s_lshl_b32 s56, s35, 10")
    A(f"s_add_u32 s56, s56, {sa}")
    if do_o:
        A(f"""
        s_add_u32 s57, s{LO}, {(BR if br else 0) + kc*8192}
        s_mov_b32 m0, s56
        s_add_u32 s58, s57, 4096
        buffer_load_dwordx4 v2, s[8:11], s57 offen sc1 lds
        s_add_u32 m0, s56, 4096
        s_nop 0
        buffer_load_dwordx4 v2, s[8:11], s58 offen sc1 lds
        """)
    if do_w:
        L = A.new("p3w")
        wo = br*80*10240 + kc*10240
        A(f"""
        s_add_u32 s57, s{LW}, {wo}
        s_add_u32 m0, s56, 8192
        s_add_u32 s58, s57, 4096
        buffer_load_dwordx4 v2, s[8:11], s57 offen sc1 lds
        s_add_u32 m0, s56, {8192 + 4096}
        s_add_u32 s57, s57, 8192
        buffer_load_dwordx4 v2, s[8:11], s58 offen sc1 lds
        s_cmp_ge_u32 s35, 2
        s_cbranch_scc1 {L}
        s_add_u32 m0, s56, {8192 + 8192}
        s_nop 0
        buffer_load_dwordx4 v2, s[8:11], s57 offen sc1 lds
        {L}:
        """)

def p3_prefetch(A, name):
    p3_loader_setup(A)
    A(f"""
    s_lshl_b32 s55, s33, 8
    s_add_u32 s55, s55, {FO}
    """)
    poll_ws(A, 203, 55, 208, 64, width=1)
    for c in range(3): p3_issue(A, name, c)

def gen_p3(A, name, fo_flag):
    A(f"""
    s_cmp_eq_u32 s36, 1
    s_cbranch_scc1 {name}_p3load
    s_load_dwordx2 s[24:25], s[0:1], 56
    """)
    stamp(A, 1)
    OA_, WA_ = 4, 6
    ACC = 96
    FSET = [16, 56]
    LOB, HIB = stage_addr(3), stage_addr(0)
    A(f"""
    v_and_b32 v8, 15, v1
    v_lshrrev_b32 v9, 4, v1
    s_lshr_b32 s44, s35, 1
    s_lshl_b32 s44, s44, 5
    v_add_u32 v10, s44, v8
    v_lshlrev_b32 v10, 4, v10
    v_lshlrev_b32 v11, 10, v9
    v_add_u32 v10, v10, v11
    v_add_u32 v{OA_}, {LOB}, v10
    v_add_u32 v{OA_+1}, {HIB}, v10
    v_lshrrev_b32 v10, 2, v8
    v_lshlrev_b32 v11, 3, v9
    v_add_u32 v10, v10, v11
    v_mul_u32_u24 v10, 160, v10
    v_and_b32 v11, 3, v1
    v_lshlrev_b32 v11, 3, v11
    v_add_u32 v10, v10, v11
    s_and_b32 s45, s35, 1
    s_lshl_b32 s45, s45, 6
    s_add_u32 s45, s45, 8192
    v_add_u32 v10, s45, v10
    v_add_u32 v{WA_}, {LOB}, v10
    v_add_u32 v{WA_+1}, {HIB}, v10
    v_add_u32 v10, s44, v8
    v_mul_u32_u24 v10, 160, v10
    v_lshlrev_b32 v11, 3, v9
    s_and_b32 s45, s35, 1
    s_lshl_b32 s45, s45, 6
    s_add_u32 s45, s45, {OUTB}
    v_add3_u32 v10, v10, v11, s45
    """)
    for r in range(3):
        A(f"""
        s_lshl_b32 s51, s35, 6
        s_add_u32 s51, s51, {r*256}
        v_add_u32 v11, s51, v1
        v_lshlrev_b32 v{12+r}, 4, v11
        v_add_u32 v{12+r}, {OUTB}, v{12+r}
        v_mul_u32_u24 v8, 6554, v11
        v_lshrrev_b32 v8, 16, v8
        v_mul_u32_u24 v9, 10, v8
        v_sub_u32 v9, v11, v9
        v_lshlrev_b32 v9, 4, v9
        v_mul_u32_u24 v8, 2560, v8
        v_add_u32 v{140+r}, v8, v9
        """)
    A(f"""
    s_mul_i32 s50, s33, {64*2560}
    s_mul_i32 s51, s34, 160
    s_add_u32 s50, s50, s51
    s_waitcnt lgkmcnt(0)
    """)
    srd(A, 28, 24, 25, OUT_BYTES)
    def reads(c):
        j = c % NS3
        hi = 1 if j < 3 else 0
        so = (j if j < 3 else j - 3) * ST3
        L = []
        for kk in range(2):
            b = FSET[c % 2] + 20*kk
            for st in range(2): L.append(f"ds_read_b128 {v(b+4*st,4)}, v{OA_+hi} offset:{so+kk*4096+st*256}")
            for jt in range(3):
                for jj in range(2): L.append(f"ds_read_b64_tr_b16 {v(b+8+4*jt+2*jj,2)}, v{WA_+hi} offset:{so+kk*5120+jj*640+jt*32}")
        return L
    def mf(c, first):
        L = []
        for kk in range(2):
            b = FSET[c % 2] + 20*kk
            for jt in range(3):
                for st in range(2):
                    D = v(ACC+4*(2*jt+st),4)
                    C = "0" if (first and kk == 0) else D
                    L.append(f"v_mfma_f32_16x16x32_bf16 {D}, {v(b+8+4*jt,4)}, {v(b+4*st,4)}, {C}")
        return L
    def epilogue(br):
        for jt in range(3):
            for st in range(2):
                r0 = ACC+4*(2*jt+st); t_ = 124 + 2*((2*jt+st) % 4)
                A(f"v_cvt_pk_bf16_f32 v{t_}, v{r0}, v{r0+1}")
                A(f"v_cvt_pk_bf16_f32 v{t_+1}, v{r0+2}, v{r0+3}")
                A(f"ds_write_b64 v10, {v(t_,2)} offset:{st*16*160+jt*32}")
        L = A.new("p3o")
        A(f"""
        s_waitcnt lgkmcnt(0)
        s_barrier
        s_add_u32 s51, s50, {1280*br}
        ds_read_b128 v[144:147], v12
        ds_read_b128 v[148:151], v13
        ds_read_b128 v[152:155], v14
        s_waitcnt lgkmcnt(1)
        buffer_store_dwordx4 v[144:147], v140, s[28:31], s51 offen
        buffer_store_dwordx4 v[148:151], v141, s[28:31], s51 offen
        s_cmp_ge_u32 s35, 2
        s_cbranch_scc1 {L}
        s_waitcnt lgkmcnt(0)
        buffer_store_dwordx4 v[152:155], v142, s[28:31], s51 offen
        {L}:
        """)
    A("s_barrier")
    stamp(A, 2)
    for l in reads(0): A(l)
    for c in range(20):
        A("s_waitcnt lgkmcnt(0)")
        A("s_barrier")
        R = reads(c + 1) if c < 19 else []
        M = mf(c, c % 10 == 0)
        for m in M:
            A(m)
            for _ in range(2):
                if R: A(R.pop(0))
        for r_ in R: A(r_)
        if c == 1:
            A("s_waitcnt vmcnt(0)")
            fo_flag(A, 1)
        if c == 9:
            epilogue(0)
        if c == 19:
            stamp(A, 3)
            epilogue(1)
    A(f"s_branch {name}_p3done")
    A(f"{name}_p3load:")
    A(f"""
    s_waitcnt vmcnt(3)
    s_barrier
    """)
    for c in range(3, 7): p3_issue(A, name, c)
    A("s_waitcnt vmcnt(16)")
    fo_flag(A, 1)
    allowed = {1: 20, 2: 20, 3: 20, 4: 20, 5: 18, 6: 16, 7: 14, 8: 12, 9: 10,
               10: 10, 11: 12, 12: 14, 13: 16, 14: 18, 15: 16, 16: 12, 17: 8, 18: 4, 19: 0, 20: 0}
    for c in range(1, 21):
        A(f"s_waitcnt vmcnt({allowed[c]})")
        A("s_barrier")
        n = c + 6
        if n < 10: p3_issue(A, name, n)
        elif n <= 15: p3_issue(A, name, n, do_o=False)
        elif n < 20: p3_issue(A, name, n)
        if c == 9:
            A(f"""
            s_lshl_b32 s55, s33, 8
            s_add_u32 s55, s55, {FO + 8192}
            """)
            stamp(A, 7)
            poll_ws(A, 203, 55, 208, 64, width=1)
            stamp(A, 8)
            for m in range(10, 16): p3_issue(A, name, m, do_w=False)
        if c == 10: A("s_barrier")
    A("s_barrier")
    A(f"{name}_p3done:")
    stamp(A, 9); stamp(A, 11, real=True)
    stamp_flush(A, 12, 0, 32, base=70)
    A("s_endpgm")
```

```python
import os
from asmlib import *
from layout2 import *

LDS = 163840
SIGC = int(os.environ.get('SIGC', '12'))
SPIN_MAX = 50000
R1 = 32768; ST1 = 32768; NS1 = 4
LOG2E = 0x3fb8aa3b
QSCALE = 0x3ea52b5c
LSTAMP = os.environ.get('LSTAMP', '0') == '1'
NTX = ' nt' if os.environ.get('NTX', '0') == '1' else ''
NTW = ' nt' if os.environ.get('NTW', '0') == '1' else ''
STOP_AFTER = os.environ.get("STOP_AFTER", "")

def poll_dbg(A, lane_off_v, tmp_v, mask_lo, target, sleep=4):
    L = A.new("poll")
    A(f"""
    s_mov_b32 s59, 0
    {L}:
    global_load_dword v{tmp_v}, v{lane_off_v}, s[4:5] sc1
    s_waitcnt vmcnt(0)
    v_cmp_le_u32 vcc, {target}, v{tmp_v}
    s_and_b32 s58, vcc_lo, {mask_lo:#x}
    s_cmp_eq_u32 s58, {mask_lo:#x}
    s_cbranch_scc1 {L}_ok
    s_sleep {sleep}
    s_add_u32 s59, s59, 1
    s_cmp_lt_u32 s59, {SPIN_MAX}
    s_cbranch_scc1 {L}
    {L}_ok:
    """)

def poll_ws(A, voff, soff, T, nlanes, width=4, target=1, sleep=8):
    L = A.new("pw")
    mask = (1 << nlanes) - 1
    ld = {4: "buffer_load_dwordx4 " + v(T,4), 1: f"buffer_load_dword v{T}"}[width]
    def check():
        A("s_waitcnt vmcnt(0)")
        if width == 4:
            A(f"v_and_b32 v{T}, v{T}, v{T+1}")
            A(f"v_and_b32 v{T+2}, v{T+2}, v{T+3}")
            A(f"v_and_b32 v{T}, v{T}, v{T+2}")
        A(f"v_cmp_eq_u32 vcc, {target}, v{T}")
        if nlanes >= 64:
            A(f"s_cmp_eq_u64 vcc, -1")
        else:
            A(f"s_and_b32 s58, vcc_hi, {(mask >> 32):#x}") if nlanes > 32 else None
            if nlanes > 32:
                A(f"s_cmp_eq_u32 s58, {(mask >> 32):#x}")
                A(f"s_cselect_b32 s58, vcc_lo, 0")
                A(f"s_cmp_eq_u32 s58, -1")
            else:
                A(f"s_and_b32 s58, vcc_lo, {mask:#x}")
                A(f"s_cmp_eq_u32 s58, {mask:#x}")
    A(f"{ld}, v{voff}, s[8:11], s{soff} offen sc1")
    check()
    A(f"s_cbranch_scc1 {L}_ok")
    A(f"s_mov_b32 s59, 0")
    A(f"{L}:")
    A(f"s_sleep {sleep}")
    A(f"{ld}, v{voff}, s[8:11], s{soff} offen sc1")
    check()
    A(f"""
    s_cbranch_scc1 {L}_ok
    s_add_u32 s59, s59, 1
    s_cmp_lt_u32 s59, {SPIN_MAX}
    s_cbranch_scc1 {L}
    {L}_ok:
    """)

def flag_issue(A, voff, soff, T, width=4):
    ld = {4: "buffer_load_dwordx4 " + v(T,4), 1: f"buffer_load_dword v{T}"}[width]
    A(f"{ld}, v{voff}, s[8:11], s{soff} offen sc1")
def flag_check(A, voff, soff, T, nlanes, width=4, target=1, sleep=8, masked=False):
    L = A.new("fc")
    mask = (1 << nlanes) - 1
    if width == 4:
        A(f"v_and_b32 v{T}, v{T}, v{T+1}")
        A(f"v_and_b32 v{T+2}, v{T+2}, v{T+3}")
        A(f"v_and_b32 v{T}, v{T}, v{T+2}")
    A(f"v_cmp_eq_u32 vcc, {target}, v{T}")
    if nlanes >= 64:
        A(f"s_cmp_eq_u64 vcc, -1")
    elif nlanes > 32:
        A(f"s_and_b32 s58, vcc_hi, {(mask >> 32):#x}")
        A(f"s_cmp_eq_u32 s58, {(mask >> 32):#x}")
        A(f"s_cselect_b32 s58, vcc_lo, 0")
        A(f"s_cmp_eq_u32 s58, -1")
    else:
        A(f"s_and_b32 s58, vcc_lo, {mask:#x}")
        A(f"s_cmp_eq_u32 s58, {mask:#x}")
    A(f"s_cbranch_scc1 {L}")
    if masked: A(f"s_mov_b32 exec_lo, {(1 << nlanes) - 1:#x}\ns_mov_b32 exec_hi, 0")
    poll_ws(A, voff, soff, T, nlanes, width, target, sleep)
    if masked: A("s_mov_b64 exec, -1")
    A(f"{L}:")

def set_flag_ws(A, soff, tv0, tv1):
    A(f"""
    v_mov_b32 v{tv0}, 0
    v_mov_b32 v{tv1}, 1
    s_mov_b64 exec, 1
    buffer_store_dword v{tv1}, v{tv0}, s[8:11], s{soff} offen sc1
    s_mov_b64 exec, -1
    """)

def check_prep(A, tv0, tv1):
    L = A.new("cp")
    A(f"""
    v_mov_b32 v{tv0}, {FPREP*4}
    global_load_dword v{tv1}, v{tv0}, s[4:5] sc1
    s_mov_b32 s59, 0
    {L}:
    s_waitcnt vmcnt(0)
    v_readfirstlane_b32 s58, v{tv1}
    s_cmp_ge_u32 s58, 16
    s_cbranch_scc1 {L}_ok
    s_sleep 16
    global_load_dword v{tv1}, v{tv0}, s[4:5] sc1
    s_add_u32 s59, s59, 1
    s_cmp_lt_u32 s59, {SPIN_MAX}
    s_cbranch_scc1 {L}
    {L}_ok:
    """)

NTF = 24
def tile_flags_voff(A, vd):
    A(f"""
    s_mul_i32 s56, s33, 20
    s_add_u32 s57, s56, 19
    s_lshr_b32 s56, s56, 7
    s_lshr_b32 s57, s57, 7
    v_lshrrev_b32 v{vd}, 3, v1
    v_min_u32 v{vd}, 2, v{vd}
    v_mul_u32_u24 v{vd}, 5, v{vd}
    v_bfe_u32 v{vd+1}, v1, 2, 1
    v_cmp_eq_u32 vcc, 1, v{vd+1}
    v_mov_b32 v{vd+1}, s56
    v_mov_b32 v{vd+2}, s57
    v_cndmask_b32 v{vd+1}, v{vd+1}, v{vd+2}, vcc
    v_add_u32 v{vd}, v{vd}, v{vd+1}
    v_lshlrev_b32 v{vd}, 7, v{vd}
    v_and_b32 v{vd+1}, 3, v1
    v_lshlrev_b32 v{vd+1}, 4, v{vd+1}
    v_add_u32 v{vd}, v{vd}, v{vd+1}
    """)

def signal_dbg(A, idx_s, tv0, tv1):
    A(f"""
    s_lshl_b32 s58, s{idx_s}, 2
    v_mov_b32 v{tv0}, s58
    v_mov_b32 v{tv1}, 1
    s_mov_b64 exec, 1
    global_atomic_add v{tv0}, v{tv1}, s[4:5] sc1
    s_mov_b64 exec, -1
    """)

def gen_common(A, name):
    A(f"""
    s_cmp_ge_u32 s2, 256
    s_cbranch_scc1 {name}_done
    s_load_dwordx4 s[20:23], s[0:1], 0
    s_load_dwordx4 s[24:27], s[0:1], 32
    s_load_dwordx4 s[4:7], s[0:1], 64
    s_load_dwordx2 s[28:29], s[0:1], 16
    v_and_b32 v1, 63, v0
    v_lshrrev_b32 v2, 6, v0
    v_and_b32 v3, 31, v1
    v_readfirstlane_b32 s32, v2
    v_lshrrev_b32 v131, 5, v1
    v_lshlrev_b32 v2, 4, v1
    v_lshlrev_b32 v132, 3, v3
    s_and_b32 s39, s2, 7
    s_lshr_b32 s64, s2, 3
    s_lshl_b32 s33, s39, 2
    s_lshr_b32 s45, s64, 3
    s_add_u32 s33, s33, s45
    s_and_b32 s34, s64, 7
    s_and_b32 s35, s32, 3
    s_lshr_b32 s36, s32, 2
    s_lshr_b32 s65, s39, 1
    s_lshl_b32 s37, s65, 2
    s_and_b32 s30, s39, 1
    s_cmp_eq_u32 s30, 0
    s_cbranch_scc0 {name}_map1
    s_lshr_b32 s46, s64, 3
    s_add_u32 s37, s37, s46
    s_and_b32 s38, s64, 7
    s_mov_b32 s31, 0
    s_branch {name}_map2
    {name}_map1:
    s_mul_i32 s46, s64, 37
    s_lshr_b32 s46, s46, 8
    s_add_u32 s37, s37, s46
    s_mul_i32 s46, s46, 7
    s_sub_u32 s38, s64, s46
    s_add_u32 s38, s38, 8
    s_cmp_ge_u32 s64, 28
    s_cselect_b32 s31, 1, 0
    {name}_map2:
    s_mov_b32 s40, {LOG2E:#x}
    s_mov_b32 s41, {LOG2E | 0x80000000:#x}
    s_mov_b32 s42, 0x000fffff
    s_mov_b32 s43, 0x000fffff
    s_and_b32 s45, s33, 1
    s_mul_i32 s66, s33, 5
    s_add_u32 s66, s66, s45
    s_lshr_b32 s66, s66, 1
    s_add_u32 s67, s66, 2
    s_cmp_eq_u32 s45, 1
    s_cselect_b32 s46, 3, 0
    s_sub_u32 s67, s67, s46
    s_lshl_b32 s68, s45, 3
    s_mul_i32 s53, s33, {VH}
    s_add_u32 s53, s53, {BR + VOFF}
    s_waitcnt lgkmcnt(0)
    """)
    srd(A, 8, 6, 7, WS_BYTES)
    for r in (188, 189, 190, 191): A(f"v_mov_b32 v{r}, 0")

def p2_stage_dma(A, st, dyn=None):
    L = A.new("sd")
    if dyn is None:
        A(f"""
        s_lshr_b32 s56, s35, 1
        s_mul_i32 s57, s56, {PART}
        s_add_u32 s57, s57, {(st % 4) * SLOT}
        s_lshl_b32 s56, s56, 3
        s_add_u32 s56, s56, {st}
        """)
    else:
        A(f"""
        s_lshr_b32 s56, s35, 1
        s_mul_i32 s57, s56, {PART}
        s_add_u32 s57, s57, s{dyn[0]}
        s_lshl_b32 s56, s56, 3
        s_add_u32 s56, s56, s{dyn[1]}
        """)
    A(f"""
    s_bitcmp1_b32 s35, 0
    s_cbranch_scc1 {L}_v
    s_lshl_b32 s56, s56, 11
    s_add_u32 s58, s66, 80
    s_lshl_b32 s58, s58, 15
    s_add_u32 s58, s58, s56
    s_add_u32 s58, s58, {BR + QKOFF}
    s_add_u32 s59, s67, 80
    s_lshl_b32 s59, s59, 15
    s_add_u32 s59, s59, s56
    s_add_u32 s59, s59, {BR + QKOFF}
    """)
    for e, (src, off) in enumerate(((58, 0), (58, 1024), (58, QKG), (58, QKG + 1024), (59, 0), (59, 1024))):
        A(f"s_add_u32 m0, s57, {e*1024}")
        A(f"s_add_u32 s56, s{src}, {off}")
        A(f"buffer_load_dwordx4 v2, s[8:11], s56 offen sc1 lds")
    A(f"""
    s_branch {L}_e
    {L}_v:
    s_mul_i32 s56, s56, {VC}
    s_add_u32 s56, s56, s53
    """)
    for e in range(5):
        A(f"s_add_u32 m0, s57, {6144 + e*1024}")
        A(f"s_add_u32 s58, s56, {e*1024}")
        A(f"buffer_load_dwordx4 v2, s[8:11], s58 offen sc1 lds")
    A(f"{L}_e:")

QA_M, QB_M, QA_R, QB_R = 4, 8, 12, 14
def frag_addr(A, vm, vr):
    A(f"""
    v_lshlrev_b32 v{vm}, 15, v131
    v_lshlrev_b32 v{vr}, 4, v3
    v_add_u32 v{vm}, v{vm}, v{vr}
    v_add_u32 v{vr}, s68, v{vr}
    """)
QL = 98304
def p2_q_dma(A):
    A(f"""
    s_lshl_b32 s56, s34, 8
    s_lshl_b32 s57, s35, 6
    s_add_u32 s56, s56, s57
    s_lshl_b32 s56, s56, 4
    s_add_u32 s56, s56, {BR + QKOFF}
    s_lshl_b32 s57, s35, 10
    s_add_u32 s57, s57, {QL}
    s_lshl_b32 s58, s66, 15
    s_add_u32 s58, s58, s56
    s_mov_b32 m0, s57
    s_add_u32 s59, s58, {QKG}
    buffer_load_dwordx4 v2, s[8:11], s58 offen sc1 lds
    s_add_u32 m0, s57, 4096
    s_lshl_b32 s58, s67, 15
    buffer_load_dwordx4 v2, s[8:11], s59 offen sc1 lds
    s_add_u32 m0, s57, 8192
    s_add_u32 s58, s58, s56
    buffer_load_dwordx4 v2, s[8:11], s58 offen sc1 lds
    """)
def p2_q_reads(A, tm=133, tr=134):
    A(f"""
    s_lshl_b32 s56, s35, 10
    s_add_u32 s56, s56, {QL}
    v_lshlrev_b32 v{tm}, 12, v131
    v_lshlrev_b32 v{tr}, 4, v3
    v_add3_u32 v{tm}, v{tm}, v{tr}, s56
    s_add_u32 s56, s56, 8192
    s_add_u32 s56, s56, s68
    v_add_u32 v{tr}, s56, v{tr}
    v_mov_b32 v{QA_R}, 0
    v_mov_b32 v{QA_R+1}, 0
    v_mov_b32 v{QA_R+2}, 0
    v_mov_b32 v{QA_R+3}, 0
    ds_read_b128 {v(QA_M,4)}, v{tm}
    ds_read_b128 {v(QB_M,4)}, v{tm} offset:512
    s_mov_b32 exec_hi, 0
    ds_read_b64 {v(QA_R,2)}, v{tr}
    ds_read_b64 {v(QB_R,2)}, v{tr} offset:512
    s_mov_b64 exec, -1
    """)

XV, WV = 192, 196
CXA, CWA, CXA2, CWA2, CEA = 4, 8, 10, 14, 128
EA = 200
ACC = 64
def p1_loader(A, name):
    A.c("P1 loader")
    A(f"""
    v_lshrrev_b32 v7, 3, v1
    s_lshl_b32 s44, s35, 5
    v_add_u32 v7, s44, v7
    v_mul_u32_u24 v7, 1280, v7
    v_lshrrev_b32 v8, 4, v1
    v_and_b32 v9, 7, v1
    """)
    for i in range(4):
        A(f"""
        v_add_u32 v10, {4*i}, v8
        v_and_b32 v10, 7, v10
        v_xor_b32 v10, v10, v9
        v_lshlrev_b32 v10, 4, v10
        v_add_u32 v10, v10, v7
        v_add_u32 v{XV+i}, {8*i*1280}, v10
        """)
    A(f"""
    s_lshl_b32 s44, s35, 4
    v_add_u32 v7, s44, v8
    v_mul_u32_u24 v7, 3840, v7
    v_lshrrev_b32 v9, 2, v1
    v_xor_b32 v9, v9, v8
    v_and_b32 v9, 3, v9
    v_lshlrev_b32 v9, 6, v9
    v_and_b32 v10, 3, v1
    v_lshlrev_b32 v10, 4, v10
    v_add3_u32 v{WV}, v7, v9, v10
    s_lshl_b32 s44, s35, 12
    s_add_u32 s45, s44, 16384
    s_and_b32 s52, s37, 3
    s_mul_i32 s52, s52, 3
    s_add_u32 s52, s52, s38
    s_lshl_b32 s54, s65, 1
    s_add_u32 s52, s52, s54
    s_cmp_ge_u32 s52, 20
    s_cselect_b32 s54, 20, 0
    s_sub_u32 s52, s52, s54
    s_cmp_ge_u32 s52, 10
    s_cselect_b32 s54, 10, 0
    s_sub_u32 s52, s52, s54
    """)
    if os.environ.get("ROT", "1") != "1": A("s_mov_b32 s52, 0")
    A(f"""
    s_mov_b32 s55, s52
    s_mul_i32 s46, s37, {128*1280}
    s_lshl_b32 s54, s55, 7
    s_add_u32 s46, s46, s54
    s_lshl_b32 s47, s38, 8
    s_mul_i32 s54, s55, {64*3840}
    s_add_u32 s47, s47, s54
    s_mov_b32 s56, s55
    s_mov_b32 s48, {R1}
    s_mov_b32 s49, 0
    """)
    srd(A, 12, 24, 25, X_BYTES)
    srd(A, 16, 26, 27, W_BYTES)
    def issue(tag):
        for i in range(4 if not (os.environ.get("XP") == "nodma" and tag == "lp") else 0):
            A(f"s_add_u32 s50, s48, s44")
            A(f"s_add_u32 m0, s50, {i*1024}")
            A(f"s_add_u32 s51, s47, {i*4*3840}")
            A(f"buffer_load_dwordx4 v{XV+i}, s[12:15], s46 offen{NTX} lds")
            A(f"s_add_u32 s50, s48, s45")
            A(f"s_add_u32 m0, s50, {i*1024}")
            A(f"s_nop 0")
            A(f"buffer_load_dwordx4 v{WV}, s[16:19], s51 offen{NTW} lds")
        A(f"""
        s_add_u32 s46, s46, 128
        s_add_u32 s47, s47, {64*3840}
        s_add_u32 s48, s48, {ST1}
        s_cmp_eq_u32 s48, {R1+NS1*ST1}
        s_cselect_b32 s48, {R1}, s48
        s_add_u32 s56, s56, 1
        s_cmp_eq_u32 s56, 10
        s_cselect_b32 s54, {10*128}, 0
        s_sub_u32 s46, s46, s54
        s_cmp_eq_u32 s56, 10
        s_cselect_b32 s54, {10*64*3840}, 0
        s_sub_u32 s47, s47, s54
        s_cmp_eq_u32 s56, 10
        s_cselect_b32 s56, 0, s56
        s_add_u32 s49, s49, 1
        s_cmp_eq_u32 s49, 10
        s_cbranch_scc0 {name}_ld_{tag}
        """)
        srd(A, 12, 20, 21, X_BYTES)
        srd(A, 16, 22, 23, W_BYTES)
        A(f"""
        {name}_ld_{tag}:
        """)
    SPD = int(os.environ.get("SPD", "6"))
    def spf_bases(xl, xh, wl, wh):
        A(f"""
        s_lshl_b32 s54, s64, 2
        s_add_u32 s54, s54, s35
        s_lshl_b32 s55, s65, 9
        s_lshl_b32 s57, s54, 2
        s_add_u32 s55, s55, s57
        s_mul_i32 s55, s55, 1280
        s_add_u32 s60, s{xl}, s55
        s_addc_u32 s61, s{xh}, 0
        s_lshr_b32 s55, s54, 1
        s_mul_i32 s55, s55, 3840
        s_and_b32 s57, s54, 1
        s_lshl_b32 s57, s57, 10
        s_add_u32 s55, s55, s57
        s_lshl_b32 s57, s30, 11
        s_add_u32 s55, s55, s57
        s_add_u32 s62, s{wl}, s55
        s_addc_u32 s63, s{wh}, 0
        """)
    def spf_one():
        for r in range(4): A(f"s_load_dword s94, s[60:61], {r*1280}")
        for r in range(8): A(f"s_load_dword s95, s[62:63], {r*128}")
        A(f"""
        s_add_u32 s60, s60, 128
        s_addc_u32 s61, s61, 0
        s_add_u32 s62, s62, {64*3840}
        s_addc_u32 s63, s63, 0
        """)
    issue("p0"); issue("p1"); issue("p2")
    if SPD:
        spf_bases(24, 25, 26, 27)
        A(f"""
        s_add_u32 s60, s60, {3*128}
        s_addc_u32 s61, s61, 0
        s_add_u32 s62, s62, {3*64*3840}
        s_addc_u32 s63, s63, 0
        s_mov_b32 s100, 3
        """)
        for _ in range(SPD - 3):
            spf_one(); A("s_add_u32 s100, s100, 1")
    stamp(A, 1)
    if STAMPS: A("s_mov_b32 s74, 0\ns_mov_b32 s75, 0\ns_mov_b32 s76, 0\ns_mov_b32 s77, 0\ns_mov_b32 s80, 0\ns_mov_b32 s81, 0")
    if os.environ.get("XP") == "nobar":
        A(f"""
        s_mov_b32 s52, 0
        {name}_xl:
        s_waitcnt vmcnt({os.environ.get("XVM", "16")})
        """)
        issue("xp")
        A(f"""
        s_add_u32 s52, s52, 1
        s_cmp_lt_u32 s52, 17
        s_cbranch_scc1 {name}_xl
        s_waitcnt vmcnt(0)
        """)
        stamp(A, 4); stamp(A, 9); stamp(A, 11, real=True)
        stamp_flush(A, 12, 0, 32, base=70)
        A("s_endpgm")
    A(f"""
    s_mov_b32 s52, 0
    {name}_lloop:
    """)
    if STAMPS and LSTAMP:
        A("""
        s_memtime s[86:87]
        s_waitcnt lgkmcnt(0)
        s_waitcnt vmcnt(16)
        s_memtime s[88:89]
        s_waitcnt lgkmcnt(0)
        s_sub_u32 s90, s88, s86
        s_add_u32 s74, s74, s90
        s_barrier
        s_memtime s[86:87]
        s_waitcnt lgkmcnt(0)
        s_sub_u32 s90, s86, s88
        s_add_u32 s76, s76, s90
        """)
    else:
        A("s_waitcnt vmcnt(16)")
        A("s_barrier")
    issue("lp")
    if SPD:
        A(f"""
        s_cmp_ge_u32 s100, 20
        s_cbranch_scc1 {name}_nsp
        s_cmp_eq_u32 s100, 10
        s_cbranch_scc0 {name}_sp1
        """)
        spf_bases(20, 21, 22, 23)
        A(f"{name}_sp1:")
        spf_one()
        A(f"""
        s_add_u32 s100, s100, 1
        {name}_nsp:
        """)
    if STAMPS and LSTAMP:
        A("""
        s_memtime s[88:89]
        s_waitcnt lgkmcnt(0)
        s_sub_u32 s90, s88, s86
        s_add_u32 s80, s80, s90
        """)
    A(f"""
    s_add_u32 s52, s52, 1
    s_cmp_lt_u32 s52, 17
    s_cbranch_scc1 {name}_lloop
    s_waitcnt vmcnt(16)
    s_barrier
    s_waitcnt vmcnt(8)
    s_barrier
    s_waitcnt vmcnt(0)
    s_barrier
    s_mov_b32 s54, {FBW}
    """)
    tile_flags_voff(A, 7)
    A("s_mov_b32 exec_lo, 0xffffff\ns_mov_b32 exec_hi, 0")
    flag_issue(A, 7, 54, 16)
    A("s_mov_b64 exec, -1")
    import fused2
    fused2.kv_dma_setup(A)
    A(f"""
    s_barrier
    s_waitcnt vmcnt(0)
    s_mov_b32 s54, {FBW}
    """)
    stamp(A, 7)
    flag_check(A, 7, 54, 16, NTF, masked=True)
    stamp(A, 8)
    p2_stage_dma(A, 0)
    p2_q_dma(A)
    A(f"""
    s_waitcnt vmcnt(0)
    s_barrier
    """)

def stage0_all(A):
    A("s_mov_b32 s63, s35")
    for p in range(4):
        A(f"s_mov_b32 s35, {p}")
        p2_stage_dma(A, 0)
        p2_q_dma(A)
    A("s_mov_b32 s35, s63")

PF_MODE = os.environ.get('PF_MODE', 'plain')
def prefetch_share(A, xl, xh, wl, wh, nw, widx):
    if PF_MODE == 'off': return
    srd(A, 12, xl, xh, X_BYTES)
    srd(A, 16, wl, wh, W_BYTES)
    A(f"""
    s_mul_i32 s50, s2, 10240
    s_mul_i32 s51, s2, 9600
    s_lshl_b32 s52, s{widx}, 10
    s_add_u32 s50, s50, s52
    s_add_u32 s51, s51, s52
    """)
    for r in range(-(-10 // nw)):
        L = A.new("pf")
        lim = 10 - r * nw
        if lim < nw:
            A(f"s_cmp_ge_u32 s{widx}, {lim}")
            A(f"s_cbranch_scc1 {L}")
        A(f"s_add_u32 s52, s50, {r*nw*1024}")
        A(f"buffer_load_dwordx4 v[216:219], v2, s[12:15], s52 offen")
        A(f"s_add_u32 s52, s51, {r*nw*1024}")
        A(f"buffer_load_dwordx4 v[220:223], v2, s[16:19], s52 offen")
        if lim < nw: A(f"{L}:")

L2PF = int(os.environ.get('L2PF', '5'))
def l2pf_setup(A):
    L = A.new("l2")
    A(f"""
    s_mov_b32 s69, 0
    s_cmp_lg_u32 s32, 1
    s_cbranch_scc1 {L}_e
    s_cmp_ge_u32 s64, 24
    s_cbranch_scc1 {L}_e
    s_mov_b32 s69, 1
    s_cmp_ge_u32 s64, 8
    s_cbranch_scc1 {L}_w
    s_lshl_b32 s44, s65, 9
    s_lshl_b32 s45, s64, 6
    s_add_u32 s44, s44, s45
    v_add_u32 v5, s44, v1
    v_mul_u32_u24 v5, 1280, v5
    s_mov_b32 s55, 128
    """)
    srd(A, 96, 24, 25, X_BYTES)
    A(f"""
    s_branch {L}_go
    {L}_w:
    s_sub_u32 s44, s64, 8
    s_lshl_b32 s44, s44, 2
    v_lshrrev_b32 v5, 4, v1
    v_add_u32 v5, s44, v5
    v_mul_u32_u24 v5, 3840, v5
    v_and_b32 v6, 15, v1
    v_lshlrev_b32 v6, 7, v6
    s_lshl_b32 s44, s30, 11
    v_add3_u32 v5, v5, v6, s44
    s_mov_b32 s55, {64*3840}
    """)
    srd(A, 96, 26, 27, W_BYTES)
    A(f"""
    {L}_go:
    s_mul_i32 s54, s55, 4
    s_mov_b32 s57, 4
    {L}_e:
    """)
def l2pf_one(A):
    if not L2PF: return
    L = A.new("l2o")
    A(f"""
    s_cmp_eq_u32 s69, 1
    s_cbranch_scc0 {L}_e
    s_cmp_ge_u32 s57, 20
    s_cbranch_scc1 {L}_e
    s_cmp_eq_u32 s57, 10
    s_cbranch_scc0 {L}_n
    s_mov_b32 s54, 0
    s_cmp_ge_u32 s64, 8
    s_cbranch_scc1 {L}_w
    """)
    srd(A, 96, 20, 21, X_BYTES)
    A(f"s_branch {L}_n")
    A(f"{L}_w:")
    srd(A, 96, 22, 23, W_BYTES)
    A(f"""
    {L}_n:
    buffer_load_dword v224, v5, s[96:99], s54 offen
    s_add_u32 s54, s54, s55
    s_add_u32 s57, s57, 1
    {L}_e:
    """)

def p1_compute(A, name, orient):
    tag = f"{name}_c{orient}"
    FB_ = [16, 32, 48, 144]
    ACCS = [64, 160]
    T = 224
    def reads(c, kk):
        q = c % 4
        b = FB_[kk]
        xa = (CXA if q < 2 else CXA2) + kk; wa = CWA if q < 2 else CWA2
        so = (q & 1) * ST1
        L = []
        L.append(f"ds_read_b128 {v(b,4)}, v{xa} offset:{so}")
        for jj in range(2): L.append(f"ds_read_b64_tr_b16 {v(b+8+2*jj,2)}, v{wa} offset:{so+kk*4096+jj*1024}")
        L.append(f"ds_read_b128 {v(b+4,4)}, v{xa} offset:{so+4096}")
        for jj in range(2): L.append(f"ds_read_b64_tr_b16 {v(b+12+2*jj,2)}, v{wa+1} offset:{so+kk*4096+jj*1024}")
        return L
    def mf(c, kk):
        b = FB_[kk]; acc = ACCS[c // 10]
        first = (c % 10 == 0 and kk == 0)
        L = []
        for nt in range(2):
            for st in range(2):
                X = v(b+4*st,4); W = v(b+8+4*nt,4)
                if orient == "T":
                    D = v(acc+16*(2*nt+st),16); L.append(f"v_mfma_f32_32x32x16_bf16 {D}, {W}, {X}, {'0' if first else D}")
                else:
                    D = v(acc+16*(2*st+nt),16); L.append(f"v_mfma_f32_32x32x16_bf16 {D}, {X}, {W}, {'0' if first else D}")
        return L
    def epilogue(br_is_B):
        acc = ACCS[0 if br_is_B else 1]
        L = []
        if orient == "T":
            n = 0
            for nt in range(2):
                for st in range(2):
                    r0 = acc+16*(2*nt+st)
                    for ip in range(2):
                        t_ = T + 4*(n % 4); n += 1
                        if br_is_B:
                            for e in range(8): L.append(f"v_mul_f32 v{r0+8*ip+e}, s62, v{r0+8*ip+e}")
                        for e in range(4): L.append(f"v_cvt_pk_bf16_f32 v{t_+e}, v{r0+8*ip+2*e}, v{r0+8*ip+2*e+1}")
                        L.append(f"s_add_u32 s55, s61, {(4*nt+2*ip)*QKG + st*512}")
                        L.append(f"s_nop 0")
                        L.append(f"v_permlane32_swap_b32 v{t_}, v{t_+2}")
                        L.append(f"v_permlane32_swap_b32 v{t_+1}, v{t_+3}")
                        L.append(f"buffer_store_dwordx4 {v(t_,4)}, v{CEA}, s[8:11], s55 offen sc1")
        else:
            for nt in range(2):
                for st in range(2):
                    for m in range(2):
                        r0 = acc+16*(2*st+nt)+8*m
                        t_ = T + 4*((2*st+m) % 4)
                        for e in range(4): L.append(f"v_cvt_pk_bf16_f32 v{t_+e}, v{r0+2*e}, v{r0+2*e+1}")
                        L.append(f"buffer_store_dwordx4 {v(t_,4)}, v{CEA+nt}, s[8:11], s61 offen offset:{(2*st+m)*640} sc1")
        return L
    if orient == "T":
        A(f"""
        s_lshl_b32 s44, s38, 4
        s_and_b32 s45, s35, 1
        s_lshl_b32 s45, s45, 3
        s_add_u32 s44, s44, s45
        v_add_u32 v{T}, s44, v131
        v_lshlrev_b32 v{T}, 15, v{T}
        s_lshl_b32 s44, s37, 7
        s_lshr_b32 s45, s35, 1
        s_lshl_b32 s45, s45, 6
        s_add_u32 s44, s44, s45
        v_add_u32 v{T+1}, s44, v3
        v_lshlrev_b32 v{T+1}, 4, v{T+1}
        v_add_u32 v{CEA}, v{T}, v{T+1}
        s_mov_b32 s60, {QKOFF}
        s_mov_b32 s62, 1.0
        s_cmp_lt_u32 s38, 5
        s_cselect_b32 s62, {QSCALE:#x}, s62
        """)
    else:
        A(f"""
        s_sub_u32 s44, s38, 10
        s_lshl_b32 s44, s44, 7
        s_and_b32 s45, s35, 1
        s_lshl_b32 s45, s45, 6
        s_add_u32 s44, s44, s45
        s_mul_i32 s60, s37, {VC}
        s_add_u32 s60, s60, {VOFF}
        s_lshr_b32 s45, s35, 1
        s_mul_i32 s45, s45, {4*640}
        s_add_u32 s60, s60, s45
        v_mul_u32_u24 v{T}, 320, v131
        s_mov_b32 s45, {VH}
        """)
        for nt in range(2):
            A(f"""
            v_add_u32 v{T+1}, s44, v3
            v_add_u32 v{T+1}, {32*nt}, v{T+1}
            v_mul_u32_u24 v{T+2}, 3277, v{T+1}
            v_lshrrev_b32 v{T+2}, 16, v{T+2}
            v_mul_u32_u24 v{T+3}, 20, v{T+2}
            v_sub_u32 v{T+3}, v{T+1}, v{T+3}
            v_lshlrev_b32 v{T+3}, 4, v{T+3}
            v_mul_lo_u32 v{T+2}, v{T+2}, s45
            v_add3_u32 v{CEA+nt}, v{T+2}, v{T+3}, v{T}
            """)
    for kk in range(4): A(f"v_add_u32 v{CXA2+kk}, {2*ST1}, v{CXA+kk}")
    for nt in range(2): A(f"v_add_u32 v{CWA2+nt}, {2*ST1}, v{CWA+nt}")
    A(f"s_add_u32 s61, s60, {BR}")
    stamp(A, 1)
    A("s_barrier")
    stamp(A, 2)
    for l in reads(0, 0) + reads(0, 1): A(l)
    EPI = epilogue(True)
    def emit(M, R, extra_per=0):
        R = list(R)
        for i_, m in enumerate(M):
            A(m)
            for _ in range(3):
                if R: A(R.pop(0))
            for _ in range(extra_per):
                if EPI: A(EPI.pop(0))
    for c in range(20):
        ex = 0
        if c in (10, 11): ex = -(-len(epilogue(True)) // 30)
        A("s_waitcnt lgkmcnt(6)")
        emit(mf(c, 0), reads(c, 2), ex if c != 10 else 0)
        A("s_waitcnt lgkmcnt(6)")
        emit(mf(c, 1), reads(c, 3), ex)
        if c == SIGC: A("s_waitcnt vmcnt(0)")
        A("s_waitcnt lgkmcnt(0)")
        A("s_barrier")
        emit(mf(c, 2), reads(c + 1, 0), ex)
        A("s_waitcnt lgkmcnt(6)")
        emit(mf(c, 3), reads(c + 1, 1), ex)
        if c == 11:
            while EPI: A(EPI.pop(0))
        if c == 15:
            import fused2
            fused2.kv_dma_setup(A)
        if c == 4:
            L = A.new("fp")
            A(f"""
            s_cmp_eq_u32 s32, 0
            s_cbranch_scc0 {L}
            v_mov_b32 v240, {FPREP*4}
            global_load_dword v241, v240, s[4:5] sc1
            {L}:
            """)
        if c == 9: stamp(A, 5)
        if c == SIGC:
            A(f"s_cmp_eq_u32 s32, 0")
            A(f"s_cbranch_scc1 {tag}_hk_sig")
            A(f"{tag}_rt_sig:")
    stamp(A, 3)
    A(f"s_mov_b32 s61, s60")
    for l in epilogue(False): A(l)
    A(f"s_branch {name}_cdone")
    A(f"{tag}_hk_sig:")
    stamp(A, 7)
    L = A.new("cp")
    A(f"""
    v_readfirstlane_b32 s58, v241
    s_cmp_ge_u32 s58, 16
    s_cbranch_scc1 {L}
    """)
    check_prep(A, 240, 241)
    A(f"""
    {L}:
    s_lshl_b32 s54, s38, 7
    s_lshl_b32 s55, s37, 2
    s_add_u32 s54, s54, s55
    s_add_u32 s54, s54, {FBW}
    """)
    set_flag_ws(A, 54, 240, 241)
    A(f"s_branch {tag}_rt_sig")

def p1_compute_setup(A):
    A(f"""
    s_lshr_b32 s44, s35, 1
    s_lshl_b32 s44, s44, 6
    v_add_u32 v20, s44, v3
    v_lshlrev_b32 v20, 7, v20
    v_add_u32 v20, {R1}, v20
    v_lshrrev_b32 v16, 1, v3
    v_and_b32 v16, 7, v16
    v_xor_b32 v16, v16, v131
    """)
    for kk in range(4):
        A(f"""
        v_xor_b32 v17, {2*kk}, v16
        v_lshlrev_b32 v17, 4, v17
        v_add_u32 v{CXA+kk}, v20, v17
        """)
    A(f"""
    v_lshrrev_b32 v16, 2, v1
    v_and_b32 v16, 3, v16
    v_lshlrev_b32 v17, 11, v131
    v_lshlrev_b32 v18, 8, v16
    v_add_u32 v17, v17, v18
    v_lshrrev_b32 v18, 4, v1
    v_and_b32 v18, 1, v18
    v_lshlrev_b32 v18, 5, v18
    v_add_u32 v17, v17, v18
    v_and_b32 v18, 3, v1
    v_lshlrev_b32 v18, 3, v18
    v_add_u32 v17, v17, v18
    v_add_u32 v17, {R1+16384}, v17
    s_and_b32 s44, s35, 1
    s_lshl_b32 s44, s44, 1
    """)
    for nt in range(2):
        A(f"""
        s_add_u32 s45, s44, {nt}
        v_xor_b32 v18, s45, v16
        v_lshlrev_b32 v18, 6, v18
        v_add_u32 v{CWA+nt}, v17, v18
        """)

def p1_prep(A, name):
    A.c("prep WGs")
    A(f"""
    s_lshl_b32 s69, s65, 2
    s_add_u32 s69, s69, s64
    s_sub_u32 s69, s69, 28
    s_cmp_ge_u32 s32, 3
    s_cbranch_scc1 {name}_prep_done
    """)
    srd(A, 12, 28, 29, 32*20*20*2)
    A(f"""
    s_cmp_eq_u32 s32, 2
    s_cbranch_scc1 {name}_sel
    s_lshl_b32 s44, s69, 1
    s_add_u32 s44, s44, s32
    v_subrev_u32 v4, 2, v3
    v_cmp_gt_u32 vcc, 18, v3
    v_cndmask_b32 v4, v4, v3, vcc
    v_and_b32 v5, 30, v3
    v_cmp_eq_u32 s[46:47], 20, v5
    s_or_b64 s[46:47], s[46:47], vcc
    v_lshlrev_b32 v4, 1, v4
    s_mul_i32 s45, s44, 800
    v_add_u32 v4, s45, v4
    s_and_b32 s45, s44, 1
    s_mul_i32 s48, s45, {4*40}
    v_mul_u32_u24 v5, {8*40}, v131
    v_add3_u32 v5, v4, v5, s48
    v_mov_b32 v6, 0x7fffffff
    v_cndmask_b32 v5, v6, v5, s[46:47]
    v_cmp_eq_u32 vcc, 0, v131
    s_and_b64 s[46:47], s[46:47], vcc
    s_cmp_eq_u32 s45, 1
    s_cselect_b32 s48, 0, {16*40}
    v_add_u32 v4, s48, v4
    v_cndmask_b32 v4, v6, v4, s[46:47]
    """)
    for j in range(8): A(f"buffer_load_ushort v{16+j}, v5, s[12:15], 0 offen offset:{40*j}")
    for j in range(4): A(f"buffer_load_ushort v{24+j}, v4, s[12:15], 0 offen offset:{40*j}")
    A("s_waitcnt vmcnt(0)")
    for j in range(6): A(f"v_lshl_or_b32 v{32+j}, v{17+2*j}, 16, v{16+2*j}")
    A(f"""
    s_mul_i32 s45, s44, 1536
    s_add_u32 s45, s45, {WPH}
    v_lshlrev_b32 v7, 3, v1
    buffer_store_dwordx4 v[32:35], v2, s[8:11], s45 offen sc1
    buffer_store_dwordx2 v[36:37], v7, s[8:11], s45 offen offset:1024 sc1
    s_branch {name}_prep_done
    {name}_sel:
    s_cmp_lg_u32 s69, 0
    s_cbranch_scc1 {name}_prep_done
    v_lshlrev_b32 v4, 2, v131
    v_sub_u32 v4, v3, v4
    """)
    for j in range(12):
        tgt = (8*(j//4) + (j%4)) if j < 8 else 16 + (j-8)
        A(f"""
        v_cmp_eq_u32 vcc, {tgt}, v4
        v_mov_b32 v5, 0x3f80
        v_cndmask_b32 v{16+j}, 0, v5, vcc
        """)
    for j in range(6): A(f"v_lshl_or_b32 v{32+j}, v{17+2*j}, 16, v{16+2*j}")
    A(f"""
    s_mov_b32 s45, {SEL}
    v_lshlrev_b32 v7, 3, v1
    buffer_store_dwordx4 v[32:35], v2, s[8:11], s45 offen sc1
    buffer_store_dwordx2 v[36:37], v7, s[8:11], s45 offen offset:1024 sc1
    v_mov_b32 v40, 0
    v_mov_b32 v41, 0
    v_mov_b32 v42, 0
    v_mov_b32 v43, 0
    """)
    for j in range(FZERO_BYTES // 1024):
        A(f"s_mov_b32 s45, {FZERO_LO + j*1024}")
        A(f"buffer_store_dwordx4 v[40:43], v2, s[8:11], s45 offen sc1")
    A(f"""
    {name}_prep_done:
    """)
    stamp(A, 1)
    A(f"""
    s_load_dwordx2 s[44:45], s[0:1], 24
    s_load_dwordx2 s[46:47], s[0:1], 48
    s_waitcnt lgkmcnt(0)
    """)
    srd(A, 12, 44, 45, WO_BYTES)
    srd(A, 16, 46, 47, WO_BYTES)
    for i in range(13):
        L = A.new("wr")
        tv = 64 + 4 * i
        A(f"""
        s_add_u32 s48, s32, {8*i}
        s_cmp_ge_u32 s48, 100
        s_cbranch_scc1 {L}
        s_mul_i32 s49, s48, 205
        s_lshr_b32 s49, s49, 11
        s_mul_i32 s50, s49, 10
        s_sub_u32 s50, s48, s50
        s_mul_i32 s51, s69, 10
        s_add_u32 s49, s49, s51
        s_lshl_b32 s50, s50, 6
        v_add_u32 v10, s50, v1
        v_lshrrev_b32 v11, 5, v10
        v_mul_u32_u24 v12, 205, v11
        v_lshrrev_b32 v12, 11, v12
        v_mul_u32_u24 v13, 10, v12
        v_sub_u32 v11, v11, v13
        v_mul_u32_u24 v13, 52, v11
        v_lshrrev_b32 v13, 8, v13
        v_mul_u32_u24 v14, 5, v13
        v_sub_u32 v11, v11, v14
        v_lshlrev_b32 v12, 5, v12
        v_lshlrev_b32 v13, 2, v13
        v_add_u32 v12, v12, v13
        v_lshrrev_b32 v13, 3, v10
        v_and_b32 v13, 3, v13
        v_lshlrev_b32 v13, 3, v13
        v_add_u32 v12, v12, v13
        v_lshrrev_b32 v13, 1, v10
        v_and_b32 v13, 3, v13
        v_add_u32 v12, v12, v13
        v_mul_u32_u24 v12, 1280, v12
        v_lshlrev_b32 v11, 5, v11
        v_and_b32 v13, 1, v10
        v_lshlrev_b32 v13, 4, v13
        v_add3_u32 v10, v12, v11, v13
        s_cmp_ge_u32 s49, 80
        s_cselect_b32 s51, 80, 0
        s_sub_u32 s51, s49, s51
        s_mul_i32 s52, s51, 205
        s_lshr_b32 s52, s52, 11
        s_mul_i32 s54, s52, 10
        s_sub_u32 s54, s51, s54
        s_mul_i32 s54, s54, {64*1280}
        s_mul_i32 s52, s52, 160
        s_add_u32 s54, s54, s52
        s_cmp_ge_u32 s49, 80
        s_cbranch_scc1 {L}_b
        buffer_load_dwordx4 {v(tv,4)}, v10, s[12:15], s54 offen
        s_branch {L}
        {L}_b:
        buffer_load_dwordx4 {v(tv,4)}, v10, s[16:19], s54 offen
        {L}:
        """)
    stamp(A, 2)
    A("s_waitcnt vmcnt(0)")
    stamp(A, 3)
    for i in range(13):
        L = A.new("ws")
        tv = 64 + 4 * i
        A(f"""
        s_add_u32 s48, s32, {8*i}
        s_cmp_ge_u32 s48, 100
        s_cbranch_scc1 {L}
        s_mul_i32 s49, s69, 100
        s_add_u32 s49, s49, s48
        s_lshl_b32 s49, s49, 10
        s_add_u32 s49, s49, {WOP}
        buffer_store_dwordx4 {v(tv,4)}, v2, s[8:11], s49 offen sc1
        {L}:
        """)
    A("s_waitcnt vmcnt(0)")
    stamp(A, 7)
    A(f"""
    s_cmp_eq_u32 s36, 0
    s_cbranch_scc0 {name}_prep_npf
    """)
    prefetch_share(A, 20, 21, 22, 23, 4, 35)
    A(f"""
    {name}_prep_npf:
    s_barrier
    s_cmp_eq_u32 s32, 4
    s_cbranch_scc0 {name}_prep_w
    s_mov_b32 s50, {FPREP}
    """)
    signal_dbg(A, 50, 48, 49)
    check_prep(A, 48, 49)
    A(f"s_mov_b32 s50, {FBW}")
    tile_flags_voff(A, 7)
    A("s_mov_b32 exec_lo, 0xffffff\ns_mov_b32 exec_hi, 0")
    poll_ws(A, 7, 50, 16, NTF, sleep=32)
    A("s_mov_b64 exec, -1")
    stage0_all(A)
    A(f"""
    s_waitcnt vmcnt(0)
    {name}_prep_w:
    """)
    import fused2
    fused2.kv_dma_setup(A)
    A(f"""
    s_barrier
    s_branch {name}_p2entry
    """)

def code_prefetch(A, name, nblk=6):
    if os.environ.get("CODEPF", "1") != "1": return
    L = A.new("cpf")
    A(f"""
    s_cmp_eq_u32 s32, 7
    s_cbranch_scc0 {L}
    s_and_b32 s54, s64, {int(os.environ.get("CPFMASK", "15"))}
    s_cmp_eq_u32 s54, 0
    s_cbranch_scc0 {L}
    s_getpc_b64 s[54:55]
    {L}_pc:
    s_sub_u32 s54, s54, {L}_pc-{name}
    s_subb_u32 s55, s55, 0
    s_mov_b32 s56, {name}_end-{name}
    v_lshlrev_b32 v228, 7, v1
    """)
    for i in range(nblk):
        A(f"""
        v_cmp_gt_u32 vcc, s56, v228
        s_and_b64 exec, vcc, vcc
        s_cbranch_execz {L}_x
        global_load_dword v229, v228, s[54:55]
        v_add_u32 v228, 8192, v228
        """)
    A(f"""
    {L}_x:
    s_mov_b64 exec, -1
    {L}:
    """)

def tlb_warm(A, name):
    mode = os.environ.get("TLBW", "1")
    if mode == "0": return
    L = A.new("tw")
    A(f"""
    s_cmp_eq_u32 s32, 6
    s_cbranch_scc0 {L}
    s_cmp_ge_u32 s64, {32 - int(os.environ.get("TLBN", "1"))}
    s_cbranch_scc0 {L}
    s_load_dwordx2 s[44:45], s[0:1], 24
    s_load_dwordx2 s[46:47], s[0:1], 48
    s_load_dwordx2 s[48:49], s[0:1], 56
    v_lshlrev_b32 v230, 16, v1
    s_waitcnt lgkmcnt(0)
    """)
    for (lo, hi, sz) in ((20, 21, X_BYTES), (22, 23, W_BYTES), (24, 25, X_BYTES), (26, 27, W_BYTES), (44, 45, WO_BYTES), (46, 47, WO_BYTES)):
        srd(A, 12, lo, hi, sz)
        A("buffer_load_dword v231, v230, s[12:15], 0 offen")
    srd(A, 12, 48, 49, OUT_BYTES)
    A("buffer_load_dword v231, v230, s[12:15], 0 offen")
    A("s_mov_b32 s50, 0x400000")
    A("buffer_load_dword v231, v230, s[12:15], s50 offen")
    for i in range(8):
        A(f"s_mov_b32 s50, {i*0x400000:#x}")
        A("buffer_load_dword v231, v230, s[8:11], s50 offen")
    A(f"{L}:")

def gen_fused(A, name):
    kernel_begin(A, name)
    stamp(A, 10, real=True)
    gen_common(A, name)
    stamp(A, 0)
    tlb_warm(A, name)
    code_prefetch(A, name)
    prefetch_share(A, 24, 25, 26, 27, 8, 32)
    A(f"""
    s_cmp_eq_u32 s31, 1
    s_cbranch_scc1 {name}_prep
    s_cmp_eq_u32 s36, 1
    s_cbranch_scc1 {name}_loader
    """)
    if os.environ.get("XP") == "nobar": A("s_endpgm")
    p1_compute_setup(A)

    A(f"""
    s_cmp_ge_u32 s38, 10
    s_cbranch_scc1 {name}_compN
    """)
    p1_compute(A, name, "T")
    A(f"{name}_compN:")
    p1_compute(A, name, "N")
    A(f"{name}_cdone:")
    A("s_barrier")
    A(f"s_branch {name}_p2entry")
    A(f"{name}_prep:")
    p1_prep(A, name)
    A(f"{name}_loader:")
    p1_loader(A, name)
    A(f"{name}_p2entry:")
    stamp(A, 4)
    if STOP_AFTER == "P1":
        A("s_waitcnt vmcnt(0)")
        stamp(A, 9)
        stamp(A, 11, real=True)
        stamp_flush(A, 12, 0, 32, base=70)
        A("s_endpgm")
    else:
        import fused2
        fused2.gen_p2(A, name)
    A(f"{name}_done:")
    A("s_endpgm")
    A(f"{name}_end:")
    return kernel_desc(name, 256)
```

```python
import os
from asmlib import *
from layout2 import *
import fused
from fused import (flag_issue, flag_check, poll_ws, set_flag_ws, check_prep, tile_flags_voff, p2_stage_dma, frag_addr, QA_M, QB_M, QA_R, QB_R, SPIN_MAX, STOP_AFTER)

S0, S1, P0, P1, OA, OB = 16, 32, 48, 56, 64, 80
SETS = [dict(km=96, kr=100, v0=104, v1=108), dict(km=112, kr=116, v0=120, v1=124)]
AKM, AKR, AV = 128, 129, 130
NKM, NKR, NV = 133, 134, 135
PHQ = 136
KXM, KXR, QXR, VX0, VX1, WM, WR, SL16, SL8, QXM = 148, 152, 154, 156, 160, 164, 168, 172, 176, 180
KVL = 148
T0, T1, T2, T3 = 184, 185, 186, 187
DD, TT, PK, TB = 192, 208, 232, 244
FV, FT = 188, 248
KVF = 4 * SLOT
KVX = 98304
XO = 0

def mf16(A, D, a_, b_, C=None):
    A(f"v_mfma_f32_32x32x16_bf16 {v(D,16)}, {v(a_,4)}, {v(b_,4)}, {v(D,16) if C is None else C}")
def mf8(A, D, a_, b_, C=None):
    A(f"v_mfma_f32_32x32x8_bf16 {v(D,16)}, {v(a_,2)}, {v(b_,2)}, {v(D,16) if C is None else C}")

def phi(A, xm, xr, wm, wr, D, T, out):
    mf16(A, D, wm, xm, "0")
    mf8(A, D, wr, xr)
    mx, mn, t = T, T+1, T+2
    A(f"v_max3_f32 v{mx}, v{D}, v{D+1}, v{D+2}")
    A(f"v_min3_f32 v{mn}, v{D}, v{D+1}, v{D+2}")
    for r in (3, 5, 7):
        A(f"v_max3_f32 v{mx}, v{mx}, v{D+r}, v{D+r+1}")
        A(f"v_min3_f32 v{mn}, v{mn}, v{D+r}, v{D+r+1}")
    A(f"v_max_f32 v{mx}, v{mx}, v{D+9}")
    A(f"v_min_f32 v{mn}, v{mn}, v{D+9}")
    A(f"v_mov_b32 v{t}, v{mx}")
    A(f"v_mov_b32 v{t+1}, v{mn}")
    A(f"v_permlane32_swap_b32 v{mx}, v{t}")
    A(f"v_permlane32_swap_b32 v{mn}, v{t+1}")
    A(f"v_max_f32 v{mx}, v{mx}, v{t}")
    A(f"v_min_f32 v{mn}, v{mn}, v{t+1}")
    A(f"v_mul_f32 v{mx}, s41, v{mx}")
    A(f"v_mul_f32 v{mn}, s40, v{mn}")
    EP, EN = T+4, T+14
    for r in range(10):
        A(f"v_fma_f32 v{EP+r}, v{D+r}, s40, v{mx}")
        A(f"v_fma_f32 v{EN+r}, v{D+r}, s41, v{mn}")
    for r in range(10):
        A(f"v_exp_f32 v{EP+r}, v{EP+r}")
        A(f"v_exp_f32 v{EN+r}, v{EN+r}")
    sp, sn = T, T+1
    A(f"v_add_f32 v{sp}, v{EP}, v{EP+1}")
    A(f"v_add_f32 v{sn}, v{EN}, v{EN+1}")
    for r in range(2, 10):
        A(f"v_add_f32 v{sp}, v{sp}, v{EP+r}")
        A(f"v_add_f32 v{sn}, v{sn}, v{EN+r}")
    A(f"v_mov_b32 v{t}, v{sp}")
    A(f"v_mov_b32 v{t+1}, v{sn}")
    A(f"v_permlane32_swap_b32 v{sp}, v{t}")
    A(f"v_permlane32_swap_b32 v{sn}, v{t+1}")
    A(f"v_add_f32 v{sp}, v{sp}, v{t}")
    A(f"v_add_f32 v{sn}, v{sn}, v{t+1}")
    A(f"v_rcp_f32 v{sp}, v{sp}")
    A(f"v_rcp_f32 v{sn}, v{sn}")
    for r in range(10):
        A(f"v_mul_f32 v{EP+r}, v{EP+r}, v{sp}")
        A(f"v_mul_f32 v{EN+r}, v{EN+r}, v{sn}")
    for i in range(4):
        A(f"v_cvt_pk_bf16_f32 v{out+i}, v{EP+2*i}, v{EP+2*i+1}")
        A(f"v_cvt_pk_bf16_f32 v{out+6+i}, v{EN+2*i}, v{EN+2*i+1}")
    A(f"v_cvt_pk_bf16_f32 v{out+4}, v{EP+8}, v{EP+9}")
    A(f"v_cvt_pk_bf16_f32 v{out+10}, v{EN+8}, v{EN+9}")
    A(f"v_mov_b32 v{out+5}, 0")
    A(f"v_mov_b32 v{out+11}, 0")

def phase(A, Sc, Pc, Sn, qm, qr, kset, Oprev, Pprev, vset, do_qk=True, do_pv=True, do_exp=True, pre=None):
    pre = list(pre or [])
    def ex(i):
        if do_exp: A(f"v_exp_f32 v{Sc+i}, v{Sc+i}")
    def cv(i):
        if do_exp: A(f"v_cvt_pk_bf16_f32 v{Pc+i}, v{Sc+2*i}, v{Sc+2*i+1}")
    def sprinkle(n):
        for _ in range(n):
            if pre:
                for l in pre.pop(0): A(l)
    if do_qk: mf16(A, Sn, kset['km'], qm, "0")
    sprinkle(1)
    for i in range(0, 4): ex(i)
    if do_qk: mf8(A, Sn, kset['kr'], qr)
    sprinkle(1)
    for i in range(4, 8): ex(i)
    cv(0); cv(1)
    if do_pv: mf16(A, Oprev, vset['v0'], Pprev)
    for i in range(8, 12): ex(i)
    cv(2); cv(3)
    if do_pv: mf16(A, Oprev, vset['v1'], Pprev + 4)
    for i in range(12, 16): ex(i)
    cv(4); cv(5)
    sprinkle(8)
    cv(6); cv(7)

def o_addr(A, vd):
    A(f"""
    s_mul_i32 s55, s33, 20
    v_lshlrev_b32 v{vd}, 2, v131
    v_add_u32 v{vd}, s55, v{vd}
    v_and_b32 v{vd+1}, 7, v{vd}
    v_lshlrev_b32 v{vd+1}, 1, v{vd+1}
    v_lshrrev_b32 v{vd}, 3, v{vd}
    v_lshlrev_b32 v{vd}, 10, v{vd}
    v_add_u32 v{vd}, v{vd}, v{vd+1}
    s_lshl_b32 s55, s36, 5
    v_add_u32 v{vd+1}, s55, v3
    v_lshlrev_b32 v{vd+1}, 4, v{vd+1}
    v_add_u32 v{vd}, v{vd}, v{vd+1}
    s_lshl_b32 s55, s34, 2
    s_add_u32 s55, s55, s35
    s_mul_i32 s55, s55, {ORB}
    s_add_u32 s55, s55, {OOFF}
    """)
def store_o(A, R, tmp, vaddr, soff):
    for i in range(3):
        A(f"v_cvt_pk_bf16_f32 v{tmp+2*i}, v{R+4*i}, v{R+4*i+1}")
        A(f"v_cvt_pk_bf16_f32 v{tmp+1+2*i}, v{R+4*i+2}, v{R+4*i+3}")
    A(f"buffer_store_dwordx2 {v(tmp,2)}, v{vaddr}, s[8:11], s{soff} offen sc1")
    A(f"buffer_store_dwordx2 {v(tmp+2,2)}, v{vaddr}, s[8:11], s{soff} offen offset:1024 sc1")
    A("s_mov_b32 exec_hi, 0")
    A(f"buffer_store_dwordx2 {v(tmp+4,2)}, v{vaddr}, s[8:11], s{soff} offen offset:2048 sc1")
    A("s_mov_b64 exec, -1")
def fo_flag(A, br):
    A(f"""
    s_lshl_b32 s56, s34, 2
    s_add_u32 s56, s56, s35
    s_lshl_b32 s56, s56, 8
    s_lshl_b32 s57, s33, 3
    s_add_u32 s56, s56, s57
    s_lshl_b32 s57, s36, 2
    s_add_u32 s56, s56, s57
    s_add_u32 s56, s56, {FO + br*8192}
    """)
    set_flag_ws(A, 56, T0, T1)

def a_loads(A):
    frag_addr(A, T0, T1)
    A(f"""
    s_lshl_b32 s56, s34, 8
    s_lshl_b32 s57, s32, 5
    s_add_u32 s57, s57, s56
    s_lshl_b32 s57, s57, 4
    s_add_u32 s57, s57, {QKOFF}
    s_add_u32 s58, s66, 80
    s_lshl_b32 s58, s58, 15
    s_add_u32 s58, s58, s57
    buffer_load_dwordx4 {v(KXM,4)}, v{T0}, s[8:11], s58 offen sc1
    s_add_u32 s58, s67, 80
    s_lshl_b32 s58, s58, 15
    s_add_u32 s58, s58, s57
    buffer_load_dwordx2 {v(KXR,2)}, v{T1}, s[8:11], s58 offen sc1
    s_lshl_b32 s57, s35, 1
    s_add_u32 s57, s57, s36
    s_lshl_b32 s57, s57, 5
    s_add_u32 s57, s57, s56
    s_lshl_b32 s57, s57, 4
    s_add_u32 s57, s57, {QKOFF}
    s_lshl_b32 s58, s66, 15
    s_add_u32 s58, s58, s57
    buffer_load_dwordx4 {v(QXM,4)}, v{T0}, s[8:11], s58 offen sc1
    s_lshl_b32 s58, s67, 15
    s_add_u32 s58, s58, s57
    buffer_load_dwordx2 {v(QXR,2)}, v{T1}, s[8:11], s58 offen sc1
    v_mov_b32 v{T2}, 0x3f803f80
    v_cmp_eq_u32 vcc, 20, v3
    v_cndmask_b32 v{T2}, 0, v{T2}, vcc
    """)
    for r in range(VX0, VX0+8): A(f"v_mov_b32 v{r}, v{T2}")
    A(f"""
    v_mul_u32_u24 v{T2}, 320, v131
    v_lshlrev_b32 v{T3}, 4, v3
    v_add_u32 v{T2}, v{T2}, v{T3}
    s_lshl_b32 s56, s34, 1
    s_lshr_b32 s57, s32, 2
    s_add_u32 s56, s56, s57
    s_mul_i32 s56, s56, {VC}
    s_and_b32 s57, s32, 3
    s_mul_i32 s57, s57, 1280
    s_add_u32 s56, s56, s57
    s_mul_i32 s57, s33, {VH}
    s_add_u32 s56, s56, s57
    s_add_u32 s56, s56, {VOFF}
    s_mov_b64 exec, s[42:43]
    buffer_load_dwordx4 {v(VX0,4)}, v{T2}, s[8:11], s56 offen sc1
    buffer_load_dwordx4 {v(VX1,4)}, v{T2}, s[8:11], s56 offen offset:640 sc1
    s_mov_b64 exec, -1
    v_lshlrev_b32 v{T3}, 3, v1
    s_mul_i32 s56, s33, 1536
    s_add_u32 s56, s56, {WPH}
    buffer_load_dwordx4 {v(WM,4)}, v2, s[8:11], s56 offen sc1
    buffer_load_dwordx2 {v(WR,2)}, v{T3}, s[8:11], s56 offen offset:1024 sc1
    s_mov_b32 s56, {SEL}
    buffer_load_dwordx4 {v(SL16,4)}, v2, s[8:11], s56 offen sc1
    buffer_load_dwordx2 {v(SL8,2)}, v{T3}, s[8:11], s56 offen offset:1024 sc1
    """)

def phi_list(xm, xr, wm, wr, D, EN, out):
    L = []
    mx, mn, t, u = D+10, D+11, D+12, D+13
    L.append(f"v_mfma_f32_32x32x16_bf16 {v(D,16)}, {v(wm,4)}, {v(xm,4)}, 0")
    L.append(f"v_mfma_f32_32x32x8_bf16 {v(D,16)}, {v(wr,2)}, {v(xr,2)}, {v(D,16)}")
    L.append(f"v_max3_f32 v{mx}, v{D}, v{D+1}, v{D+2}")
    L.append(f"v_min3_f32 v{mn}, v{D}, v{D+1}, v{D+2}")
    for r in (3, 5, 7):
        L.append(f"v_max3_f32 v{mx}, v{mx}, v{D+r}, v{D+r+1}")
        L.append(f"v_min3_f32 v{mn}, v{mn}, v{D+r}, v{D+r+1}")
    L.append(f"v_max_f32 v{mx}, v{mx}, v{D+9}")
    L.append(f"v_min_f32 v{mn}, v{mn}, v{D+9}")
    L.append(f"v_mov_b32 v{t}, v{mx}")
    L.append(f"v_mov_b32 v{u}, v{mn}")
    L.append(f"v_permlane32_swap_b32 v{mx}, v{t}")
    L.append(f"v_permlane32_swap_b32 v{mn}, v{u}")
    L.append(f"v_max_f32 v{mx}, v{mx}, v{t}")
    L.append(f"v_min_f32 v{mn}, v{mn}, v{u}")
    L.append(f"v_mul_f32 v{mx}, s41, v{mx}")
    L.append(f"v_mul_f32 v{mn}, s40, v{mn}")
    for r in range(10):
        L.append(f"v_fma_f32 v{EN+r}, v{D+r}, s41, v{mn}")
        L.append(f"v_fma_f32 v{D+r}, v{D+r}, s40, v{mx}")
    for r in range(10):
        L.append(f"v_exp_f32 v{EN+r}, v{EN+r}")
        L.append(f"v_exp_f32 v{D+r}, v{D+r}")
    sp, sn = mx, mn
    L.append(f"v_add_f32 v{sp}, v{D}, v{D+1}")
    L.append(f"v_add_f32 v{sn}, v{EN}, v{EN+1}")
    for r in range(2, 10):
        L.append(f"v_add_f32 v{sp}, v{sp}, v{D+r}")
        L.append(f"v_add_f32 v{sn}, v{sn}, v{EN+r}")
    L.append(f"v_mov_b32 v{t}, v{sp}")
    L.append(f"v_mov_b32 v{u}, v{sn}")
    L.append(f"v_permlane32_swap_b32 v{sp}, v{t}")
    L.append(f"v_permlane32_swap_b32 v{sn}, v{u}")
    L.append(f"v_add_f32 v{sp}, v{sp}, v{t}")
    L.append(f"v_add_f32 v{sn}, v{sn}, v{u}")
    L.append(f"v_rcp_f32 v{sp}, v{sp}")
    L.append(f"v_rcp_f32 v{sn}, v{sn}")
    for r in range(10):
        L.append(f"v_mul_f32 v{D+r}, v{D+r}, v{sp}")
        L.append(f"v_mul_f32 v{EN+r}, v{EN+r}, v{sn}")
    for i in range(4):
        L.append(f"v_cvt_pk_bf16_f32 v{out+i}, v{D+2*i}, v{D+2*i+1}")
        L.append(f"v_cvt_pk_bf16_f32 v{out+6+i}, v{EN+2*i}, v{EN+2*i+1}")
    L.append(f"v_cvt_pk_bf16_f32 v{out+4}, v{D+8}, v{D+9}")
    L.append(f"v_cvt_pk_bf16_f32 v{out+10}, v{EN+8}, v{EN+9}")
    L.append(f"v_mov_b32 v{out+5}, 0")
    L.append(f"v_mov_b32 v{out+11}, 0")
    return L

def a_compute(A):
    DK, ENK, DQ, ENQ, PKK = 192, 208, 218, 234, 244
    Lk = phi_list(KXM, KXR, WM, WR, DK, ENK, PKK)
    Lq = phi_list(QXM, QXR, WM, WR, DQ, ENQ, PHQ)
    for a_, b_ in zip(Lk, Lq):
        A(a_); A(b_)
    TP0, TP1 = 192, 208
    TB0, TB1 = 224, 232
    A(f"s_mul_i32 s55, s32, 5120")
    A(f"s_add_u32 s55, s55, {KVX}")
    A(f"v_add_u32 v{T0}, s55, v2")
    mf16(A, TP0, PKK, SL16, "0"); mf16(A, TP1, PKK+6, SL16, "0")
    mf8(A, TP0, PKK+4, SL8); mf8(A, TP1, PKK+10, SL8)
    for i in range(8): A(f"v_cvt_pk_bf16_f32 v{TB0+i}, v{TP0+2*i}, v{TP0+2*i+1}")
    for i in range(8): A(f"v_cvt_pk_bf16_f32 v{TB1+i}, v{TP1+2*i}, v{TP1+2*i+1}")
    KA0, KA1 = 192, 208
    mf16(A, KA0, TB0, VX0, "0"); mf16(A, KA1, TB1, VX0, "0")
    mf16(A, KA0, TB0+4, VX1); mf16(A, KA1, TB1+4, VX1)
    A(f"ds_write_b128 v{T0}, {v(KA0,4)}")
    A(f"ds_write_b128 v{T0}, {v(KA0+4,4)} offset:1024")
    A(f"v_mov_b32 v{KA0+10}, v{KA1+8}")
    A(f"v_mov_b32 v{KA0+11}, v{KA1+9}")
    A(f"ds_write_b128 v{T0}, {v(KA1,4)} offset:3072")
    A(f"ds_write_b128 v{T0}, {v(KA1+4,4)} offset:4096")
    A(f"ds_write_b128 v{T0}, {v(KA0+8,4)} offset:2048")

def kv_dma_setup(A):
    for e in range(3):
        L = A.new("kd")
        A(f"""
        s_mul_i32 s55, s32, 3
        s_add_u32 s55, s55, {e}
        s_min_u32 s55, s55, 21
        s_cmp_ge_u32 s55, 11
        s_cselect_b32 s56, 1, 0
        s_mul_i32 s57, s56, 11
        s_sub_u32 s55, s55, s57
        s_mul_i32 s57, s56, {PART}
        s_lshl_b32 s58, s55, 10
        s_add_u32 s{50+e}, s57, s58
        s_lshl_b32 s56, s56, 3
        s_cmp_ge_u32 s55, 6
        s_cbranch_scc1 {L}_v
        s_lshr_b32 s57, s55, 1
        s_add_u32 s58, s66, s57
        s_cmp_eq_u32 s57, 2
        s_cselect_b32 s58, s67, s58
        s_add_u32 s58, s58, 80
        s_lshl_b32 s58, s58, 15
        s_lshl_b32 s56, s56, 11
        s_add_u32 s58, s58, s56
        s_and_b32 s57, s55, 1
        s_lshl_b32 s57, s57, 10
        s_add_u32 s58, s58, s57
        s_add_u32 s{44+e}, s58, {BR + QKOFF}
        s_mov_b32 s{47+e}, 2048
        s_branch {L}_e
        {L}_v:
        s_mul_i32 s56, s56, {VC}
        s_sub_u32 s57, s55, 6
        s_lshl_b32 s57, s57, 10
        s_add_u32 s56, s56, s57
        s_add_u32 s{44+e}, s56, s53
        s_mov_b32 s{47+e}, {VC}
        {L}_e:
        s_add_u32 s{44+e}, s{44+e}, s{47+e}
        """)
def kv_dma_issue(A, SB):
    for e in range(3):
        A(f"s_add_u32 m0, s{SB}, s{50+e}")
        A(f"s_nop 0")
        A(f"buffer_load_dwordx4 v2, s[8:11], s{44+e} offen sc1 lds")
        A(f"s_add_u32 s{44+e}, s{44+e}, s{47+e}")

def wo_prefetch(A, level):
    A(f"""
    s_mul_i32 s55, s64, 51200
    s_lshl_b32 s56, s32, 10
    s_add_u32 s55, s55, s56
    s_add_u32 s55, s55, {WOP}
    """)
    for r in range(7):
        if r == 6:
            A("s_cmp_ge_u32 s32, 2")
            A("s_cbranch_scc1 WOPFC")
        A(f"s_add_u32 s56, s55, {r*8192}")
        A(f"buffer_load_dwordx4 v[252:255], v2, s[8:11], s56 offen")
    A("WOPFC:")

def gen_p2(A, name):
    SI, SB, MK1, MK3 = 60, 61, 62, 63
    fused.p2_q_reads(A)
    A(f"s_mov_b32 s{SB}, {SLOT}")
    kv_dma_issue(A, SB)
    A(f"""
    v_mov_b32 v{T0}, 0x3f803f80
    v_cmp_eq_u32 vcc, 20, v3
    v_cndmask_b32 v{T0}, 0, v{T0}, vcc
    """)
    for r in [SETS[0]['v0']+i for i in range(8)] + [SETS[1]['v0']+i for i in range(8)]: A(f"v_mov_b32 v{r}, v{T0}")
    A(f"""
    s_mul_i32 s55, s36, {PART}
    v_lshlrev_b32 v{T0}, 11, v131
    v_lshlrev_b32 v{T1}, 4, v3
    v_add3_u32 v{AKM}, v{T0}, v{T1}, s55
    s_add_u32 s56, s55, 4096
    s_add_u32 s56, s56, s68
    v_add_u32 v{AKR}, s56, v{T1}
    v_mul_u32_u24 v{T0}, 320, v131
    s_add_u32 s56, s55, 6144
    v_add3_u32 v{AV}, v{T0}, v{T1}, s56
    v_add_u32 v{NKM}, {SLOT}, v{AKM}
    v_add_u32 v{NKR}, {SLOT}, v{AKR}
    v_add_u32 v{NV}, {SLOT}, v{AV}
    """)
    for r in range(OA, OA+32): A(f"v_mov_b32 v{r}, 0")
    for r in range(P1, P1+8): A(f"v_mov_b32 v{r}, 0")
    A(f"""
    s_mov_b32 s{MK1}, {(1<<2)|(1<<6):#x}
    s_mov_b32 s{MK3}, {((1<<1) if os.environ.get('WOPF', '0') == '1' else 0)|(1<<2)|(1<<6):#x}
    s_cmp_eq_u32 s36, 1
    s_cselect_b32 s56, {(1<<5)|(1<<7):#x}, 0
    s_cselect_b32 s55, {1<<7:#x}, 0
    s_or_b32 s{MK3}, s{MK3}, s56
    s_or_b32 s{MK1}, s{MK1}, s55
    s_cmp_eq_u32 s32, 0
    s_cselect_b32 s56, {1<<1:#x}, 0
    s_or_b32 s{MK1}, s{MK1}, s56
    s_or_b32 s{MK3}, s{MK3}, s56
    s_cmp_lt_u32 s32, 5
    s_cselect_b32 s55, {(1<<3)|(1<<4)|(1<<5):#x}, 0
    s_cselect_b32 s56, {(1<<3)|(1<<4):#x}, 0
    s_or_b32 s{MK1}, s{MK1}, s55
    s_or_b32 s{MK3}, s{MK3}, s56
    s_cmp_eq_u32 s32, 0
    s_cselect_b32 s55, 1, 0
    s_andn2_b32 s55, s55, s31
    s_or_b32 s{MK1}, s{MK1}, s55
    """)
    if os.environ.get("NOHOOK") == "1":
        A(f"s_mov_b32 s{MK1}, 0"); A(f"s_mov_b32 s{MK3}, 0")
    if os.environ.get("HM1"):
        A(f"s_and_b32 s{MK1}, s{MK1}, {os.environ['HM1']}"); A(f"s_and_b32 s{MK3}, s{MK3}, {os.environ['HM3']}")
    def loads(kset, ktile, vset, vtile, nxtK, nxtV):
        L = []
        ak, akr = (NKM, NKR) if nxtK else (AKM, AKR)
        av = NV if nxtV else AV
        L.append([f"ds_read_b128 {v(kset['km'],4)}, v{ak} offset:{ktile*512}",
                  f"ds_read_b64 {v(kset['kr'],2)}, v{akr} offset:{ktile*512}"])
        if vset is not None:
            L.append(["s_mov_b64 exec, s[42:43]",
                      f"ds_read_b128 {v(vset['v0'],4)}, v{av} offset:{vtile*1280}",
                      f"ds_read_b128 {v(vset['v1'],4)}, v{av} offset:{vtile*1280+640}",
                      "s_mov_b64 exec, -1"])
        return L
    for g in loads(SETS[1], 0, None, 0, False, False) + loads(SETS[0], 1, SETS[0], 0, False, False):
        for l in g: A(l)
    A("s_waitcnt lgkmcnt(0)")
    mf16(A, S0, SETS[1]['km'], QA_M, "0"); mf8(A, S0, SETS[1]['kr'], QA_R)
    A("s_nop 7")
    phase(A, S0, P0, S1, QB_M, QB_R, SETS[1], OB, P1, SETS[1], do_pv=False)
    if os.environ.get("DIAG") != "stage": stamp(A, 5)
    if os.environ.get("PRIO", "0") == "2":
        L_ = A.new("pr")
        A(f"s_cmp_eq_u32 s36, 1\ns_cbranch_scc0 {L_}\ns_setprio 1\n{L_}:")
    A(f"s_mov_b32 s{SI}, 0")
    A(f"s_mov_b32 s{SB}, {SLOT}")
    A(f"{name}_stage:")
    for i in range(4):
        cur = SETS[i % 2]; nxt = SETS[(i + 1) % 2]
        kt, vt = i + 2, i + 1
        L = loads(nxt, kt % 4, nxt, vt % 4, kt >= 4, vt >= 4)
        A("s_waitcnt lgkmcnt(0)")
        if i == 1:
            if os.environ.get("XB") != "nobar":
                A(f"""
                s_waitcnt vmcnt(0)
                s_barrier
                """)
            if STAMPS and os.environ.get("DIAG") == "stage":
                for s_ in range(8):
                    L_ = A.new("dg")
                    A(f"s_cmp_eq_u32 s{SI}, {s_}")
                    A(f"s_cbranch_scc0 {L_}")
                    stamp(A, 1 + s_)
                    A(f"{L_}:")
            A(f"""
            s_bitcmp1_b32 s{MK1}, s{SI}
            s_cbranch_scc1 {name}_hk1
            {name}_rt1:
            """)
        if i == 2 and os.environ.get("XD") != "nodma":
            A(f"""
            s_cmp_lt_u32 s{SI}, 6
            s_cbranch_scc0 {name}_nodma
            s_add_u32 s{SB}, s{SB}, {SLOT}
            s_cmp_eq_u32 s{SB}, {4*SLOT}
            s_cselect_b32 s{SB}, 0, s{SB}
            """)
            kv_dma_issue(A, SB)
            A(f"{name}_nodma:")
        if i == 3:
            A(f"""
            s_bitcmp1_b32 s{MK3}, s{SI}
            s_cbranch_scc1 {name}_hk3
            {name}_rt3:
            """)
        PR = os.environ.get("PRIO", "0")
        if PR == "1": A("s_setprio 1")
        phase(A, S1, P1, S0, QA_M, QA_R, cur, OA, P0, cur, pre=L)
        if PR == "1": A("s_setprio 0")
        if i == 3:
            A(f"""
            s_cmp_eq_u32 s{SI}, 7
            s_cbranch_scc1 {name}_tail
            """)
        phase(A, S0, P0, S1, QB_M, QB_R, cur, OB, P1, cur)
    A(f"""
    v_mov_b32 v{AKM}, v{NKM}
    v_mov_b32 v{AKR}, v{NKR}
    v_mov_b32 v{AV}, v{NV}
    s_add_u32 s{SI}, s{SI}, 1
    s_and_b32 s55, s{SI}, 3
    s_cmp_eq_u32 s55, 3
    s_mov_b32 s55, {SLOT}
    s_cselect_b32 s55, {(-3*SLOT) & 0xffffffff:#x}, s55
    v_add_u32 v{NKM}, s55, v{NKM}
    v_add_u32 v{NKR}, s55, v{NKR}
    v_add_u32 v{NV}, s55, v{NV}
    s_branch {name}_stage
    """)
    A(f"{name}_hk1:")
    A(f"""
    s_cmp_eq_u32 s{SI}, 0
    s_cbranch_scc1 {name}_h10
    s_cmp_eq_u32 s{SI}, 1
    s_cbranch_scc1 {name}_h11
    s_cmp_eq_u32 s{SI}, 2
    s_cbranch_scc1 {name}_h21
    s_cmp_eq_u32 s{SI}, 3
    s_cbranch_scc1 {name}_h31
    s_cmp_eq_u32 s{SI}, 4
    s_cbranch_scc1 {name}_h41
    s_cmp_eq_u32 s{SI}, 5
    s_cbranch_scc1 {name}_h51
    s_cmp_eq_u32 s{SI}, 6
    s_cbranch_scc1 {name}_h61
    s_cmp_eq_u32 s{SI}, 7
    s_cbranch_scc1 {name}_h71
    s_branch {name}_rt1
    """)
    A(f"""
    {name}_h10:
    s_lshl_b32 s55, s38, 7
    s_lshl_b32 s56, s37, 2
    s_add_u32 s55, s55, s56
    s_add_u32 s55, s55, {FAW}
    """)
    set_flag_ws(A, 55, T0, T1)
    A(f"s_branch {name}_rt1")
    A(f"{name}_h11:")
    A(f"s_mov_b32 s55, {FAW}")
    tile_flags_voff(A, FV)
    A("s_mov_b32 exec_lo, 0xffffff\ns_mov_b32 exec_hi, 0")
    flag_issue(A, FV, 55, FT)
    A("s_mov_b64 exec, -1")
    A(f"s_branch {name}_rt1")
    A(f"{name}_h21:")
    a_loads(A)
    A(f"s_branch {name}_rt1")
    A(f"""
    {name}_h31:
    s_lshl_b32 s55, s32, 10
    s_add_u32 s55, s55, {KVX}
    v_add_u32 v{T0}, s55, v2
    """)
    for j in range(8): A(f"ds_read_b128 {v(DD+4*j,4)}, v{T0} offset:{j*5120}")
    A(f"""
    s_mul_i32 s55, s33, {8*5120}
    s_mul_i32 s56, s34, 5120
    s_add_u32 s55, s55, s56
    s_lshl_b32 s56, s32, 10
    s_add_u32 s55, s55, s56
    s_add_u32 s55, s55, {KVP}
    s_waitcnt lgkmcnt(0)
    """)
    for j in range(1, 8):
        for e in range(4): A(f"v_add_f32 v{DD+e}, v{DD+e}, v{DD+4*j+e}")
    A(f"""
    buffer_store_dwordx4 {v(DD,4)}, v2, s[8:11], s55 offen sc1
    s_branch {name}_rt1
    """)
    A(f"""
    {name}_h41:
    s_cmp_ge_u32 s32, 5
    s_cbranch_scc1 {name}_h41b
    s_lshl_b32 s55, s33, 8
    s_lshl_b32 s56, s32, 5
    s_add_u32 s55, s55, s56
    s_add_u32 s55, s55, {FKVW}
    v_lshlrev_b32 v{FV}, 2, v1
    """)
    flag_issue(A, FV, 55, FT, width=1)
    A(f"{name}_h41b:")
    A(f"s_branch {name}_rt1")
    A(f"""
    {name}_h51:
    s_cmp_ge_u32 s32, 5
    s_cbranch_scc1 {name}_rt1
    """)
    for j in range(1, 8):
        for e in range(4): A(f"v_add_f32 v{KVL+e}, v{KVL+e}, v{KVL+4*j+e}")
    A(f"""
    v_cvt_pk_bf16_f32 v{DD}, v{KVL}, v{KVL+1}
    v_cvt_pk_bf16_f32 v{DD+1}, v{KVL+2}, v{KVL+3}
    s_cmp_eq_u32 s32, 2
    s_cbranch_scc1 {name}_kv2
    s_cmp_ge_u32 s32, 3
    s_cselect_b32 s55, 1024, 0
    s_cmp_eq_u32 s32, 1
    s_cselect_b32 s56, 8, 0
    s_cmp_eq_u32 s32, 4
    s_cselect_b32 s56, 8, s56
    s_add_u32 s55, s55, s56
    s_add_u32 s55, s55, {KVF}
    v_add_u32 v{T1}, s55, v2
    ds_write_b64 v{T1}, {v(DD,2)}
    s_branch {name}_rt1
    {name}_kv2:
    v_mov_b32 v{DD+2}, v{DD+1}
    v_mov_b32 v{DD+1}, 0
    v_mov_b32 v{DD+3}, 0
    v_lshlrev_b32 v{T1}, 3, v1
    v_add_u32 v{T1}, {KVF+2048}, v{T1}
    ds_write_b64 v{T1}, {v(DD,2)}
    ds_write_b64 v{T1}, {v(DD+2,2)} offset:512
    s_branch {name}_rt1
    """)
    A(f"""
    {name}_h61:
    v_add_u32 v{T1}, {KVF}, v2
    v_lshlrev_b32 v{T2}, 3, v1
    v_add_u32 v{T2}, {KVF+2048}, v{T2}
    ds_read_b128 {v(TT,4)}, v{T1}
    ds_read_b128 {v(TT+4,4)}, v{T1} offset:1024
    ds_read_b64 {v(TT+8,2)}, v{T2}
    ds_read_b64 {v(TT+10,2)}, v{T2} offset:512
    s_waitcnt lgkmcnt(0)
    """)
    mf16(A, DD, TT, PHQ, "0"); mf8(A, DD, TT+8, PHQ+4); mf16(A, DD, TT+4, PHQ+6); mf8(A, DD, TT+10, PHQ+10)
    o_addr(A, T2)
    A(f"""
    v_mov_b32 v{TT}, v{DD+8}
    v_mov_b32 v{TT+1}, v{DD+8}
    v_permlane32_swap_b32 v{TT}, v{TT+1}
    v_add_f32 v{TT+1}, 0x358637bd, v{TT+1}
    v_rcp_f32 v{TT+1}, v{TT+1}
    s_nop 0
    """)
    for r in range(12): A(f"v_mul_f32 v{DD+r}, v{DD+r}, v{TT+1}")
    store_o(A, DD, TT+2, T2, 55)
    A(f"s_branch {name}_rt1")
    A(f"""
    {name}_hk3:
    s_cmp_eq_u32 s{SI}, 1
    s_cbranch_scc1 {name}_h13
    s_cmp_eq_u32 s{SI}, 2
    s_cbranch_scc1 {name}_h23
    s_cmp_eq_u32 s{SI}, 3
    s_cbranch_scc1 {name}_h33
    s_cmp_eq_u32 s{SI}, 4
    s_cbranch_scc1 {name}_h43
    s_cmp_eq_u32 s{SI}, 5
    s_cbranch_scc1 {name}_h53
    s_cmp_eq_u32 s{SI}, 6
    s_cbranch_scc1 {name}_h63
    s_cmp_eq_u32 s{SI}, 7
    s_cbranch_scc1 {name}_h73
    s_branch {name}_rt3
    """)
    if STOP_AFTER != "P2":
        import fused3
        A(f"{name}_h53:")
        fused3.p3_loader_setup(A)
        for c in range(3): fused3.p3_issue(A, name, c, do_o=False)
        A(f"s_branch {name}_rt3")
        A(f"{name}_h71:")
        A(f"""
        s_lshl_b32 s55, s33, 8
        s_add_u32 s55, s55, {FO}
        """)
        flag_issue(A, 191, 55, FT, width=1)
        A(f"s_branch {name}_rt1")
        A(f"{name}_h73:")
        A(f"""
        s_waitcnt vmcnt(0)
        s_lshl_b32 s55, s33, 8
        s_add_u32 s55, s55, {FO}
        """)
        flag_check(A, 191, 55, FT, 64, width=1)
        for c in range(3): fused3.p3_issue(A, name, c, do_w=False)
        A(f"s_branch {name}_rt3")
    else:
        for l_ in ("h53", "h73"):
            A(f"{name}_{l_}:")
            A(f"s_branch {name}_rt3")
        A(f"{name}_h71:")
        A(f"s_branch {name}_rt1")
    A(f"{name}_h23:")
    A("s_waitcnt vmcnt(0)")
    a_compute(A)
    A(f"s_branch {name}_rt3")
    A(f"{name}_h13:")
    WOPF = os.environ.get("WOPF", "0") == "1"
    if WOPF: wo_prefetch(A, 1)
    A(f"s_cmp_eq_u32 s32, 0")
    A(f"s_cbranch_scc0 {name}_rt3")
    A(f"s_waitcnt vmcnt({10 if WOPF else 3})")
    A(f"s_mov_b32 s55, {FAW}")
    flag_check(A, FV, 55, FT, fused.NTF, masked=True)
    A(f"s_branch {name}_rt3")
    A(f"""
    {name}_h33:
    s_cmp_ge_u32 s32, 5
    s_cbranch_scc1 {name}_rt3
    s_waitcnt vmcnt(0)
    s_lshl_b32 s55, s33, 8
    s_lshl_b32 s56, s32, 5
    s_add_u32 s55, s55, s56
    s_lshl_b32 s56, s34, 2
    s_add_u32 s55, s55, s56
    s_add_u32 s55, s55, {FKVW}
    """)
    set_flag_ws(A, 55, T0, T1)
    A(f"s_branch {name}_rt3")
    A(f"""
    {name}_h43:
    s_cmp_ge_u32 s32, 5
    s_cbranch_scc1 {name}_rt3
    s_lshl_b32 s55, s33, 8
    s_lshl_b32 s56, s32, 5
    s_add_u32 s55, s55, s56
    s_add_u32 s55, s55, {FKVW}
    """)
    A("s_waitcnt vmcnt(3)")
    flag_check(A, FV, 55, FT, 8, width=1)
    A(f"""
    s_mul_i32 s55, s33, {8*5120}
    s_lshl_b32 s56, s32, 10
    s_add_u32 s55, s55, s56
    s_add_u32 s55, s55, {KVP}
    """)
    for j in range(8):
        A(f"s_add_u32 s56, s55, {j*5120}")
        A(f"buffer_load_dwordx4 {v(KVL+4*j,4)}, v2, s[8:11], s56 offen sc1")
    A(f"s_branch {name}_rt3")
    A(f"""
    {name}_h63:
    s_waitcnt vmcnt(0)
    """)
    fo_flag(A, 0)
    A(f"s_branch {name}_rt3")
    A(f"{name}_tail:")
    cur = SETS[1]
    mf16(A, OB, cur['v0'], P1); mf16(A, OB, cur['v1'], P1 + 4)
    if os.environ.get("DIAG") != "stage": stamp(A, 6)
    A(f"""
    s_mul_i32 s55, s32, 3072
    s_add_u32 s55, s55, {XO}
    v_add_u32 v{T0}, s55, v2
    s_cmp_eq_u32 s36, 0
    s_cbranch_scc1 {name}_x0
    ds_write_b128 v{T0}, {v(OA,4)}
    ds_write_b128 v{T0}, {v(OA+4,4)} offset:1024
    ds_write_b128 v{T0}, {v(OA+8,4)} offset:2048
    """)
    for r in range(12): A(f"v_mov_b32 v{OA+r}, v{OB+r}")
    A(f"""
    s_branch {name}_x1
    {name}_x0:
    ds_write_b128 v{T0}, {v(OB,4)}
    ds_write_b128 v{T0}, {v(OB+4,4)} offset:1024
    ds_write_b128 v{T0}, {v(OB+8,4)} offset:2048
    {name}_x1:
    s_waitcnt lgkmcnt(0)
    s_barrier
    s_xor_b32 s55, s32, 4
    s_mul_i32 s55, s55, 3072
    s_add_u32 s55, s55, {XO}
    v_add_u32 v{T0}, s55, v2
    ds_read_b128 v[16:19], v{T0}
    ds_read_b128 v[20:23], v{T0} offset:1024
    ds_read_b128 v[24:27], v{T0} offset:2048
    """)
    o_addr(A, T2)
    A(f"s_add_u32 s55, s55, {BR}")
    A("s_waitcnt lgkmcnt(0)")
    for r in range(12): A(f"v_add_f32 v{OA+r}, v{OA+r}, v{16+r}")
    A(f"""
    v_mov_b32 v16, v{OA+8}
    v_mov_b32 v17, v{OA+8}
    v_permlane32_swap_b32 v16, v17
    v_max3_f32 v18, |v{OA}|, |v{OA+1}|, |v{OA+2}|
    v_max3_f32 v18, v18, |v{OA+3}|, |v{OA+4}|
    v_max3_f32 v18, v18, |v{OA+5}|, |v{OA+6}|
    v_max3_f32 v18, v18, |v{OA+7}|, |v{OA+8}|
    v_max3_f32 v18, v18, |v{OA+9}|, |v{OA+10}|
    v_max_f32 v18, v18, |v{OA+11}|
    v_mov_b32 v19, 0x21800000
    v_mov_b32 v20, 0x5d800000
    v_mov_b32 v21, 0x7f000000
    v_cmp_ge_f32 vcc, v17, v19
    v_cmp_le_f32 s[58:59], v17, v20
    s_and_b64 vcc, vcc, s[58:59]
    v_cmp_lt_f32 s[58:59], v18, v21
    s_and_b64 vcc, vcc, s[58:59]
    s_cmp_eq_u64 vcc, -1
    s_cbranch_scc0 {name}_slow
    {name}_fin:
    v_rcp_f32 v17, v17
    s_nop 0
    """)
    for r in range(12): A(f"v_mul_f32 v{OA+r}, v{OA+r}, v17")
    store_o(A, OA, 20, T2, 55)
    if os.environ.get("DIAG") != "stage": stamp(A, 8)
    if STOP_AFTER == "P2":
        A("s_waitcnt vmcnt(0)")
        fo_flag(A, 1)
        stamp(A, 9); stamp(A, 11, real=True)
        stamp_flush(A, 12, 0, 32, base=70)
        A("s_endpgm")
    else:
        A(f"s_branch {name}_p3")
    A(f"{name}_slow:")
    A(f"s_cmp_eq_u32 s36, 0")
    A(f"s_cbranch_scc1 {name}_sl0")
    for i in range(4): A(f"v_mov_b32 v{QA_M+i}, v{QB_M+i}")
    for i in range(2): A(f"v_mov_b32 v{QA_R+i}, v{QB_R+i}")
    A(f"{name}_sl0:")
    for r in range(16): A(f"v_mov_b32 v{OA+r}, 0")
    MX = 44
    frag_addr(A, 42, 43)
    A(f"""
    v_mov_b32 v{MX}, 0xff7fffff
    v_mul_u32_u24 v{T0}, 320, v131
    v_lshlrev_b32 v{T1}, 4, v3
    v_add_u32 v{T0}, v{T0}, v{T1}
    s_mov_b32 s57, 0
    {name}_sloop:
    s_lshl_b32 s56, s57, 9
    s_add_u32 s56, s56, {BR + QKOFF}
    s_add_u32 s58, s66, 80
    s_lshl_b32 s58, s58, 15
    s_add_u32 s58, s58, s56
    buffer_load_dwordx4 {v(SETS[0]['km'],4)}, v42, s[8:11], s58 offen sc1
    s_add_u32 s58, s67, 80
    s_lshl_b32 s58, s58, 15
    s_add_u32 s58, s58, s56
    buffer_load_dwordx2 {v(SETS[0]['kr'],2)}, v43, s[8:11], s58 offen sc1
    s_lshr_b32 s56, s57, 2
    s_mul_i32 s56, s56, {VC}
    s_and_b32 s58, s57, 3
    s_mul_i32 s58, s58, 1280
    s_add_u32 s58, s58, s56
    s_add_u32 s58, s58, s53
    s_mov_b64 exec, s[42:43]
    buffer_load_dwordx4 {v(SETS[0]['v0'],4)}, v{T0}, s[8:11], s58 offen sc1
    buffer_load_dwordx4 {v(SETS[0]['v1'],4)}, v{T0}, s[8:11], s58 offen offset:640 sc1
    s_mov_b64 exec, -1
    s_waitcnt vmcnt(0)
    """)
    mf16(A, S0, SETS[0]['km'], QA_M, "0"); mf8(A, S0, SETS[0]['kr'], QA_R)
    A(f"v_max3_f32 v45, v{S0}, v{S0+1}, v{S0+2}")
    for r in range(3, 15, 2): A(f"v_max3_f32 v45, v45, v{S0+r}, v{S0+r+1}")
    A(f"""
    v_max_f32 v45, v45, v{S0+15}
    v_mov_b32 v46, v45
    v_permlane32_swap_b32 v45, v46
    v_max3_f32 v45, v45, v46, v{MX}
    v_sub_f32 v46, v{MX}, v45
    v_exp_f32 v46, v46
    v_mov_b32 v{MX}, v45
    """)
    for r in range(16): A(f"v_sub_f32 v{S0+r}, v{S0+r}, v45")
    for r in range(16): A(f"v_exp_f32 v{S0+r}, v{S0+r}")
    for r in range(16): A(f"v_mul_f32 v{OA+r}, v{OA+r}, v46")
    for i in range(8): A(f"v_cvt_pk_bf16_f32 v{P0+i}, v{S0+2*i}, v{S0+2*i+1}")
    mf16(A, OA, SETS[0]['v0'], P0); mf16(A, OA, SETS[0]['v1'], P0 + 4)
    A(f"""
    s_add_u32 s57, s57, 1
    s_cmp_lt_u32 s57, 64
    s_cbranch_scc1 {name}_sloop
    s_nop 15
    v_mov_b32 v16, v{OA+8}
    v_mov_b32 v17, v{OA+8}
    v_permlane32_swap_b32 v16, v17
    s_branch {name}_fin
    """)
    if STOP_AFTER != "P2":
        import fused3
        A(f"{name}_p3:")
        fused3.gen_p3(A, name, fo_flag)
```

```python
import os
from asmlib import *
from layout2 import *
from fused import poll_ws, set_flag_ws, flag_issue, flag_check, SPIN_MAX

ST3 = 18432; NS3 = 7
def stage_addr(j): return 98304 + j * ST3 if j < 3 else 24576 + (j - 3) * ST3
OUTB = 153600
LO, LW, LL, LC = 94, 95, 100, 101
def p3_loader_setup(A):
    A(f"""
    v_lshlrev_b32 v191, 2, v1
    s_mul_i32 s{LO}, s33, {ORB}
    s_add_u32 s{LO}, s{LO}, {OOFF}
    s_lshl_b32 s55, s35, 10
    s_add_u32 s{LO}, s{LO}, s55
    s_mul_i32 s{LW}, s34, {10*10240}
    s_add_u32 s{LW}, s{LW}, {WOP}
    s_add_u32 s{LW}, s{LW}, s55
    """)
    if os.environ.get("ROT3", "1") == "1":
        A(f"""
        s_lshl_b32 s55, s34, 13
        s_add_u32 s{LO}, s{LO}, s55
        s_mul_i32 s55, s34, 10240
        s_add_u32 s{LW}, s{LW}, s55
        s_sub_u32 s{LL}, 10, s34
        """)
    else:
        A(f"s_mov_b32 s{LL}, 10")

def p3_issue(A, name, c, do_o=True, do_w=True):
    if os.environ.get("X3") == "nodma" and c >= 3: return
    sa = stage_addr(c % NS3)
    br, kc = c // 10, c % 10
    A(f"s_lshl_b32 s56, s35, 10")
    A(f"s_add_u32 s56, s56, {sa}")
    if do_o:
        A(f"""
        s_cmp_le_u32 s{LL}, {kc}
        s_cselect_b32 s58, {10*8192}, 0
        s_add_u32 s57, s{LO}, {(BR if br else 0) + kc*8192}
        s_sub_u32 s57, s57, s58
        s_mov_b32 m0, s56
        s_add_u32 s58, s57, 4096
        buffer_load_dwordx4 v2, s[8:11], s57 offen sc1 lds
        s_add_u32 m0, s56, 4096
        s_nop 0
        buffer_load_dwordx4 v2, s[8:11], s58 offen sc1 lds
        """)
    if do_w:
        L = A.new("p3w")
        wo = br*80*10240 + kc*10240
        A(f"""
        s_cmp_le_u32 s{LL}, {kc}
        s_cselect_b32 s58, {10*10240}, 0
        s_add_u32 s57, s{LW}, {wo}
        s_sub_u32 s57, s57, s58
        s_add_u32 m0, s56, 8192
        s_add_u32 s58, s57, 4096
        buffer_load_dwordx4 v2, s[8:11], s57 offen sc1 lds
        s_add_u32 m0, s56, {8192 + 4096}
        s_add_u32 s57, s57, 8192
        buffer_load_dwordx4 v2, s[8:11], s58 offen sc1 lds
        s_cmp_ge_u32 s35, 2
        s_cbranch_scc1 {L}
        s_add_u32 m0, s56, {8192 + 8192}
        s_nop 0
        buffer_load_dwordx4 v2, s[8:11], s57 offen sc1 lds
        {L}:
        """)

def p3_prefetch(A, name):
    p3_loader_setup(A)
    A(f"""
    s_lshl_b32 s55, s33, 8
    s_add_u32 s55, s55, {FO}
    """)
    poll_ws(A, 191, 55, 208, 64, width=1)
    for c in range(3): p3_issue(A, name, c)

def gen_p3(A, name, fo_flag):
    A(f"""
    s_cmp_eq_u32 s36, 1
    s_cbranch_scc1 {name}_p3load
    s_load_dwordx2 s[24:25], s[0:1], 56
    """)
    stamp(A, 1)
    OA_, WA_ = 4, 6
    ACC = 96
    FSET = [16, 56]
    LOB, HIB = stage_addr(3), stage_addr(0)
    A(f"""
    v_and_b32 v8, 15, v1
    v_lshrrev_b32 v9, 4, v1
    s_lshr_b32 s44, s35, 1
    s_lshl_b32 s44, s44, 5
    v_add_u32 v10, s44, v8
    v_lshlrev_b32 v10, 4, v10
    v_lshlrev_b32 v11, 10, v9
    v_add_u32 v10, v10, v11
    v_add_u32 v{OA_}, {LOB}, v10
    v_add_u32 v{OA_+1}, {HIB}, v10
    v_lshlrev_b32 v10, 3, v1
    s_and_b32 s45, s35, 1
    s_lshl_b32 s45, s45, 10
    s_add_u32 s45, s45, 8192
    v_add_u32 v10, s45, v10
    v_add_u32 v{WA_}, {LOB}, v10
    v_add_u32 v{WA_+1}, {HIB}, v10
    v_add_u32 v10, s44, v8
    v_mul_u32_u24 v10, 160, v10
    v_lshlrev_b32 v11, 3, v9
    s_and_b32 s45, s35, 1
    s_lshl_b32 s45, s45, 6
    s_add_u32 s45, s45, {OUTB}
    v_add3_u32 v10, v10, v11, s45
    """)
    for r in range(3):
        A(f"""
        s_lshl_b32 s51, s35, 6
        s_add_u32 s51, s51, {r*256}
        v_add_u32 v11, s51, v1
        v_lshlrev_b32 v{12+r}, 4, v11
        v_add_u32 v{12+r}, {OUTB}, v{12+r}
        v_mul_u32_u24 v8, 6554, v11
        v_lshrrev_b32 v8, 16, v8
        v_mul_u32_u24 v9, 10, v8
        v_sub_u32 v9, v11, v9
        v_lshlrev_b32 v9, 4, v9
        v_mul_u32_u24 v8, 2560, v8
        v_add_u32 v{140+r}, v8, v9
        """)
    A(f"""
    s_mul_i32 s50, s33, {64*2560}
    s_mul_i32 s51, s34, 160
    s_add_u32 s50, s50, s51
    s_waitcnt lgkmcnt(0)
    """)
    srd(A, 28, 24, 25, OUT_BYTES)
    def reads(c):
        j = c % NS3
        hi = 1 if j < 3 else 0
        so = (j if j < 3 else j - 3) * ST3
        L = []
        for kk in range(2):
            b = FSET[c % 2] + 20*kk
            for st in range(2): L.append(f"ds_read_b128 {v(b+4*st,4)}, v{OA_+hi} offset:{so+kk*4096+st*256}")
            for jt in range(3):
                for jj in range(2): L.append(f"ds_read_b64_tr_b16 {v(b+8+4*jt+2*jj,2)}, v{WA_+hi} offset:{so+kk*5120+jj*2560+jt*512}")
        return L
    def mf(c, first):
        L = []
        for kk in range(2):
            b = FSET[c % 2] + 20*kk
            for jt in range(3):
                for st in range(2):
                    D = v(ACC+4*(2*jt+st),4)
                    C = "0" if (first and kk == 0) else D
                    L.append(f"v_mfma_f32_16x16x32_bf16 {D}, {v(b+8+4*jt,4)}, {v(b+4*st,4)}, {C}")
        return L
    def epilogue(br):
        for jt in range(3):
            for st in range(2):
                r0 = ACC+4*(2*jt+st); t_ = 124 + 2*((2*jt+st) % 4)
                A(f"v_cvt_pk_bf16_f32 v{t_}, v{r0}, v{r0+1}")
                A(f"v_cvt_pk_bf16_f32 v{t_+1}, v{r0+2}, v{r0+3}")
                A(f"ds_write_b64 v10, {v(t_,2)} offset:{st*16*160+jt*32}")
        L = A.new("p3o")
        A(f"""
        s_waitcnt lgkmcnt(0)
        s_barrier
        s_add_u32 s51, s50, {1280*br}
        ds_read_b128 v[144:147], v12
        ds_read_b128 v[148:151], v13
        ds_read_b128 v[152:155], v14
        s_waitcnt lgkmcnt(1)
        buffer_store_dwordx4 v[144:147], v140, s[28:31], s51 offen
        buffer_store_dwordx4 v[148:151], v141, s[28:31], s51 offen
        s_cmp_ge_u32 s35, 2
        s_cbranch_scc1 {L}
        s_waitcnt lgkmcnt(0)
        buffer_store_dwordx4 v[152:155], v142, s[28:31], s51 offen
        {L}:
        """)
    A("s_barrier")
    stamp(A, 2)
    for l in reads(0): A(l)
    for c in range(20):
        A("s_waitcnt lgkmcnt(0)")
        A("s_barrier")
        R = reads(c + 1) if c < 19 else []
        M = mf(c, c % 10 == 0)
        if os.environ.get("X3") == "nomf": M = ["s_nop 0"] * 12
        if os.environ.get("X3") == "nord": R = []
        for m in M:
            A(m)
            for _ in range(2):
                if R: A(R.pop(0))
        for r_ in R: A(r_)
        if c == 1:
            A("s_waitcnt vmcnt(0)")
            fo_flag(A, 1)
        if c == 9:
            epilogue(0)
        if c == 19:
            stamp(A, 3)
            epilogue(1)
    A(f"s_branch {name}_p3done")
    A(f"{name}_p3load:")
    A(f"""
    s_waitcnt vmcnt(3)
    s_barrier
    """)
    sched = {0: [(3,1,1), (4,1,1)], 1: [(5,1,1), (6,1,1)], 2: [(7,1,1), (8,1,1)], 3: [(9,1,1)]}
    for c in range(4, 10): sched[c] = [(c + 6, 0, 1)]
    for c in range(10, 14): sched[c] = [(c + 6, 1, 1)]
    ops = []
    ops += ["ostore"] * 3
    def log(ch, do_o, do_w):
        if do_o: ops.extend([("o", ch)] * 2)
        if do_w: ops.extend([("w", ch)] * 2)
    def allowed(ch):
        last = max(i for i, o in enumerate(ops) if isinstance(o, tuple) and o[1] == ch)
        return len(ops) - 1 - last
    for c in range(0, 21):
        if c > 0:
            A(f"s_waitcnt vmcnt({allowed(c) if 3 <= c < 20 else (0 if c == 20 else 63)})" if c >= 3 else "s_nop 0")
            A("s_barrier")
        for (ch, do_o, do_w) in sched.get(c, []):
            p3_issue(A, name, ch, do_o=bool(do_o), do_w=bool(do_w)); log(ch, do_o, do_w)
        if c == 1:
            A("s_waitcnt vmcnt(16)")
            fo_flag(A, 1); ops.append("flag")
        if c == 8:
            A(f"""
            s_lshl_b32 s55, s33, 8
            s_add_u32 s55, s55, {FO + 8192}
            """)
            flag_issue(A, 191, 55, 208, width=1); ops.append("flag")
        if c == 9:
            A(f"""
            s_lshl_b32 s55, s33, 8
            s_add_u32 s55, s55, {FO + 8192}
            """)
            stamp(A, 7)
            A("s_waitcnt vmcnt(2)")
            flag_check(A, 191, 55, 208, 64, width=1)
            stamp(A, 8)
            for m in range(10, 16):
                p3_issue(A, name, m, do_w=False); log(m, 1, 0)
        if c == 10: A("s_barrier")
    A("s_barrier")
    A(f"{name}_p3done:")
    stamp(A, 9); stamp(A, 11, real=True)
    stamp_flush(A, 12, 0, 32, base=70)
    A("s_endpgm")
```

```python
import os
from asmlib import *
from layout2 import *

LDS = 163840
SIGC = int(os.environ.get('SIGC', '12'))
SPIN_MAX = 50000
R1 = 32768; ST1 = 32768; NS1 = 4
LOG2E = 0x3fb8aa3b
QSCALE = 0x3ea52b5c
LSTAMP = os.environ.get('LSTAMP', '0') == '1'
NTX = ' nt' if os.environ.get('NTX', '0') == '1' else ''
NTW = ' nt' if os.environ.get('NTW', '0') == '1' else ''
STOP_AFTER = os.environ.get("STOP_AFTER", "")

def poll_dbg(A, lane_off_v, tmp_v, mask_lo, target, sleep=4):
    L = A.new("poll")
    A(f"""
    s_mov_b32 s59, 0
    {L}:
    global_load_dword v{tmp_v}, v{lane_off_v}, s[4:5] sc1
    s_waitcnt vmcnt(0)
    v_cmp_le_u32 vcc, {target}, v{tmp_v}
    s_and_b32 s58, vcc_lo, {mask_lo:#x}
    s_cmp_eq_u32 s58, {mask_lo:#x}
    s_cbranch_scc1 {L}_ok
    s_sleep {sleep}
    s_add_u32 s59, s59, 1
    s_cmp_lt_u32 s59, {SPIN_MAX}
    s_cbranch_scc1 {L}
    {L}_ok:
    """)

def poll_ws(A, voff, soff, T, nlanes, width=4, target=1, sleep=8):
    L = A.new("pw")
    mask = (1 << nlanes) - 1
    ld = {4: "buffer_load_dwordx4 " + v(T,4), 1: f"buffer_load_dword v{T}"}[width]
    def check():
        A("s_waitcnt vmcnt(0)")
        if width == 4:
            A(f"v_and_b32 v{T}, v{T}, v{T+1}")
            A(f"v_and_b32 v{T+2}, v{T+2}, v{T+3}")
            A(f"v_and_b32 v{T}, v{T}, v{T+2}")
        A(f"v_cmp_eq_u32 vcc, {target}, v{T}")
        if nlanes >= 64:
            A(f"s_cmp_eq_u64 vcc, -1")
        else:
            A(f"s_and_b32 s58, vcc_hi, {(mask >> 32):#x}") if nlanes > 32 else None
            if nlanes > 32:
                A(f"s_cmp_eq_u32 s58, {(mask >> 32):#x}")
                A(f"s_cselect_b32 s58, vcc_lo, 0")
                A(f"s_cmp_eq_u32 s58, -1")
            else:
                A(f"s_and_b32 s58, vcc_lo, {mask:#x}")
                A(f"s_cmp_eq_u32 s58, {mask:#x}")
    A(f"{ld}, v{voff}, s[8:11], s{soff} offen sc1")
    check()
    A(f"s_cbranch_scc1 {L}_ok")
    A(f"s_mov_b32 s59, 0")
    A(f"{L}:")
    A(f"s_sleep {sleep}")
    A(f"{ld}, v{voff}, s[8:11], s{soff} offen sc1")
    check()
    A(f"""
    s_cbranch_scc1 {L}_ok
    s_add_u32 s59, s59, 1
    s_cmp_lt_u32 s59, {SPIN_MAX}
    s_cbranch_scc1 {L}
    {L}_ok:
    """)

def flag_issue(A, voff, soff, T, width=4):
    ld = {4: "buffer_load_dwordx4 " + v(T,4), 1: f"buffer_load_dword v{T}"}[width]
    A(f"{ld}, v{voff}, s[8:11], s{soff} offen sc1")
def flag_check(A, voff, soff, T, nlanes, width=4, target=1, sleep=8, masked=False):
    L = A.new("fc")
    mask = (1 << nlanes) - 1
    if width == 4:
        A(f"v_and_b32 v{T}, v{T}, v{T+1}")
        A(f"v_and_b32 v{T+2}, v{T+2}, v{T+3}")
        A(f"v_and_b32 v{T}, v{T}, v{T+2}")
    A(f"v_cmp_eq_u32 vcc, {target}, v{T}")
    if nlanes >= 64:
        A(f"s_cmp_eq_u64 vcc, -1")
    elif nlanes > 32:
        A(f"s_and_b32 s58, vcc_hi, {(mask >> 32):#x}")
        A(f"s_cmp_eq_u32 s58, {(mask >> 32):#x}")
        A(f"s_cselect_b32 s58, vcc_lo, 0")
        A(f"s_cmp_eq_u32 s58, -1")
    else:
        A(f"s_and_b32 s58, vcc_lo, {mask:#x}")
        A(f"s_cmp_eq_u32 s58, {mask:#x}")
    A(f"s_cbranch_scc1 {L}")
    if masked: A(f"s_mov_b32 exec_lo, {(1 << nlanes) - 1:#x}\ns_mov_b32 exec_hi, 0")
    poll_ws(A, voff, soff, T, nlanes, width, target, sleep)
    if masked: A("s_mov_b64 exec, -1")
    A(f"{L}:")

def set_flag_ws(A, soff, tv0, tv1):
    A(f"""
    v_mov_b32 v{tv0}, 0
    v_mov_b32 v{tv1}, 1
    s_mov_b64 exec, 1
    buffer_store_dword v{tv1}, v{tv0}, s[8:11], s{soff} offen sc1
    s_mov_b64 exec, -1
    """)

def check_prep(A, tv0, tv1):
    L = A.new("cp")
    A(f"""
    v_mov_b32 v{tv0}, {FPREP*4}
    global_load_dword v{tv1}, v{tv0}, s[4:5] sc1
    s_mov_b32 s59, 0
    {L}:
    s_waitcnt vmcnt(0)
    v_readfirstlane_b32 s58, v{tv1}
    s_cmp_ge_u32 s58, 16
    s_cbranch_scc1 {L}_ok
    s_sleep 16
    global_load_dword v{tv1}, v{tv0}, s[4:5] sc1
    s_add_u32 s59, s59, 1
    s_cmp_lt_u32 s59, {SPIN_MAX}
    s_cbranch_scc1 {L}
    {L}_ok:
    """)

NTF = 24
def tile_flags_voff(A, vd):
    A(f"""
    s_mul_i32 s56, s33, 20
    s_add_u32 s57, s56, 19
    s_lshr_b32 s56, s56, 7
    s_lshr_b32 s57, s57, 7
    v_lshrrev_b32 v{vd}, 3, v1
    v_min_u32 v{vd}, 2, v{vd}
    v_mul_u32_u24 v{vd}, 5, v{vd}
    v_bfe_u32 v{vd+1}, v1, 2, 1
    v_cmp_eq_u32 vcc, 1, v{vd+1}
    v_mov_b32 v{vd+1}, s56
    v_mov_b32 v{vd+2}, s57
    v_cndmask_b32 v{vd+1}, v{vd+1}, v{vd+2}, vcc
    v_add_u32 v{vd}, v{vd}, v{vd+1}
    v_lshlrev_b32 v{vd}, 7, v{vd}
    v_and_b32 v{vd+1}, 3, v1
    v_lshlrev_b32 v{vd+1}, 4, v{vd+1}
    v_add_u32 v{vd}, v{vd}, v{vd+1}
    """)

def signal_dbg(A, idx_s, tv0, tv1):
    A(f"""
    s_lshl_b32 s58, s{idx_s}, 2
    v_mov_b32 v{tv0}, s58
    v_mov_b32 v{tv1}, 1
    s_mov_b64 exec, 1
    global_atomic_add v{tv0}, v{tv1}, s[4:5] sc1
    s_mov_b64 exec, -1
    """)

def gen_common(A, name):
    A(f"""
    s_cmp_ge_u32 s2, 256
    s_cbranch_scc1 {name}_done
    s_load_dwordx4 s[20:23], s[0:1], 0
    s_load_dwordx4 s[24:27], s[0:1], 32
    s_load_dwordx4 s[4:7], s[0:1], 64
    s_load_dwordx2 s[28:29], s[0:1], 16
    v_and_b32 v1, 63, v0
    v_lshrrev_b32 v2, 6, v0
    v_and_b32 v3, 31, v1
    v_readfirstlane_b32 s32, v2
    v_lshrrev_b32 v131, 5, v1
    v_lshlrev_b32 v2, 4, v1
    v_lshlrev_b32 v132, 3, v3
    s_and_b32 s39, s2, 7
    s_lshr_b32 s64, s2, 3
    s_lshl_b32 s33, s39, 2
    s_lshr_b32 s45, s64, 3
    s_add_u32 s33, s33, s45
    s_and_b32 s34, s64, 7
    s_and_b32 s35, s32, 3
    s_lshr_b32 s36, s32, 2
    s_lshr_b32 s65, s39, 1
    s_lshl_b32 s37, s65, 2
    s_and_b32 s30, s39, 1
    s_cmp_eq_u32 s30, 0
    s_cbranch_scc0 {name}_map1
    s_lshr_b32 s46, s64, 3
    s_add_u32 s37, s37, s46
    s_and_b32 s38, s64, 7
    s_mov_b32 s31, 0
    s_branch {name}_map2
    {name}_map1:
    s_mul_i32 s46, s64, 37
    s_lshr_b32 s46, s46, 8
    s_add_u32 s37, s37, s46
    s_mul_i32 s46, s46, 7
    s_sub_u32 s38, s64, s46
    s_add_u32 s38, s38, 8
    s_cmp_ge_u32 s64, 28
    s_cselect_b32 s31, 1, 0
    {name}_map2:
    s_mov_b32 s40, 1.0
    s_mov_b32 s41, -1.0
    s_mov_b32 s42, 0x000fffff
    s_mov_b32 s43, 0x000fffff
    s_and_b32 s45, s33, 1
    s_mul_i32 s66, s33, 5
    s_add_u32 s66, s66, s45
    s_lshr_b32 s66, s66, 1
    s_add_u32 s67, s66, 2
    s_cmp_eq_u32 s45, 1
    s_cselect_b32 s46, 3, 0
    s_sub_u32 s67, s67, s46
    s_lshl_b32 s68, s45, 3
    s_mul_i32 s53, s33, {VH}
    s_add_u32 s53, s53, {BR + VOFF}
    s_waitcnt lgkmcnt(0)
    """)
    srd(A, 8, 6, 7, WS_BYTES)
    for r in (188, 189, 190, 191): A(f"v_mov_b32 v{r}, 0")

def p2_stage_dma(A, st, dyn=None):
    L = A.new("sd")
    if dyn is None:
        A(f"""
        s_lshr_b32 s56, s35, 1
        s_mul_i32 s57, s56, {PART}
        s_add_u32 s57, s57, {(st % 4) * SLOT}
        s_lshl_b32 s56, s56, 3
        s_add_u32 s56, s56, {st}
        """)
    else:
        A(f"""
        s_lshr_b32 s56, s35, 1
        s_mul_i32 s57, s56, {PART}
        s_add_u32 s57, s57, s{dyn[0]}
        s_lshl_b32 s56, s56, 3
        s_add_u32 s56, s56, s{dyn[1]}
        """)
    A(f"""
    s_bitcmp1_b32 s35, 0
    s_cbranch_scc1 {L}_v
    s_lshl_b32 s56, s56, 11
    s_add_u32 s58, s66, 80
    s_lshl_b32 s58, s58, 15
    s_add_u32 s58, s58, s56
    s_add_u32 s58, s58, {BR + QKOFF}
    s_add_u32 s59, s67, 80
    s_lshl_b32 s59, s59, 15
    s_add_u32 s59, s59, s56
    s_add_u32 s59, s59, {BR + QKOFF}
    """)
    for e, (src, off) in enumerate(((58, 0), (58, 1024), (58, QKG), (58, QKG + 1024), (59, 0), (59, 1024))):
        A(f"s_add_u32 m0, s57, {e*1024}")
        A(f"s_add_u32 s56, s{src}, {off}")
        A(f"buffer_load_dwordx4 v2, s[8:11], s56 offen sc1 lds")
    A(f"""
    s_branch {L}_e
    {L}_v:
    s_mul_i32 s56, s56, {VC}
    s_add_u32 s56, s56, s53
    """)
    for e in range(5):
        A(f"s_add_u32 m0, s57, {6144 + e*1024}")
        A(f"s_add_u32 s58, s56, {e*1024}")
        A(f"buffer_load_dwordx4 v2, s[8:11], s58 offen sc1 lds")
    A(f"{L}_e:")

QA_M, QB_M, QA_R, QB_R = 4, 8, 12, 14
def frag_addr(A, vm, vr):
    A(f"""
    v_lshlrev_b32 v{vm}, 15, v131
    v_lshlrev_b32 v{vr}, 4, v3
    v_add_u32 v{vm}, v{vm}, v{vr}
    v_add_u32 v{vr}, s68, v{vr}
    """)
QL = 98304
def p2_q_dma(A):
    A(f"""
    s_lshl_b32 s56, s34, 8
    s_lshl_b32 s57, s35, 6
    s_add_u32 s56, s56, s57
    s_lshl_b32 s56, s56, 4
    s_add_u32 s56, s56, {BR + QKOFF}
    s_lshl_b32 s57, s35, 10
    s_add_u32 s57, s57, {QL}
    s_lshl_b32 s58, s66, 15
    s_add_u32 s58, s58, s56
    s_mov_b32 m0, s57
    s_add_u32 s59, s58, {QKG}
    buffer_load_dwordx4 v2, s[8:11], s58 offen sc1 lds
    s_add_u32 m0, s57, 4096
    s_lshl_b32 s58, s67, 15
    buffer_load_dwordx4 v2, s[8:11], s59 offen sc1 lds
    s_add_u32 m0, s57, 8192
    s_add_u32 s58, s58, s56
    buffer_load_dwordx4 v2, s[8:11], s58 offen sc1 lds
    """)
def p2_q_reads(A, tm=133, tr=134):
    A(f"""
    s_lshl_b32 s56, s35, 10
    s_add_u32 s56, s56, {QL}
    v_lshlrev_b32 v{tm}, 12, v131
    v_lshlrev_b32 v{tr}, 4, v3
    v_add3_u32 v{tm}, v{tm}, v{tr}, s56
    s_add_u32 s56, s56, 8192
    s_add_u32 s56, s56, s68
    v_add_u32 v{tr}, s56, v{tr}
    v_mov_b32 v{QA_R}, 0
    v_mov_b32 v{QA_R+1}, 0
    v_mov_b32 v{QA_R+2}, 0
    v_mov_b32 v{QA_R+3}, 0
    ds_read_b128 {v(QA_M,4)}, v{tm}
    ds_read_b128 {v(QB_M,4)}, v{tm} offset:512
    s_mov_b32 exec_hi, 0
    ds_read_b64 {v(QA_R,2)}, v{tr}
    ds_read_b64 {v(QB_R,2)}, v{tr} offset:512
    s_mov_b64 exec, -1
    """)

XV, WV = 192, 196
CXA, CWA, CXA2, CWA2, CEA = 4, 8, 10, 14, 128
EA = 200
ACC = 64
def p1_loader(A, name):
    A.c("P1 loader")
    A(f"""
    v_lshrrev_b32 v7, 3, v1
    s_lshl_b32 s44, s35, 5
    v_add_u32 v7, s44, v7
    v_mul_u32_u24 v7, 1280, v7
    v_lshrrev_b32 v8, 4, v1
    v_and_b32 v9, 7, v1
    """)
    for i in range(4):
        A(f"""
        v_add_u32 v10, {4*i}, v8
        v_and_b32 v10, 7, v10
        v_xor_b32 v10, v10, v9
        v_lshlrev_b32 v10, 4, v10
        v_add_u32 v10, v10, v7
        v_add_u32 v{XV+i}, {8*i*1280}, v10
        """)
    A(f"""
    s_lshl_b32 s44, s35, 4
    v_add_u32 v7, s44, v8
    v_mul_u32_u24 v7, 3840, v7
    v_lshrrev_b32 v9, 2, v1
    v_xor_b32 v9, v9, v8
    v_and_b32 v9, 3, v9
    v_lshlrev_b32 v9, 6, v9
    v_and_b32 v10, 3, v1
    v_lshlrev_b32 v10, 4, v10
    v_add3_u32 v{WV}, v7, v9, v10
    s_lshl_b32 s44, s35, 12
    s_add_u32 s45, s44, 16384
    s_and_b32 s52, s37, 3
    s_mul_i32 s52, s52, 3
    s_add_u32 s52, s52, s38
    s_lshl_b32 s54, s65, 1
    s_add_u32 s52, s52, s54
    s_cmp_ge_u32 s52, 20
    s_cselect_b32 s54, 20, 0
    s_sub_u32 s52, s52, s54
    s_cmp_ge_u32 s52, 10
    s_cselect_b32 s54, 10, 0
    s_sub_u32 s52, s52, s54
    """)
    if os.environ.get("ROT", "1") != "1": A("s_mov_b32 s52, 0")
    A(f"""
    s_mov_b32 s55, s52
    s_mul_i32 s46, s37, {128*1280}
    s_lshl_b32 s54, s55, 7
    s_add_u32 s46, s46, s54
    s_lshl_b32 s47, s38, 8
    s_mul_i32 s54, s55, {64*3840}
    s_add_u32 s47, s47, s54
    s_mov_b32 s56, s55
    s_mov_b32 s48, {R1}
    s_mov_b32 s49, 0
    """)
    srd(A, 12, 24, 25, X_BYTES)
    srd(A, 16, 26, 27, W_BYTES)
    def issue(tag):
        for i in range(4 if not (os.environ.get("XP") == "nodma" and tag == "lp") else 0):
            A(f"s_add_u32 s50, s48, s44")
            A(f"s_add_u32 m0, s50, {i*1024}")
            A(f"s_add_u32 s51, s47, {i*4*3840}")
            A(f"buffer_load_dwordx4 v{XV+i}, s[12:15], s46 offen{NTX} lds")
            A(f"s_add_u32 s50, s48, s45")
            A(f"s_add_u32 m0, s50, {i*1024}")
            A(f"s_nop 0")
            A(f"buffer_load_dwordx4 v{WV}, s[16:19], s51 offen{NTW} lds")
        A(f"""
        s_add_u32 s46, s46, 128
        s_add_u32 s47, s47, {64*3840}
        s_add_u32 s48, s48, {ST1}
        s_cmp_eq_u32 s48, {R1+NS1*ST1}
        s_cselect_b32 s48, {R1}, s48
        s_add_u32 s56, s56, 1
        s_cmp_eq_u32 s56, 10
        s_cselect_b32 s54, {10*128}, 0
        s_sub_u32 s46, s46, s54
        s_cmp_eq_u32 s56, 10
        s_cselect_b32 s54, {10*64*3840}, 0
        s_sub_u32 s47, s47, s54
        s_cmp_eq_u32 s56, 10
        s_cselect_b32 s56, 0, s56
        s_add_u32 s49, s49, 1
        s_cmp_eq_u32 s49, 10
        s_cbranch_scc0 {name}_ld_{tag}
        """)
        srd(A, 12, 20, 21, X_BYTES)
        srd(A, 16, 22, 23, W_BYTES)
        A(f"""
        {name}_ld_{tag}:
        """)
    SPD = int(os.environ.get("SPD", "6"))
    def spf_bases(xl, xh, wl, wh):
        A(f"""
        s_lshl_b32 s54, s64, 2
        s_add_u32 s54, s54, s35
        s_lshl_b32 s55, s65, 9
        s_lshl_b32 s57, s54, 2
        s_add_u32 s55, s55, s57
        s_mul_i32 s55, s55, 1280
        s_add_u32 s60, s{xl}, s55
        s_addc_u32 s61, s{xh}, 0
        s_lshr_b32 s55, s54, 1
        s_mul_i32 s55, s55, 3840
        s_and_b32 s57, s54, 1
        s_lshl_b32 s57, s57, 10
        s_add_u32 s55, s55, s57
        s_lshl_b32 s57, s30, 11
        s_add_u32 s55, s55, s57
        s_add_u32 s62, s{wl}, s55
        s_addc_u32 s63, s{wh}, 0
        """)
    def spf_one():
        for r in range(4): A(f"s_load_dword s94, s[60:61], {r*1280}")
        for r in range(8): A(f"s_load_dword s95, s[62:63], {r*128}")
        A(f"""
        s_add_u32 s60, s60, 128
        s_addc_u32 s61, s61, 0
        s_add_u32 s62, s62, {64*3840}
        s_addc_u32 s63, s63, 0
        """)
    issue("p0"); issue("p1"); issue("p2")
    if SPD:
        spf_bases(24, 25, 26, 27)
        A(f"""
        s_add_u32 s60, s60, {3*128}
        s_addc_u32 s61, s61, 0
        s_add_u32 s62, s62, {3*64*3840}
        s_addc_u32 s63, s63, 0
        s_mov_b32 s100, 3
        """)
        for _ in range(SPD - 3):
            spf_one(); A("s_add_u32 s100, s100, 1")
    stamp(A, 1)
    if STAMPS: A("s_mov_b32 s74, 0\ns_mov_b32 s75, 0\ns_mov_b32 s76, 0\ns_mov_b32 s77, 0\ns_mov_b32 s80, 0\ns_mov_b32 s81, 0")
    if os.environ.get("XP") == "nobar":
        A(f"""
        s_mov_b32 s52, 0
        {name}_xl:
        s_waitcnt vmcnt({os.environ.get("XVM", "16")})
        """)
        issue("xp")
        A(f"""
        s_add_u32 s52, s52, 1
        s_cmp_lt_u32 s52, 17
        s_cbranch_scc1 {name}_xl
        s_waitcnt vmcnt(0)
        """)
        stamp(A, 4); stamp(A, 9); stamp(A, 11, real=True)
        stamp_flush(A, 12, 0, 32, base=70)
        A("s_endpgm")
    A(f"""
    s_mov_b32 s52, 0
    {name}_lloop:
    """)
    if STAMPS and LSTAMP:
        A("""
        s_memtime s[86:87]
        s_waitcnt lgkmcnt(0)
        s_waitcnt vmcnt(16)
        s_memtime s[88:89]
        s_waitcnt lgkmcnt(0)
        s_sub_u32 s90, s88, s86
        s_add_u32 s74, s74, s90
        s_barrier
        s_memtime s[86:87]
        s_waitcnt lgkmcnt(0)
        s_sub_u32 s90, s86, s88
        s_add_u32 s76, s76, s90
        """)
    else:
        A("s_waitcnt vmcnt(16)")
        A("s_barrier")
    issue("lp")
    if SPD:
        A(f"""
        s_cmp_ge_u32 s100, 20
        s_cbranch_scc1 {name}_nsp
        s_cmp_eq_u32 s100, 10
        s_cbranch_scc0 {name}_sp1
        """)
        spf_bases(20, 21, 22, 23)
        A(f"{name}_sp1:")
        spf_one()
        A(f"""
        s_add_u32 s100, s100, 1
        {name}_nsp:
        """)
    if STAMPS and LSTAMP:
        A("""
        s_memtime s[88:89]
        s_waitcnt lgkmcnt(0)
        s_sub_u32 s90, s88, s86
        s_add_u32 s80, s80, s90
        """)
    A(f"""
    s_add_u32 s52, s52, 1
    s_cmp_lt_u32 s52, 17
    s_cbranch_scc1 {name}_lloop
    s_waitcnt vmcnt(16)
    s_barrier
    s_waitcnt vmcnt(8)
    s_barrier
    s_waitcnt vmcnt(0)
    s_barrier
    s_mov_b32 s54, {FBW}
    """)
    tile_flags_voff(A, 7)
    A("s_mov_b32 exec_lo, 0xffffff\ns_mov_b32 exec_hi, 0")
    flag_issue(A, 7, 54, 16)
    A("s_mov_b64 exec, -1")
    import fused2
    fused2.kv_dma_setup(A)
    A(f"""
    s_barrier
    s_waitcnt vmcnt(0)
    s_mov_b32 s54, {FBW}
    """)
    stamp(A, 7)
    flag_check(A, 7, 54, 16, NTF, masked=True)
    stamp(A, 8)
    p2_stage_dma(A, 0)
    p2_q_dma(A)
    A(f"""
    s_waitcnt vmcnt(0)
    s_barrier
    """)

def stage0_all(A):
    A("s_mov_b32 s63, s35")
    for p in range(4):
        A(f"s_mov_b32 s35, {p}")
        p2_stage_dma(A, 0)
        p2_q_dma(A)
    A("s_mov_b32 s35, s63")

PF_MODE = os.environ.get('PF_MODE', 'plain')
def prefetch_share(A, xl, xh, wl, wh, nw, widx):
    if PF_MODE == 'off': return
    srd(A, 12, xl, xh, X_BYTES)
    srd(A, 16, wl, wh, W_BYTES)
    A(f"""
    s_mul_i32 s50, s2, 10240
    s_mul_i32 s51, s2, 9600
    s_lshl_b32 s52, s{widx}, 10
    s_add_u32 s50, s50, s52
    s_add_u32 s51, s51, s52
    """)
    for r in range(-(-10 // nw)):
        L = A.new("pf")
        lim = 10 - r * nw
        if lim < nw:
            A(f"s_cmp_ge_u32 s{widx}, {lim}")
            A(f"s_cbranch_scc1 {L}")
        A(f"s_add_u32 s52, s50, {r*nw*1024}")
        A(f"buffer_load_dwordx4 v[216:219], v2, s[12:15], s52 offen")
        A(f"s_add_u32 s52, s51, {r*nw*1024}")
        A(f"buffer_load_dwordx4 v[220:223], v2, s[16:19], s52 offen")
        if lim < nw: A(f"{L}:")

L2PF = int(os.environ.get('L2PF', '5'))
def l2pf_setup(A):
    L = A.new("l2")
    A(f"""
    s_mov_b32 s69, 0
    s_cmp_lg_u32 s32, 1
    s_cbranch_scc1 {L}_e
    s_cmp_ge_u32 s64, 24
    s_cbranch_scc1 {L}_e
    s_mov_b32 s69, 1
    s_cmp_ge_u32 s64, 8
    s_cbranch_scc1 {L}_w
    s_lshl_b32 s44, s65, 9
    s_lshl_b32 s45, s64, 6
    s_add_u32 s44, s44, s45
    v_add_u32 v5, s44, v1
    v_mul_u32_u24 v5, 1280, v5
    s_mov_b32 s55, 128
    """)
    srd(A, 96, 24, 25, X_BYTES)
    A(f"""
    s_branch {L}_go
    {L}_w:
    s_sub_u32 s44, s64, 8
    s_lshl_b32 s44, s44, 2
    v_lshrrev_b32 v5, 4, v1
    v_add_u32 v5, s44, v5
    v_mul_u32_u24 v5, 3840, v5
    v_and_b32 v6, 15, v1
    v_lshlrev_b32 v6, 7, v6
    s_lshl_b32 s44, s30, 11
    v_add3_u32 v5, v5, v6, s44
    s_mov_b32 s55, {64*3840}
    """)
    srd(A, 96, 26, 27, W_BYTES)
    A(f"""
    {L}_go:
    s_mul_i32 s54, s55, 4
    s_mov_b32 s57, 4
    {L}_e:
    """)
def l2pf_one(A):
    if not L2PF: return
    L = A.new("l2o")
    A(f"""
    s_cmp_eq_u32 s69, 1
    s_cbranch_scc0 {L}_e
    s_cmp_ge_u32 s57, 20
    s_cbranch_scc1 {L}_e
    s_cmp_eq_u32 s57, 10
    s_cbranch_scc0 {L}_n
    s_mov_b32 s54, 0
    s_cmp_ge_u32 s64, 8
    s_cbranch_scc1 {L}_w
    """)
    srd(A, 96, 20, 21, X_BYTES)
    A(f"s_branch {L}_n")
    A(f"{L}_w:")
    srd(A, 96, 22, 23, W_BYTES)
    A(f"""
    {L}_n:
    buffer_load_dword v224, v5, s[96:99], s54 offen
    s_add_u32 s54, s54, s55
    s_add_u32 s57, s57, 1
    {L}_e:
    """)

def p1_compute(A, name, orient):
    tag = f"{name}_c{orient}"
    FB_ = [16, 32, 48, 144]
    ACCS = [64, 160]
    T = 224
    def reads(c, kk):
        q = c % 4
        b = FB_[kk]
        xa = (CXA if q < 2 else CXA2) + kk; wa = CWA if q < 2 else CWA2
        so = (q & 1) * ST1
        L = []
        L.append(f"ds_read_b128 {v(b,4)}, v{xa} offset:{so}")
        for jj in range(2): L.append(f"ds_read_b64_tr_b16 {v(b+8+2*jj,2)}, v{wa} offset:{so+kk*4096+jj*1024}")
        L.append(f"ds_read_b128 {v(b+4,4)}, v{xa} offset:{so+4096}")
        for jj in range(2): L.append(f"ds_read_b64_tr_b16 {v(b+12+2*jj,2)}, v{wa+1} offset:{so+kk*4096+jj*1024}")
        return L
    def mf(c, kk):
        b = FB_[kk]; acc = ACCS[c // 10]
        first = (c % 10 == 0 and kk == 0)
        L = []
        for nt in range(2):
            for st in range(2):
                X = v(b+4*st,4); W = v(b+8+4*nt,4)
                if orient == "T":
                    D = v(acc+16*(2*nt+st),16); L.append(f"v_mfma_f32_32x32x16_bf16 {D}, {W}, {X}, {'0' if first else D}")
                else:
                    D = v(acc+16*(2*st+nt),16); L.append(f"v_mfma_f32_32x32x16_bf16 {D}, {X}, {W}, {'0' if first else D}")
        return L
    def epilogue(br_is_B):
        acc = ACCS[0 if br_is_B else 1]
        L = []
        if orient == "T":
            n = 0
            for nt in range(2):
                for st in range(2):
                    r0 = acc+16*(2*nt+st)
                    for ip in range(2):
                        t_ = T + 4*(n % 4); n += 1
                        if br_is_B:
                            for e in range(8): L.append(f"v_mul_f32 v{r0+8*ip+e}, s62, v{r0+8*ip+e}")
                        for e in range(4): L.append(f"v_cvt_pk_bf16_f32 v{t_+e}, v{r0+8*ip+2*e}, v{r0+8*ip+2*e+1}")
                        L.append(f"s_add_u32 s55, s61, {(4*nt+2*ip)*QKG + st*512}")
                        L.append(f"s_nop 0")
                        L.append(f"v_permlane32_swap_b32 v{t_}, v{t_+2}")
                        L.append(f"v_permlane32_swap_b32 v{t_+1}, v{t_+3}")
                        L.append(f"buffer_store_dwordx4 {v(t_,4)}, v{CEA}, s[8:11], s55 offen sc1")
        else:
            for nt in range(2):
                for st in range(2):
                    for m in range(2):
                        r0 = acc+16*(2*st+nt)+8*m
                        t_ = T + 4*((2*st+m) % 4)
                        for e in range(4): L.append(f"v_cvt_pk_bf16_f32 v{t_+e}, v{r0+2*e}, v{r0+2*e+1}")
                        L.append(f"buffer_store_dwordx4 {v(t_,4)}, v{CEA+nt}, s[8:11], s61 offen offset:{(2*st+m)*640} sc1")
        return L
    if orient == "T":
        A(f"""
        s_lshl_b32 s44, s38, 4
        s_and_b32 s45, s35, 1
        s_lshl_b32 s45, s45, 3
        s_add_u32 s44, s44, s45
        v_add_u32 v{T}, s44, v131
        v_lshlrev_b32 v{T}, 15, v{T}
        s_lshl_b32 s44, s37, 7
        s_lshr_b32 s45, s35, 1
        s_lshl_b32 s45, s45, 6
        s_add_u32 s44, s44, s45
        v_add_u32 v{T+1}, s44, v3
        v_lshlrev_b32 v{T+1}, 4, v{T+1}
        v_add_u32 v{CEA}, v{T}, v{T+1}
        s_mov_b32 s60, {QKOFF}
        s_mov_b32 s62, 1.0
        s_cmp_lt_u32 s38, 5
        s_cselect_b32 s62, {QSCALE:#x}, s62
        """)
    else:
        A(f"""
        s_sub_u32 s44, s38, 10
        s_lshl_b32 s44, s44, 7
        s_and_b32 s45, s35, 1
        s_lshl_b32 s45, s45, 6
        s_add_u32 s44, s44, s45
        s_mul_i32 s60, s37, {VC}
        s_add_u32 s60, s60, {VOFF}
        s_lshr_b32 s45, s35, 1
        s_mul_i32 s45, s45, {4*640}
        s_add_u32 s60, s60, s45
        v_mul_u32_u24 v{T}, 320, v131
        s_mov_b32 s45, {VH}
        """)
        for nt in range(2):
            A(f"""
            v_add_u32 v{T+1}, s44, v3
            v_add_u32 v{T+1}, {32*nt}, v{T+1}
            v_mul_u32_u24 v{T+2}, 3277, v{T+1}
            v_lshrrev_b32 v{T+2}, 16, v{T+2}
            v_mul_u32_u24 v{T+3}, 20, v{T+2}
            v_sub_u32 v{T+3}, v{T+1}, v{T+3}
            v_lshlrev_b32 v{T+3}, 4, v{T+3}
            v_mul_lo_u32 v{T+2}, v{T+2}, s45
            v_add3_u32 v{CEA+nt}, v{T+2}, v{T+3}, v{T}
            """)
    for kk in range(4): A(f"v_add_u32 v{CXA2+kk}, {2*ST1}, v{CXA+kk}")
    for nt in range(2): A(f"v_add_u32 v{CWA2+nt}, {2*ST1}, v{CWA+nt}")
    A(f"s_add_u32 s61, s60, {BR}")
    stamp(A, 1)
    A("s_barrier")
    stamp(A, 2)
    for l in reads(0, 0) + reads(0, 1): A(l)
    EPI = epilogue(True)
    def emit(M, R, extra_per=0):
        R = list(R)
        for i_, m in enumerate(M):
            A(m)
            for _ in range(3):
                if R: A(R.pop(0))
            for _ in range(extra_per):
                if EPI: A(EPI.pop(0))
    for c in range(20):
        ex = 0
        if c in (10, 11): ex = -(-len(epilogue(True)) // 30)
        A("s_waitcnt lgkmcnt(6)")
        emit(mf(c, 0), reads(c, 2), ex if c != 10 else 0)
        A("s_waitcnt lgkmcnt(6)")
        emit(mf(c, 1), reads(c, 3), ex)
        if c == SIGC: A("s_waitcnt vmcnt(0)")
        A("s_waitcnt lgkmcnt(0)")
        A("s_barrier")
        emit(mf(c, 2), reads(c + 1, 0), ex)
        A("s_waitcnt lgkmcnt(6)")
        emit(mf(c, 3), reads(c + 1, 1), ex)
        if c == 11:
            while EPI: A(EPI.pop(0))
        if c == 15:
            import fused2
            fused2.kv_dma_setup(A)
        if c == 4:
            L = A.new("fp")
            A(f"""
            s_cmp_eq_u32 s32, 0
            s_cbranch_scc0 {L}
            v_mov_b32 v240, {FPREP*4}
            global_load_dword v241, v240, s[4:5] sc1
            {L}:
            """)
        if c == 9: stamp(A, 5)
        if c == SIGC:
            A(f"s_cmp_eq_u32 s32, 0")
            A(f"s_cbranch_scc1 {tag}_hk_sig")
            A(f"{tag}_rt_sig:")
    stamp(A, 3)
    A(f"s_mov_b32 s61, s60")
    for l in epilogue(False): A(l)
    A(f"s_branch {name}_cdone")
    A(f"{tag}_hk_sig:")
    stamp(A, 7)
    L = A.new("cp")
    A(f"""
    v_readfirstlane_b32 s58, v241
    s_cmp_ge_u32 s58, 16
    s_cbranch_scc1 {L}
    """)
    check_prep(A, 240, 241)
    A(f"""
    {L}:
    s_lshl_b32 s54, s38, 7
    s_lshl_b32 s55, s37, 2
    s_add_u32 s54, s54, s55
    s_add_u32 s54, s54, {FBW}
    """)
    set_flag_ws(A, 54, 240, 241)
    A(f"s_branch {tag}_rt_sig")

def p1_compute_setup(A):
    A(f"""
    s_lshr_b32 s44, s35, 1
    s_lshl_b32 s44, s44, 6
    v_add_u32 v20, s44, v3
    v_lshlrev_b32 v20, 7, v20
    v_add_u32 v20, {R1}, v20
    v_lshrrev_b32 v16, 1, v3
    v_and_b32 v16, 7, v16
    v_xor_b32 v16, v16, v131
    """)
    for kk in range(4):
        A(f"""
        v_xor_b32 v17, {2*kk}, v16
        v_lshlrev_b32 v17, 4, v17
        v_add_u32 v{CXA+kk}, v20, v17
        """)
    A(f"""
    v_lshrrev_b32 v16, 2, v1
    v_and_b32 v16, 3, v16
    v_lshlrev_b32 v17, 11, v131
    v_lshlrev_b32 v18, 8, v16
    v_add_u32 v17, v17, v18
    v_lshrrev_b32 v18, 4, v1
    v_and_b32 v18, 1, v18
    v_lshlrev_b32 v18, 5, v18
    v_add_u32 v17, v17, v18
    v_and_b32 v18, 3, v1
    v_lshlrev_b32 v18, 3, v18
    v_add_u32 v17, v17, v18
    v_add_u32 v17, {R1+16384}, v17
    s_and_b32 s44, s35, 1
    s_lshl_b32 s44, s44, 1
    """)
    for nt in range(2):
        A(f"""
        s_add_u32 s45, s44, {nt}
        v_xor_b32 v18, s45, v16
        v_lshlrev_b32 v18, 6, v18
        v_add_u32 v{CWA+nt}, v17, v18
        """)

def p1_prep(A, name):
    A.c("prep WGs")
    A(f"""
    s_lshl_b32 s69, s65, 2
    s_add_u32 s69, s69, s64
    s_sub_u32 s69, s69, 28
    s_cmp_ge_u32 s32, 3
    s_cbranch_scc1 {name}_prep_done
    """)
    srd(A, 12, 28, 29, 32*20*20*2)
    A(f"""
    s_cmp_eq_u32 s32, 2
    s_cbranch_scc1 {name}_sel
    s_lshl_b32 s44, s69, 1
    s_add_u32 s44, s44, s32
    v_subrev_u32 v4, 2, v3
    v_cmp_gt_u32 vcc, 18, v3
    v_cndmask_b32 v4, v4, v3, vcc
    v_and_b32 v5, 30, v3
    v_cmp_eq_u32 s[46:47], 20, v5
    s_or_b64 s[46:47], s[46:47], vcc
    v_lshlrev_b32 v4, 1, v4
    s_mul_i32 s45, s44, 800
    v_add_u32 v4, s45, v4
    s_and_b32 s45, s44, 1
    s_mul_i32 s48, s45, {4*40}
    v_mul_u32_u24 v5, {8*40}, v131
    v_add3_u32 v5, v4, v5, s48
    v_mov_b32 v6, 0x7fffffff
    v_cndmask_b32 v5, v6, v5, s[46:47]
    v_cmp_eq_u32 vcc, 0, v131
    s_and_b64 s[46:47], s[46:47], vcc
    s_cmp_eq_u32 s45, 1
    s_cselect_b32 s48, 0, {16*40}
    v_add_u32 v4, s48, v4
    v_cndmask_b32 v4, v6, v4, s[46:47]
    """)
    for j in range(8): A(f"buffer_load_ushort v{16+j}, v5, s[12:15], 0 offen offset:{40*j}")
    for j in range(4): A(f"buffer_load_ushort v{24+j}, v4, s[12:15], 0 offen offset:{40*j}")
    A("s_waitcnt vmcnt(0)")
    for j in range(12):
        A(f"v_lshlrev_b32 v{16+j}, 16, v{16+j}")
        A(f"v_mul_f32 v{16+j}, {LOG2E:#x}, v{16+j}")
    for j in range(6): A(f"v_cvt_pk_bf16_f32 v{32+j}, v{16+2*j}, v{17+2*j}")
    A(f"""
    s_mul_i32 s45, s44, 1536
    s_add_u32 s45, s45, {WPH}
    v_lshlrev_b32 v7, 3, v1
    buffer_store_dwordx4 v[32:35], v2, s[8:11], s45 offen sc1
    buffer_store_dwordx2 v[36:37], v7, s[8:11], s45 offen offset:1024 sc1
    s_branch {name}_prep_done
    {name}_sel:
    s_cmp_lg_u32 s69, 0
    s_cbranch_scc1 {name}_prep_done
    v_lshlrev_b32 v4, 2, v131
    v_sub_u32 v4, v3, v4
    """)
    for j in range(12):
        tgt = (8*(j//4) + (j%4)) if j < 8 else 16 + (j-8)
        A(f"""
        v_cmp_eq_u32 vcc, {tgt}, v4
        v_mov_b32 v5, 0x3f80
        v_cndmask_b32 v{16+j}, 0, v5, vcc
        """)
    for j in range(6): A(f"v_lshl_or_b32 v{32+j}, v{17+2*j}, 16, v{16+2*j}")
    A(f"""
    s_mov_b32 s45, {SEL}
    v_lshlrev_b32 v7, 3, v1
    buffer_store_dwordx4 v[32:35], v2, s[8:11], s45 offen sc1
    buffer_store_dwordx2 v[36:37], v7, s[8:11], s45 offen offset:1024 sc1
    v_mov_b32 v40, 0
    v_mov_b32 v41, 0
    v_mov_b32 v42, 0
    v_mov_b32 v43, 0
    """)
    for j in range(FZERO_BYTES // 1024):
        A(f"s_mov_b32 s45, {FZERO_LO + j*1024}")
        A(f"buffer_store_dwordx4 v[40:43], v2, s[8:11], s45 offen sc1")
    A(f"""
    {name}_prep_done:
    """)
    stamp(A, 1)
    A(f"""
    s_load_dwordx2 s[44:45], s[0:1], 24
    s_load_dwordx2 s[46:47], s[0:1], 48
    s_waitcnt lgkmcnt(0)
    """)
    srd(A, 12, 44, 45, WO_BYTES)
    srd(A, 16, 46, 47, WO_BYTES)
    for i in range(13):
        L = A.new("wr")
        tv = 64 + 4 * i
        A(f"""
        s_add_u32 s48, s32, {8*i}
        s_cmp_ge_u32 s48, 100
        s_cbranch_scc1 {L}
        s_mul_i32 s49, s48, 205
        s_lshr_b32 s49, s49, 11
        s_mul_i32 s50, s49, 10
        s_sub_u32 s50, s48, s50
        s_mul_i32 s51, s69, 10
        s_add_u32 s49, s49, s51
        s_lshl_b32 s50, s50, 6
        v_add_u32 v10, s50, v1
        v_lshrrev_b32 v11, 5, v10
        v_mul_u32_u24 v12, 205, v11
        v_lshrrev_b32 v12, 11, v12
        v_mul_u32_u24 v13, 10, v12
        v_sub_u32 v11, v11, v13
        v_mul_u32_u24 v13, 52, v11
        v_lshrrev_b32 v13, 8, v13
        v_mul_u32_u24 v14, 5, v13
        v_sub_u32 v11, v11, v14
        v_lshlrev_b32 v12, 5, v12
        v_lshlrev_b32 v13, 2, v13
        v_add_u32 v12, v12, v13
        v_lshrrev_b32 v13, 3, v10
        v_and_b32 v13, 3, v13
        v_lshlrev_b32 v13, 3, v13
        v_add_u32 v12, v12, v13
        v_lshrrev_b32 v13, 1, v10
        v_and_b32 v13, 3, v13
        v_add_u32 v12, v12, v13
        v_mul_u32_u24 v12, 1280, v12
        v_lshlrev_b32 v11, 5, v11
        v_and_b32 v13, 1, v10
        v_lshlrev_b32 v13, 4, v13
        v_add3_u32 v10, v12, v11, v13
        s_cmp_ge_u32 s49, 80
        s_cselect_b32 s51, 80, 0
        s_sub_u32 s51, s49, s51
        s_mul_i32 s52, s51, 205
        s_lshr_b32 s52, s52, 11
        s_mul_i32 s54, s52, 10
        s_sub_u32 s54, s51, s54
        s_mul_i32 s54, s54, {64*1280}
        s_mul_i32 s52, s52, 160
        s_add_u32 s54, s54, s52
        s_cmp_ge_u32 s49, 80
        s_cbranch_scc1 {L}_b
        buffer_load_dwordx4 {v(tv,4)}, v10, s[12:15], s54 offen
        s_branch {L}
        {L}_b:
        buffer_load_dwordx4 {v(tv,4)}, v10, s[16:19], s54 offen
        {L}:
        """)
    stamp(A, 2)
    A("s_waitcnt vmcnt(0)")
    stamp(A, 3)
    for i in range(13):
        L = A.new("ws")
        tv = 64 + 4 * i
        A(f"""
        s_add_u32 s48, s32, {8*i}
        s_cmp_ge_u32 s48, 100
        s_cbranch_scc1 {L}
        s_mul_i32 s49, s69, 100
        s_add_u32 s49, s49, s48
        s_lshl_b32 s49, s49, 10
        s_add_u32 s49, s49, {WOP}
        buffer_store_dwordx4 {v(tv,4)}, v2, s[8:11], s49 offen sc1
        {L}:
        """)
    A("s_waitcnt vmcnt(0)")
    stamp(A, 7)
    A(f"""
    s_cmp_eq_u32 s36, 0
    s_cbranch_scc0 {name}_prep_npf
    """)
    prefetch_share(A, 20, 21, 22, 23, 4, 35)
    A(f"""
    {name}_prep_npf:
    s_barrier
    s_cmp_eq_u32 s32, 4
    s_cbranch_scc0 {name}_prep_w
    s_mov_b32 s50, {FPREP}
    """)
    signal_dbg(A, 50, 48, 49)
    check_prep(A, 48, 49)
    A(f"s_mov_b32 s50, {FBW}")
    tile_flags_voff(A, 7)
    A("s_mov_b32 exec_lo, 0xffffff\ns_mov_b32 exec_hi, 0")
    poll_ws(A, 7, 50, 16, NTF, sleep=32)
    A("s_mov_b64 exec, -1")
    stage0_all(A)
    A(f"""
    s_waitcnt vmcnt(0)
    {name}_prep_w:
    """)
    import fused2
    fused2.kv_dma_setup(A)
    A(f"""
    s_barrier
    s_branch {name}_p2entry
    """)

def code_prefetch(A, name, nblk=6):
    if os.environ.get("CODEPF", "1") != "1": return
    L = A.new("cpf")
    A(f"""
    s_cmp_eq_u32 s32, 7
    s_cbranch_scc0 {L}
    s_and_b32 s54, s64, {int(os.environ.get("CPFMASK", "15"))}
    s_cmp_eq_u32 s54, 0
    s_cbranch_scc0 {L}
    s_getpc_b64 s[54:55]
    {L}_pc:
    s_sub_u32 s54, s54, {L}_pc-{name}
    s_subb_u32 s55, s55, 0
    s_mov_b32 s56, {name}_end-{name}
    v_lshlrev_b32 v228, 7, v1
    """)
    for i in range(nblk):
        A(f"""
        v_cmp_gt_u32 vcc, s56, v228
        s_and_b64 exec, vcc, vcc
        s_cbranch_execz {L}_x
        global_load_dword v229, v228, s[54:55]
        v_add_u32 v228, 8192, v228
        """)
    A(f"""
    {L}_x:
    s_mov_b64 exec, -1
    {L}:
    """)

def tlb_warm(A, name):
    mode = os.environ.get("TLBW", "1")
    if mode == "0": return
    L = A.new("tw")
    A(f"""
    s_cmp_eq_u32 s32, 6
    s_cbranch_scc0 {L}
    s_cmp_ge_u32 s64, {32 - int(os.environ.get("TLBN", "1"))}
    s_cbranch_scc0 {L}
    s_load_dwordx2 s[44:45], s[0:1], 24
    s_load_dwordx2 s[46:47], s[0:1], 48
    s_load_dwordx2 s[48:49], s[0:1], 56
    v_lshlrev_b32 v230, 16, v1
    s_waitcnt lgkmcnt(0)
    """)
    for (lo, hi, sz) in ((20, 21, X_BYTES), (22, 23, W_BYTES), (24, 25, X_BYTES), (26, 27, W_BYTES), (44, 45, WO_BYTES), (46, 47, WO_BYTES)):
        srd(A, 12, lo, hi, sz)
        A("buffer_load_dword v231, v230, s[12:15], 0 offen")
    srd(A, 12, 48, 49, OUT_BYTES)
    A("buffer_load_dword v231, v230, s[12:15], 0 offen")
    A("s_mov_b32 s50, 0x400000")
    A("buffer_load_dword v231, v230, s[12:15], s50 offen")
    for i in range(8):
        A(f"s_mov_b32 s50, {i*0x400000:#x}")
        A("buffer_load_dword v231, v230, s[8:11], s50 offen")
    A(f"{L}:")

def gen_fused(A, name):
    kernel_begin(A, name)
    stamp(A, 10, real=True)
    gen_common(A, name)
    stamp(A, 0)
    tlb_warm(A, name)
    code_prefetch(A, name)
    prefetch_share(A, 24, 25, 26, 27, 8, 32)
    A(f"""
    s_cmp_eq_u32 s31, 1
    s_cbranch_scc1 {name}_prep
    s_cmp_eq_u32 s36, 1
    s_cbranch_scc1 {name}_loader
    """)
    if os.environ.get("XP") == "nobar": A("s_endpgm")
    p1_compute_setup(A)

    A(f"""
    s_cmp_ge_u32 s38, 10
    s_cbranch_scc1 {name}_compN
    """)
    p1_compute(A, name, "T")
    A(f"{name}_compN:")
    p1_compute(A, name, "N")
    A(f"{name}_cdone:")
    A("s_barrier")
    A(f"s_branch {name}_p2entry")
    A(f"{name}_prep:")
    p1_prep(A, name)
    A(f"{name}_loader:")
    p1_loader(A, name)
    A(f"{name}_p2entry:")
    stamp(A, 4)
    if STOP_AFTER == "P1":
        A("s_waitcnt vmcnt(0)")
        stamp(A, 9)
        stamp(A, 11, real=True)
        stamp_flush(A, 12, 0, 32, base=70)
        A("s_endpgm")
    else:
        import fused2
        fused2.gen_p2(A, name)
    A(f"{name}_done:")
    A("s_endpgm")
    A(f"{name}_end:")
    return kernel_desc(name, 256)
```

```python
import os
from asmlib import *
from layout2 import *
import fused
from fused import (flag_issue, flag_check, poll_ws, set_flag_ws, check_prep, tile_flags_voff, p2_stage_dma, frag_addr, QA_M, QB_M, QA_R, QB_R, SPIN_MAX, STOP_AFTER)

S0, S1, P0, P1, OA, OB = 16, 32, 48, 56, 64, 80
SETS = [dict(km=96, kr=100, v0=104, v1=108), dict(km=112, kr=116, v0=120, v1=124)]
AKM, AKR, AV = 128, 129, 130
NKM, NKR, NV = 133, 134, 135
PHQ = 136
KXM, KXR, QXR, VX0, VX1, WM, WR, SL16, SL8, QXM = 148, 152, 154, 156, 160, 164, 168, 172, 176, 180
KVL = 148
T0, T1, T2, T3 = 184, 185, 186, 187
DD, TT, PK, TB = 192, 208, 232, 244
FV, FT = 188, 248
KVF = 4 * SLOT
KVX = 98304
XO = 0

def mf16(A, D, a_, b_, C=None):
    A(f"v_mfma_f32_32x32x16_bf16 {v(D,16)}, {v(a_,4)}, {v(b_,4)}, {v(D,16) if C is None else C}")
def mf8(A, D, a_, b_, C=None):
    A(f"v_mfma_f32_32x32x8_bf16 {v(D,16)}, {v(a_,2)}, {v(b_,2)}, {v(D,16) if C is None else C}")

def phi(A, xm, xr, wm, wr, D, T, out):
    mf16(A, D, wm, xm, "0")
    mf8(A, D, wr, xr)
    mx, mn, t = T, T+1, T+2
    A(f"v_max3_f32 v{mx}, v{D}, v{D+1}, v{D+2}")
    A(f"v_min3_f32 v{mn}, v{D}, v{D+1}, v{D+2}")
    for r in (3, 5, 7):
        A(f"v_max3_f32 v{mx}, v{mx}, v{D+r}, v{D+r+1}")
        A(f"v_min3_f32 v{mn}, v{mn}, v{D+r}, v{D+r+1}")
    A(f"v_max_f32 v{mx}, v{mx}, v{D+9}")
    A(f"v_min_f32 v{mn}, v{mn}, v{D+9}")
    A(f"v_mov_b32 v{t}, v{mx}")
    A(f"v_mov_b32 v{t+1}, v{mn}")
    A(f"v_permlane32_swap_b32 v{mx}, v{t}")
    A(f"v_permlane32_swap_b32 v{mn}, v{t+1}")
    A(f"v_max_f32 v{mx}, v{mx}, v{t}")
    A(f"v_min_f32 v{mn}, v{mn}, v{t+1}")
    A(f"v_mul_f32 v{mx}, s41, v{mx}")
    A(f"v_mul_f32 v{mn}, s40, v{mn}")
    EP, EN = T+4, T+14
    for r in range(10):
        A(f"v_fma_f32 v{EP+r}, v{D+r}, s40, v{mx}")
        A(f"v_fma_f32 v{EN+r}, v{D+r}, s41, v{mn}")
    for r in range(10):
        A(f"v_exp_f32 v{EP+r}, v{EP+r}")
        A(f"v_exp_f32 v{EN+r}, v{EN+r}")
    sp, sn = T, T+1
    A(f"v_add_f32 v{sp}, v{EP}, v{EP+1}")
    A(f"v_add_f32 v{sn}, v{EN}, v{EN+1}")
    for r in range(2, 10):
        A(f"v_add_f32 v{sp}, v{sp}, v{EP+r}")
        A(f"v_add_f32 v{sn}, v{sn}, v{EN+r}")
    A(f"v_mov_b32 v{t}, v{sp}")
    A(f"v_mov_b32 v{t+1}, v{sn}")
    A(f"v_permlane32_swap_b32 v{sp}, v{t}")
    A(f"v_permlane32_swap_b32 v{sn}, v{t+1}")
    A(f"v_add_f32 v{sp}, v{sp}, v{t}")
    A(f"v_add_f32 v{sn}, v{sn}, v{t+1}")
    A(f"v_rcp_f32 v{sp}, v{sp}")
    A(f"v_rcp_f32 v{sn}, v{sn}")
    for r in range(10):
        A(f"v_mul_f32 v{EP+r}, v{EP+r}, v{sp}")
        A(f"v_mul_f32 v{EN+r}, v{EN+r}, v{sn}")
    for i in range(4):
        A(f"v_cvt_pk_bf16_f32 v{out+i}, v{EP+2*i}, v{EP+2*i+1}")
        A(f"v_cvt_pk_bf16_f32 v{out+6+i}, v{EN+2*i}, v{EN+2*i+1}")
    A(f"v_cvt_pk_bf16_f32 v{out+4}, v{EP+8}, v{EP+9}")
    A(f"v_cvt_pk_bf16_f32 v{out+10}, v{EN+8}, v{EN+9}")
    A(f"v_mov_b32 v{out+5}, 0")
    A(f"v_mov_b32 v{out+11}, 0")

def phase(A, Sc, Pc, Sn, qm, qr, kset, Oprev, Pprev, vset, do_qk=True, do_pv=True, do_exp=True, pre=None):
    pre = list(pre or [])
    def ex(i):
        if do_exp: A(f"v_exp_f32 v{Sc+i}, v{Sc+i}")
    def cv(i):
        if do_exp: A(f"v_cvt_pk_bf16_f32 v{Pc+i}, v{Sc+2*i}, v{Sc+2*i+1}")
    def sprinkle(n):
        for _ in range(n):
            if pre:
                for l in pre.pop(0): A(l)
    if do_qk: mf16(A, Sn, kset['km'], qm, "0")
    sprinkle(1)
    for i in range(0, 4): ex(i)
    if do_qk: mf8(A, Sn, kset['kr'], qr)
    sprinkle(1)
    for i in range(4, 8): ex(i)
    cv(0); cv(1)
    if do_pv: mf16(A, Oprev, vset['v0'], Pprev)
    for i in range(8, 12): ex(i)
    cv(2); cv(3)
    if do_pv: mf16(A, Oprev, vset['v1'], Pprev + 4)
    for i in range(12, 16): ex(i)
    cv(4); cv(5)
    sprinkle(8)
    cv(6); cv(7)

def o_addr(A, vd):
    A(f"""
    s_mul_i32 s55, s33, 20
    v_lshlrev_b32 v{vd}, 2, v131
    v_add_u32 v{vd}, s55, v{vd}
    v_and_b32 v{vd+1}, 7, v{vd}
    v_lshlrev_b32 v{vd+1}, 1, v{vd+1}
    v_lshrrev_b32 v{vd}, 3, v{vd}
    v_lshlrev_b32 v{vd}, 10, v{vd}
    v_add_u32 v{vd}, v{vd}, v{vd+1}
    s_lshl_b32 s55, s36, 5
    v_add_u32 v{vd+1}, s55, v3
    v_lshlrev_b32 v{vd+1}, 4, v{vd+1}
    v_add_u32 v{vd}, v{vd}, v{vd+1}
    s_lshl_b32 s55, s34, 2
    s_add_u32 s55, s55, s35
    s_mul_i32 s55, s55, {ORB}
    s_add_u32 s55, s55, {OOFF}
    """)
def store_o(A, R, tmp, vaddr, soff):
    for i in range(3):
        A(f"v_cvt_pk_bf16_f32 v{tmp+2*i}, v{R+4*i}, v{R+4*i+1}")
        A(f"v_cvt_pk_bf16_f32 v{tmp+1+2*i}, v{R+4*i+2}, v{R+4*i+3}")
    A(f"buffer_store_dwordx2 {v(tmp,2)}, v{vaddr}, s[8:11], s{soff} offen sc1")
    A(f"buffer_store_dwordx2 {v(tmp+2,2)}, v{vaddr}, s[8:11], s{soff} offen offset:1024 sc1")
    A("s_mov_b32 exec_hi, 0")
    A(f"buffer_store_dwordx2 {v(tmp+4,2)}, v{vaddr}, s[8:11], s{soff} offen offset:2048 sc1")
    A("s_mov_b64 exec, -1")
def fo_flag(A, br):
    A(f"""
    s_lshl_b32 s56, s34, 2
    s_add_u32 s56, s56, s35
    s_lshl_b32 s56, s56, 8
    s_lshl_b32 s57, s33, 3
    s_add_u32 s56, s56, s57
    s_lshl_b32 s57, s36, 2
    s_add_u32 s56, s56, s57
    s_add_u32 s56, s56, {FO + br*8192}
    """)
    set_flag_ws(A, 56, T0, T1)

def a_loads(A):
    frag_addr(A, T0, T1)
    A(f"""
    s_lshl_b32 s56, s34, 8
    s_lshl_b32 s57, s32, 5
    s_add_u32 s57, s57, s56
    s_lshl_b32 s57, s57, 4
    s_add_u32 s57, s57, {QKOFF}
    s_add_u32 s58, s66, 80
    s_lshl_b32 s58, s58, 15
    s_add_u32 s58, s58, s57
    buffer_load_dwordx4 {v(KXM,4)}, v{T0}, s[8:11], s58 offen sc1
    s_add_u32 s58, s67, 80
    s_lshl_b32 s58, s58, 15
    s_add_u32 s58, s58, s57
    buffer_load_dwordx2 {v(KXR,2)}, v{T1}, s[8:11], s58 offen sc1
    s_lshl_b32 s57, s35, 1
    s_add_u32 s57, s57, s36
    s_lshl_b32 s57, s57, 5
    s_add_u32 s57, s57, s56
    s_lshl_b32 s57, s57, 4
    s_add_u32 s57, s57, {QKOFF}
    s_lshl_b32 s58, s66, 15
    s_add_u32 s58, s58, s57
    buffer_load_dwordx4 {v(QXM,4)}, v{T0}, s[8:11], s58 offen sc1
    s_lshl_b32 s58, s67, 15
    s_add_u32 s58, s58, s57
    buffer_load_dwordx2 {v(QXR,2)}, v{T1}, s[8:11], s58 offen sc1
    v_mov_b32 v{T2}, 0x3f803f80
    v_cmp_eq_u32 vcc, 20, v3
    v_cndmask_b32 v{T2}, 0, v{T2}, vcc
    """)
    for r in range(VX0, VX0+8): A(f"v_mov_b32 v{r}, v{T2}")
    A(f"""
    v_mul_u32_u24 v{T2}, 320, v131
    v_lshlrev_b32 v{T3}, 4, v3
    v_add_u32 v{T2}, v{T2}, v{T3}
    s_lshl_b32 s56, s34, 1
    s_lshr_b32 s57, s32, 2
    s_add_u32 s56, s56, s57
    s_mul_i32 s56, s56, {VC}
    s_and_b32 s57, s32, 3
    s_mul_i32 s57, s57, 1280
    s_add_u32 s56, s56, s57
    s_mul_i32 s57, s33, {VH}
    s_add_u32 s56, s56, s57
    s_add_u32 s56, s56, {VOFF}
    s_mov_b64 exec, s[42:43]
    buffer_load_dwordx4 {v(VX0,4)}, v{T2}, s[8:11], s56 offen sc1
    buffer_load_dwordx4 {v(VX1,4)}, v{T2}, s[8:11], s56 offen offset:640 sc1
    s_mov_b64 exec, -1
    v_lshlrev_b32 v{T3}, 3, v1
    s_mul_i32 s56, s33, 1536
    s_add_u32 s56, s56, {WPH}
    buffer_load_dwordx4 {v(WM,4)}, v2, s[8:11], s56 offen sc1
    buffer_load_dwordx2 {v(WR,2)}, v{T3}, s[8:11], s56 offen offset:1024 sc1
    s_mov_b32 s56, {SEL}
    buffer_load_dwordx4 {v(SL16,4)}, v2, s[8:11], s56 offen sc1
    buffer_load_dwordx2 {v(SL8,2)}, v{T3}, s[8:11], s56 offen offset:1024 sc1
    """)

def phi_list(xm, xr, wm, wr, D, EN, out):
    L = []
    mx, mn, t, u = D+10, D+11, D+12, D+13
    L.append(f"v_mfma_f32_32x32x16_bf16 {v(D,16)}, {v(wm,4)}, {v(xm,4)}, 0")
    L.append(f"v_mfma_f32_32x32x8_bf16 {v(D,16)}, {v(wr,2)}, {v(xr,2)}, {v(D,16)}")
    L.append(f"v_max3_f32 v{mx}, v{D}, v{D+1}, v{D+2}")
    L.append(f"v_min3_f32 v{mn}, v{D}, v{D+1}, v{D+2}")
    for r in (3, 5, 7):
        L.append(f"v_max3_f32 v{mx}, v{mx}, v{D+r}, v{D+r+1}")
        L.append(f"v_min3_f32 v{mn}, v{mn}, v{D+r}, v{D+r+1}")
    L.append(f"v_max_f32 v{mx}, v{mx}, v{D+9}")
    L.append(f"v_min_f32 v{mn}, v{mn}, v{D+9}")
    L.append(f"v_mov_b32 v{t}, v{mx}")
    L.append(f"v_mov_b32 v{u}, v{mn}")
    L.append(f"v_permlane32_swap_b32 v{mx}, v{t}")
    L.append(f"v_permlane32_swap_b32 v{mn}, v{u}")
    L.append(f"v_max_f32 v{mx}, v{mx}, v{t}")
    L.append(f"v_min_f32 v{mn}, v{mn}, v{u}")
    L.append(f"v_mul_f32 v{mx}, s41, v{mx}")
    L.append(f"v_mul_f32 v{mn}, s40, v{mn}")
    for r in range(10):
        L.append(f"v_fma_f32 v{EN+r}, v{D+r}, s41, v{mn}")
        L.append(f"v_fma_f32 v{D+r}, v{D+r}, s40, v{mx}")
    for r in range(10):
        L.append(f"v_exp_f32 v{EN+r}, v{EN+r}")
        L.append(f"v_exp_f32 v{D+r}, v{D+r}")
    sp, sn = mx, mn
    L.append(f"v_add_f32 v{sp}, v{D}, v{D+1}")
    L.append(f"v_add_f32 v{sn}, v{EN}, v{EN+1}")
    for r in range(2, 10):
        L.append(f"v_add_f32 v{sp}, v{sp}, v{D+r}")
        L.append(f"v_add_f32 v{sn}, v{sn}, v{EN+r}")
    L.append(f"v_mov_b32 v{t}, v{sp}")
    L.append(f"v_mov_b32 v{u}, v{sn}")
    L.append(f"v_permlane32_swap_b32 v{sp}, v{t}")
    L.append(f"v_permlane32_swap_b32 v{sn}, v{u}")
    L.append(f"v_add_f32 v{sp}, v{sp}, v{t}")
    L.append(f"v_add_f32 v{sn}, v{sn}, v{u}")
    L.append(f"v_rcp_f32 v{sp}, v{sp}")
    L.append(f"v_rcp_f32 v{sn}, v{sn}")
    for r in range(10):
        L.append(f"v_mul_f32 v{D+r}, v{D+r}, v{sp}")
        L.append(f"v_mul_f32 v{EN+r}, v{EN+r}, v{sn}")
    for i in range(4):
        L.append(f"v_cvt_pk_bf16_f32 v{out+i}, v{D+2*i}, v{D+2*i+1}")
        L.append(f"v_cvt_pk_bf16_f32 v{out+6+i}, v{EN+2*i}, v{EN+2*i+1}")
    L.append(f"v_cvt_pk_bf16_f32 v{out+4}, v{D+8}, v{D+9}")
    L.append(f"v_cvt_pk_bf16_f32 v{out+10}, v{EN+8}, v{EN+9}")
    L.append(f"v_mov_b32 v{out+5}, 0")
    L.append(f"v_mov_b32 v{out+11}, 0")
    return L

def phi_fast(xm, xr, wm, wr, D, EN, out):
    L = []
    sp, sn, t, u = D+10, D+11, D+12, D+13
    L.append(f"v_mfma_f32_32x32x16_bf16 {v(D,16)}, {v(wm,4)}, {v(xm,4)}, 0")
    L.append(f"v_mfma_f32_32x32x8_bf16 {v(D,16)}, {v(wr,2)}, {v(xr,2)}, {v(D,16)}")
    for r in range(10):
        L.append(f"v_exp_f32 v{EN+r}, -v{D+r}")
        L.append(f"v_exp_f32 v{D+r}, v{D+r}")
    L.append(f"v_add_f32 v{sp}, v{D}, v{D+1}")
    L.append(f"v_add_f32 v{sn}, v{EN}, v{EN+1}")
    for r in range(2, 10):
        L.append(f"v_add_f32 v{sp}, v{sp}, v{D+r}")
        L.append(f"v_add_f32 v{sn}, v{sn}, v{EN+r}")
    L.append(f"v_mov_b32 v{t}, v{sp}")
    L.append(f"v_mov_b32 v{u}, v{sn}")
    L.append(f"v_permlane32_swap_b32 v{sp}, v{t}")
    L.append(f"v_permlane32_swap_b32 v{sn}, v{u}")
    L.append(f"v_add_f32 v{sp}, v{sp}, v{t}")
    L.append(f"v_add_f32 v{sn}, v{sn}, v{u}")
    L.append(f"v_max_f32 v{t}, v{sp}, v{sn}")
    L.append(f"v_min_f32 v{u}, v{sp}, v{sn}")
    L.append(f"v_rcp_f32 v{sp}, v{sp}")
    L.append(f"v_rcp_f32 v{sn}, v{sn}")
    for r in range(10):
        L.append(f"v_mul_f32 v{D+r}, v{D+r}, v{sp}")
        L.append(f"v_mul_f32 v{EN+r}, v{EN+r}, v{sn}")
    for i in range(4):
        L.append(f"v_cvt_pk_bf16_f32 v{out+i}, v{D+2*i}, v{D+2*i+1}")
        L.append(f"v_cvt_pk_bf16_f32 v{out+6+i}, v{EN+2*i}, v{EN+2*i+1}")
    L.append(f"v_cvt_pk_bf16_f32 v{out+4}, v{D+8}, v{D+9}")
    L.append(f"v_cvt_pk_bf16_f32 v{out+10}, v{EN+8}, v{EN+9}")
    L.append(f"v_mov_b32 v{out+5}, 0")
    L.append(f"v_mov_b32 v{out+11}, 0")
    return L

def a_compute(A):
    DK, ENK, DQ, ENQ, PKK = 192, 208, 218, 234, 244
    Lf = A.new("pf")
    if os.environ.get("PHIFAST", "1") == "1":
        Lk = phi_fast(KXM, KXR, WM, WR, DK, ENK, PKK)
        Lq = phi_fast(QXM, QXR, WM, WR, DQ, ENQ, PHQ)
        for a_, b_ in zip(Lk, Lq):
            A(a_); A(b_)
        A(f"""
        v_max_f32 v{DK+12}, v{DK+12}, v{DQ+12}
        v_min_f32 v{DK+13}, v{DK+13}, v{DQ+13}
        v_mov_b32 v{T1}, 0x5d800000
        v_mov_b32 v{T2}, 0x21800000
        v_cmp_le_f32 vcc, v{DK+12}, v{T1}
        v_cmp_ge_f32 s[58:59], v{DK+13}, v{T2}
        s_and_b64 vcc, vcc, s[58:59]
        s_cmp_eq_u64 vcc, -1
        s_cbranch_scc1 {Lf}
        """)
    Lk = phi_list(KXM, KXR, WM, WR, DK, ENK, PKK)
    Lq = phi_list(QXM, QXR, WM, WR, DQ, ENQ, PHQ)
    for a_, b_ in zip(Lk, Lq):
        A(a_); A(b_)
    A(f"{Lf}:")
    TP0, TP1 = 192, 208
    TB0, TB1 = 224, 232
    A(f"s_mul_i32 s55, s32, 5120")
    A(f"s_add_u32 s55, s55, {KVX}")
    A(f"v_add_u32 v{T0}, s55, v2")
    mf16(A, TP0, PKK, SL16, "0"); mf16(A, TP1, PKK+6, SL16, "0")
    mf8(A, TP0, PKK+4, SL8); mf8(A, TP1, PKK+10, SL8)
    for i in range(8): A(f"v_cvt_pk_bf16_f32 v{TB0+i}, v{TP0+2*i}, v{TP0+2*i+1}")
    for i in range(8): A(f"v_cvt_pk_bf16_f32 v{TB1+i}, v{TP1+2*i}, v{TP1+2*i+1}")
    KA0, KA1 = 192, 208
    mf16(A, KA0, TB0, VX0, "0"); mf16(A, KA1, TB1, VX0, "0")
    mf16(A, KA0, TB0+4, VX1); mf16(A, KA1, TB1+4, VX1)
    A(f"ds_write_b128 v{T0}, {v(KA0,4)}")
    A(f"ds_write_b128 v{T0}, {v(KA0+4,4)} offset:1024")
    A(f"v_mov_b32 v{KA0+10}, v{KA1+8}")
    A(f"v_mov_b32 v{KA0+11}, v{KA1+9}")
    A(f"ds_write_b128 v{T0}, {v(KA1,4)} offset:3072")
    A(f"ds_write_b128 v{T0}, {v(KA1+4,4)} offset:4096")
    A(f"ds_write_b128 v{T0}, {v(KA0+8,4)} offset:2048")

def kv_dma_setup(A):
    for e in range(3):
        L = A.new("kd")
        A(f"""
        s_mul_i32 s55, s32, 3
        s_add_u32 s55, s55, {e}
        s_min_u32 s55, s55, 21
        s_cmp_ge_u32 s55, 11
        s_cselect_b32 s56, 1, 0
        s_mul_i32 s57, s56, 11
        s_sub_u32 s55, s55, s57
        s_mul_i32 s57, s56, {PART}
        s_lshl_b32 s58, s55, 10
        s_add_u32 s{50+e}, s57, s58
        s_lshl_b32 s56, s56, 3
        s_cmp_ge_u32 s55, 6
        s_cbranch_scc1 {L}_v
        s_lshr_b32 s57, s55, 1
        s_add_u32 s58, s66, s57
        s_cmp_eq_u32 s57, 2
        s_cselect_b32 s58, s67, s58
        s_add_u32 s58, s58, 80
        s_lshl_b32 s58, s58, 15
        s_lshl_b32 s56, s56, 11
        s_add_u32 s58, s58, s56
        s_and_b32 s57, s55, 1
        s_lshl_b32 s57, s57, 10
        s_add_u32 s58, s58, s57
        s_add_u32 s{44+e}, s58, {BR + QKOFF}
        s_mov_b32 s{47+e}, 2048
        s_branch {L}_e
        {L}_v:
        s_mul_i32 s56, s56, {VC}
        s_sub_u32 s57, s55, 6
        s_lshl_b32 s57, s57, 10
        s_add_u32 s56, s56, s57
        s_add_u32 s{44+e}, s56, s53
        s_mov_b32 s{47+e}, {VC}
        {L}_e:
        s_add_u32 s{44+e}, s{44+e}, s{47+e}
        """)
def kv_dma_issue(A, SB):
    for e in range(3):
        A(f"s_add_u32 m0, s{SB}, s{50+e}")
        A(f"s_nop 0")
        A(f"buffer_load_dwordx4 v2, s[8:11], s{44+e} offen sc1 lds")
        A(f"s_add_u32 s{44+e}, s{44+e}, s{47+e}")

def wo_prefetch(A, level):
    A(f"""
    s_mul_i32 s55, s64, 51200
    s_lshl_b32 s56, s32, 10
    s_add_u32 s55, s55, s56
    s_add_u32 s55, s55, {WOP}
    """)
    for r in range(7):
        if r == 6:
            A("s_cmp_ge_u32 s32, 2")
            A("s_cbranch_scc1 WOPFC")
        A(f"s_add_u32 s56, s55, {r*8192}")
        A(f"buffer_load_dwordx4 v[252:255], v2, s[8:11], s56 offen")
    A("WOPFC:")

def gen_p2(A, name):
    SI, SB, MK1, MK3 = 60, 61, 62, 63
    fused.p2_q_reads(A)
    A(f"s_mov_b32 s{SB}, {SLOT}")
    kv_dma_issue(A, SB)
    A(f"""
    v_mov_b32 v{T0}, 0x3f803f80
    v_cmp_eq_u32 vcc, 20, v3
    v_cndmask_b32 v{T0}, 0, v{T0}, vcc
    """)
    for r in [SETS[0]['v0']+i for i in range(8)] + [SETS[1]['v0']+i for i in range(8)]: A(f"v_mov_b32 v{r}, v{T0}")
    A(f"""
    s_mul_i32 s55, s36, {PART}
    v_lshlrev_b32 v{T0}, 11, v131
    v_lshlrev_b32 v{T1}, 4, v3
    v_add3_u32 v{AKM}, v{T0}, v{T1}, s55
    s_add_u32 s56, s55, 4096
    s_add_u32 s56, s56, s68
    v_add_u32 v{AKR}, s56, v{T1}
    v_mul_u32_u24 v{T0}, 320, v131
    s_add_u32 s56, s55, 6144
    v_add3_u32 v{AV}, v{T0}, v{T1}, s56
    v_add_u32 v{NKM}, {SLOT}, v{AKM}
    v_add_u32 v{NKR}, {SLOT}, v{AKR}
    v_add_u32 v{NV}, {SLOT}, v{AV}
    """)
    for r in range(OA, OA+32): A(f"v_mov_b32 v{r}, 0")
    for r in range(P1, P1+8): A(f"v_mov_b32 v{r}, 0")
    A(f"""
    s_mov_b32 s{MK1}, {(1<<2)|(1<<6):#x}
    s_mov_b32 s{MK3}, {((1<<1) if os.environ.get('WOPF', '0') == '1' else 0)|(1<<2)|(1<<6):#x}
    s_cmp_eq_u32 s36, 1
    s_cselect_b32 s56, {(1<<5)|(1<<7):#x}, 0
    s_cselect_b32 s55, {1<<7:#x}, 0
    s_or_b32 s{MK3}, s{MK3}, s56
    s_or_b32 s{MK1}, s{MK1}, s55
    s_cmp_eq_u32 s32, 0
    s_cselect_b32 s56, {1<<1:#x}, 0
    s_or_b32 s{MK1}, s{MK1}, s56
    s_or_b32 s{MK3}, s{MK3}, s56
    s_cmp_lt_u32 s32, 5
    s_cselect_b32 s55, {(1<<3)|(1<<4)|(1<<5):#x}, 0
    s_cselect_b32 s56, {(1<<3)|(1<<4):#x}, 0
    s_or_b32 s{MK1}, s{MK1}, s55
    s_or_b32 s{MK3}, s{MK3}, s56
    s_cmp_eq_u32 s32, 0
    s_cselect_b32 s55, 1, 0
    s_andn2_b32 s55, s55, s31
    s_or_b32 s{MK1}, s{MK1}, s55
    """)
    if os.environ.get("NOHOOK") == "1":
        A(f"s_mov_b32 s{MK1}, 0"); A(f"s_mov_b32 s{MK3}, 0")
    if os.environ.get("HM1"):
        A(f"s_and_b32 s{MK1}, s{MK1}, {os.environ['HM1']}"); A(f"s_and_b32 s{MK3}, s{MK3}, {os.environ['HM3']}")
    def loads(kset, ktile, vset, vtile, nxtK, nxtV):
        L = []
        ak, akr = (NKM, NKR) if nxtK else (AKM, AKR)
        av = NV if nxtV else AV
        L.append([f"ds_read_b128 {v(kset['km'],4)}, v{ak} offset:{ktile*512}",
                  f"ds_read_b64 {v(kset['kr'],2)}, v{akr} offset:{ktile*512}"])
        if vset is not None:
            L.append(["s_mov_b64 exec, s[42:43]",
                      f"ds_read_b128 {v(vset['v0'],4)}, v{av} offset:{vtile*1280}",
                      f"ds_read_b128 {v(vset['v1'],4)}, v{av} offset:{vtile*1280+640}",
                      "s_mov_b64 exec, -1"])
        return L
    for g in loads(SETS[1], 0, None, 0, False, False) + loads(SETS[0], 1, SETS[0], 0, False, False):
        for l in g: A(l)
    A("s_waitcnt lgkmcnt(0)")
    mf16(A, S0, SETS[1]['km'], QA_M, "0"); mf8(A, S0, SETS[1]['kr'], QA_R)
    A("s_nop 7")
    phase(A, S0, P0, S1, QB_M, QB_R, SETS[1], OB, P1, SETS[1], do_pv=False)
    if os.environ.get("DIAG") != "stage": stamp(A, 5)
    if os.environ.get("PRIO", "1") == "2":
        L_ = A.new("pr")
        A(f"s_cmp_eq_u32 s36, 1\ns_cbranch_scc0 {L_}\ns_setprio 1\n{L_}:")
    A(f"s_mov_b32 s{SI}, 0")
    A(f"s_mov_b32 s{SB}, {SLOT}")
    A(f"{name}_stage:")
    for i in range(4):
        cur = SETS[i % 2]; nxt = SETS[(i + 1) % 2]
        kt, vt = i + 2, i + 1
        L = loads(nxt, kt % 4, nxt, vt % 4, kt >= 4, vt >= 4)
        A("s_waitcnt lgkmcnt(0)")
        if i == 1:
            if os.environ.get("XB") != "nobar":
                A(f"""
                s_waitcnt vmcnt(0)
                s_barrier
                """)
            if STAMPS and os.environ.get("DIAG") == "stage":
                for s_ in range(8):
                    L_ = A.new("dg")
                    A(f"s_cmp_eq_u32 s{SI}, {s_}")
                    A(f"s_cbranch_scc0 {L_}")
                    stamp(A, 1 + s_)
                    A(f"{L_}:")
            A(f"""
            s_bitcmp1_b32 s{MK1}, s{SI}
            s_cbranch_scc1 {name}_hk1
            {name}_rt1:
            """)
        if i == 2 and os.environ.get("XD") != "nodma":
            A(f"""
            s_cmp_lt_u32 s{SI}, 6
            s_cbranch_scc0 {name}_nodma
            s_add_u32 s{SB}, s{SB}, {SLOT}
            s_cmp_eq_u32 s{SB}, {4*SLOT}
            s_cselect_b32 s{SB}, 0, s{SB}
            """)
            kv_dma_issue(A, SB)
            A(f"{name}_nodma:")
        if i == 3:
            A(f"""
            s_bitcmp1_b32 s{MK3}, s{SI}
            s_cbranch_scc1 {name}_hk3
            {name}_rt3:
            """)
        PR = os.environ.get("PRIO", "1")
        if PR == "1": A("s_setprio 1")
        phase(A, S1, P1, S0, QA_M, QA_R, cur, OA, P0, cur, pre=L)
        if PR == "1": A("s_setprio 0")
        if i == 3:
            A(f"""
            s_cmp_eq_u32 s{SI}, 7
            s_cbranch_scc1 {name}_tail
            """)
        phase(A, S0, P0, S1, QB_M, QB_R, cur, OB, P1, cur)
    A(f"""
    v_mov_b32 v{AKM}, v{NKM}
    v_mov_b32 v{AKR}, v{NKR}
    v_mov_b32 v{AV}, v{NV}
    s_add_u32 s{SI}, s{SI}, 1
    s_and_b32 s55, s{SI}, 3
    s_cmp_eq_u32 s55, 3
    s_mov_b32 s55, {SLOT}
    s_cselect_b32 s55, {(-3*SLOT) & 0xffffffff:#x}, s55
    v_add_u32 v{NKM}, s55, v{NKM}
    v_add_u32 v{NKR}, s55, v{NKR}
    v_add_u32 v{NV}, s55, v{NV}
    s_branch {name}_stage
    """)
    A(f"{name}_hk1:")
    A(f"""
    s_cmp_eq_u32 s{SI}, 0
    s_cbranch_scc1 {name}_h10
    s_cmp_eq_u32 s{SI}, 1
    s_cbranch_scc1 {name}_h11
    s_cmp_eq_u32 s{SI}, 2
    s_cbranch_scc1 {name}_h21
    s_cmp_eq_u32 s{SI}, 3
    s_cbranch_scc1 {name}_h31
    s_cmp_eq_u32 s{SI}, 4
    s_cbranch_scc1 {name}_h41
    s_cmp_eq_u32 s{SI}, 5
    s_cbranch_scc1 {name}_h51
    s_cmp_eq_u32 s{SI}, 6
    s_cbranch_scc1 {name}_h61
    s_cmp_eq_u32 s{SI}, 7
    s_cbranch_scc1 {name}_h71
    s_branch {name}_rt1
    """)
    A(f"""
    {name}_h10:
    s_lshl_b32 s55, s38, 7
    s_lshl_b32 s56, s37, 2
    s_add_u32 s55, s55, s56
    s_add_u32 s55, s55, {FAW}
    """)
    set_flag_ws(A, 55, T0, T1)
    A(f"s_branch {name}_rt1")
    A(f"{name}_h11:")
    A(f"s_mov_b32 s55, {FAW}")
    tile_flags_voff(A, FV)
    A("s_mov_b32 exec_lo, 0xffffff\ns_mov_b32 exec_hi, 0")
    flag_issue(A, FV, 55, FT)
    A("s_mov_b64 exec, -1")
    A(f"s_branch {name}_rt1")
    A(f"{name}_h21:")
    a_loads(A)
    A(f"s_branch {name}_rt1")
    A(f"""
    {name}_h31:
    s_lshl_b32 s55, s32, 10
    s_add_u32 s55, s55, {KVX}
    v_add_u32 v{T0}, s55, v2
    """)
    for j in range(8): A(f"ds_read_b128 {v(DD+4*j,4)}, v{T0} offset:{j*5120}")
    A(f"""
    s_mul_i32 s55, s33, {8*5120}
    s_mul_i32 s56, s34, 5120
    s_add_u32 s55, s55, s56
    s_lshl_b32 s56, s32, 10
    s_add_u32 s55, s55, s56
    s_add_u32 s55, s55, {KVP}
    s_waitcnt lgkmcnt(0)
    """)
    for j in range(1, 8):
        for e in range(4): A(f"v_add_f32 v{DD+e}, v{DD+e}, v{DD+4*j+e}")
    A(f"""
    buffer_store_dwordx4 {v(DD,4)}, v2, s[8:11], s55 offen sc1
    s_branch {name}_rt1
    """)
    A(f"""
    {name}_h41:
    s_cmp_ge_u32 s32, 5
    s_cbranch_scc1 {name}_h41b
    s_lshl_b32 s55, s33, 8
    s_lshl_b32 s56, s32, 5
    s_add_u32 s55, s55, s56
    s_add_u32 s55, s55, {FKVW}
    v_lshlrev_b32 v{FV}, 2, v1
    """)
    flag_issue(A, FV, 55, FT, width=1)
    A(f"{name}_h41b:")
    A(f"s_branch {name}_rt1")
    A(f"""
    {name}_h51:
    s_cmp_ge_u32 s32, 5
    s_cbranch_scc1 {name}_rt1
    """)
    for j in range(1, 8):
        for e in range(4): A(f"v_add_f32 v{KVL+e}, v{KVL+e}, v{KVL+4*j+e}")
    A(f"""
    v_cvt_pk_bf16_f32 v{DD}, v{KVL}, v{KVL+1}
    v_cvt_pk_bf16_f32 v{DD+1}, v{KVL+2}, v{KVL+3}
    s_cmp_eq_u32 s32, 2
    s_cbranch_scc1 {name}_kv2
    s_cmp_ge_u32 s32, 3
    s_cselect_b32 s55, 1024, 0
    s_cmp_eq_u32 s32, 1
    s_cselect_b32 s56, 8, 0
    s_cmp_eq_u32 s32, 4
    s_cselect_b32 s56, 8, s56
    s_add_u32 s55, s55, s56
    s_add_u32 s55, s55, {KVF}
    v_add_u32 v{T1}, s55, v2
    ds_write_b64 v{T1}, {v(DD,2)}
    s_branch {name}_rt1
    {name}_kv2:
    v_mov_b32 v{DD+2}, v{DD+1}
    v_mov_b32 v{DD+1}, 0
    v_mov_b32 v{DD+3}, 0
    v_lshlrev_b32 v{T1}, 3, v1
    v_add_u32 v{T1}, {KVF+2048}, v{T1}
    ds_write_b64 v{T1}, {v(DD,2)}
    ds_write_b64 v{T1}, {v(DD+2,2)} offset:512
    s_branch {name}_rt1
    """)
    A(f"""
    {name}_h61:
    v_add_u32 v{T1}, {KVF}, v2
    v_lshlrev_b32 v{T2}, 3, v1
    v_add_u32 v{T2}, {KVF+2048}, v{T2}
    ds_read_b128 {v(TT,4)}, v{T1}
    ds_read_b128 {v(TT+4,4)}, v{T1} offset:1024
    ds_read_b64 {v(TT+8,2)}, v{T2}
    ds_read_b64 {v(TT+10,2)}, v{T2} offset:512
    s_waitcnt lgkmcnt(0)
    """)
    mf16(A, DD, TT, PHQ, "0"); mf8(A, DD, TT+8, PHQ+4); mf16(A, DD, TT+4, PHQ+6); mf8(A, DD, TT+10, PHQ+10)
    o_addr(A, T2)
    A(f"""
    v_mov_b32 v{TT}, v{DD+8}
    v_mov_b32 v{TT+1}, v{DD+8}
    v_permlane32_swap_b32 v{TT}, v{TT+1}
    v_add_f32 v{TT+1}, 0x358637bd, v{TT+1}
    v_rcp_f32 v{TT+1}, v{TT+1}
    s_nop 0
    """)
    for r in range(12): A(f"v_mul_f32 v{DD+r}, v{DD+r}, v{TT+1}")
    store_o(A, DD, TT+2, T2, 55)
    A(f"s_branch {name}_rt1")
    A(f"""
    {name}_hk3:
    s_cmp_eq_u32 s{SI}, 1
    s_cbranch_scc1 {name}_h13
    s_cmp_eq_u32 s{SI}, 2
    s_cbranch_scc1 {name}_h23
    s_cmp_eq_u32 s{SI}, 3
    s_cbranch_scc1 {name}_h33
    s_cmp_eq_u32 s{SI}, 4
    s_cbranch_scc1 {name}_h43
    s_cmp_eq_u32 s{SI}, 5
    s_cbranch_scc1 {name}_h53
    s_cmp_eq_u32 s{SI}, 6
    s_cbranch_scc1 {name}_h63
    s_cmp_eq_u32 s{SI}, 7
    s_cbranch_scc1 {name}_h73
    s_branch {name}_rt3
    """)
    if STOP_AFTER != "P2":
        import fused3
        A(f"{name}_h53:")
        fused3.p3_loader_setup(A)
        for c in range(3): fused3.p3_issue(A, name, c, do_o=False)
        A(f"s_branch {name}_rt3")
        A(f"{name}_h71:")
        A(f"""
        s_lshl_b32 s55, s33, 8
        s_add_u32 s55, s55, {FO}
        """)
        flag_issue(A, 191, 55, FT, width=1)
        A(f"s_branch {name}_rt1")
        A(f"{name}_h73:")
        A(f"""
        s_waitcnt vmcnt(0)
        s_lshl_b32 s55, s33, 8
        s_add_u32 s55, s55, {FO}
        """)
        flag_check(A, 191, 55, FT, 64, width=1)
        for c in range(3): fused3.p3_issue(A, name, c, do_w=False)
        A(f"s_branch {name}_rt3")
    else:
        for l_ in ("h53", "h73"):
            A(f"{name}_{l_}:")
            A(f"s_branch {name}_rt3")
        A(f"{name}_h71:")
        A(f"s_branch {name}_rt1")
    A(f"{name}_h23:")
    A("s_waitcnt vmcnt(0)")
    a_compute(A)
    A(f"s_branch {name}_rt3")
    A(f"{name}_h13:")
    WOPF = os.environ.get("WOPF", "0") == "1"
    if WOPF: wo_prefetch(A, 1)
    A(f"s_cmp_eq_u32 s32, 0")
    A(f"s_cbranch_scc0 {name}_rt3")
    A(f"s_waitcnt vmcnt({10 if WOPF else 3})")
    A(f"s_mov_b32 s55, {FAW}")
    flag_check(A, FV, 55, FT, fused.NTF, masked=True)
    A(f"s_branch {name}_rt3")
    A(f"""
    {name}_h33:
    s_cmp_ge_u32 s32, 5
    s_cbranch_scc1 {name}_rt3
    s_waitcnt vmcnt(0)
    s_lshl_b32 s55, s33, 8
    s_lshl_b32 s56, s32, 5
    s_add_u32 s55, s55, s56
    s_lshl_b32 s56, s34, 2
    s_add_u32 s55, s55, s56
    s_add_u32 s55, s55, {FKVW}
    """)
    set_flag_ws(A, 55, T0, T1)
    A(f"s_branch {name}_rt3")
    A(f"""
    {name}_h43:
    s_cmp_ge_u32 s32, 5
    s_cbranch_scc1 {name}_rt3
    s_lshl_b32 s55, s33, 8
    s_lshl_b32 s56, s32, 5
    s_add_u32 s55, s55, s56
    s_add_u32 s55, s55, {FKVW}
    """)
    A("s_waitcnt vmcnt(3)")
    flag_check(A, FV, 55, FT, 8, width=1)
    A(f"""
    s_mul_i32 s55, s33, {8*5120}
    s_lshl_b32 s56, s32, 10
    s_add_u32 s55, s55, s56
    s_add_u32 s55, s55, {KVP}
    """)
    for j in range(8):
        A(f"s_add_u32 s56, s55, {j*5120}")
        A(f"buffer_load_dwordx4 {v(KVL+4*j,4)}, v2, s[8:11], s56 offen sc1")
    A(f"s_branch {name}_rt3")
    A(f"""
    {name}_h63:
    s_waitcnt vmcnt(0)
    """)
    fo_flag(A, 0)
    A(f"s_branch {name}_rt3")
    A(f"{name}_tail:")
    cur = SETS[1]
    mf16(A, OB, cur['v0'], P1); mf16(A, OB, cur['v1'], P1 + 4)
    if os.environ.get("DIAG") != "stage": stamp(A, 6)
    A(f"""
    s_mul_i32 s55, s32, 3072
    s_add_u32 s55, s55, {XO}
    v_add_u32 v{T0}, s55, v2
    s_cmp_eq_u32 s36, 0
    s_cbranch_scc1 {name}_x0
    ds_write_b128 v{T0}, {v(OA,4)}
    ds_write_b128 v{T0}, {v(OA+4,4)} offset:1024
    ds_write_b128 v{T0}, {v(OA+8,4)} offset:2048
    """)
    for r in range(12): A(f"v_mov_b32 v{OA+r}, v{OB+r}")
    A(f"""
    s_branch {name}_x1
    {name}_x0:
    ds_write_b128 v{T0}, {v(OB,4)}
    ds_write_b128 v{T0}, {v(OB+4,4)} offset:1024
    ds_write_b128 v{T0}, {v(OB+8,4)} offset:2048
    {name}_x1:
    s_waitcnt lgkmcnt(0)
    s_barrier
    s_xor_b32 s55, s32, 4
    s_mul_i32 s55, s55, 3072
    s_add_u32 s55, s55, {XO}
    v_add_u32 v{T0}, s55, v2
    ds_read_b128 v[16:19], v{T0}
    ds_read_b128 v[20:23], v{T0} offset:1024
    ds_read_b128 v[24:27], v{T0} offset:2048
    """)
    o_addr(A, T2)
    A(f"s_add_u32 s55, s55, {BR}")
    A("s_waitcnt lgkmcnt(0)")
    for r in range(12): A(f"v_add_f32 v{OA+r}, v{OA+r}, v{16+r}")
    A(f"""
    v_mov_b32 v16, v{OA+8}
    v_mov_b32 v17, v{OA+8}
    v_permlane32_swap_b32 v16, v17
    v_max3_f32 v18, |v{OA}|, |v{OA+1}|, |v{OA+2}|
    v_max3_f32 v18, v18, |v{OA+3}|, |v{OA+4}|
    v_max3_f32 v18, v18, |v{OA+5}|, |v{OA+6}|
    v_max3_f32 v18, v18, |v{OA+7}|, |v{OA+8}|
    v_max3_f32 v18, v18, |v{OA+9}|, |v{OA+10}|
    v_max_f32 v18, v18, |v{OA+11}|
    v_mov_b32 v19, 0x21800000
    v_mov_b32 v20, 0x5d800000
    v_mov_b32 v21, 0x7f000000
    v_cmp_ge_f32 vcc, v17, v19
    v_cmp_le_f32 s[58:59], v17, v20
    s_and_b64 vcc, vcc, s[58:59]
    v_cmp_lt_f32 s[58:59], v18, v21
    s_and_b64 vcc, vcc, s[58:59]
    s_cmp_eq_u64 vcc, -1
    s_cbranch_scc0 {name}_slow
    {name}_fin:
    v_rcp_f32 v17, v17
    s_nop 0
    """)
    for r in range(12): A(f"v_mul_f32 v{OA+r}, v{OA+r}, v17")
    store_o(A, OA, 20, T2, 55)
    if os.environ.get("DIAG") != "stage": stamp(A, 8)
    if STOP_AFTER == "P2":
        A("s_waitcnt vmcnt(0)")
        fo_flag(A, 1)
        stamp(A, 9); stamp(A, 11, real=True)
        stamp_flush(A, 12, 0, 32, base=70)
        A("s_endpgm")
    else:
        A(f"s_branch {name}_p3")
    A(f"{name}_slow:")
    A(f"s_cmp_eq_u32 s36, 0")
    A(f"s_cbranch_scc1 {name}_sl0")
    for i in range(4): A(f"v_mov_b32 v{QA_M+i}, v{QB_M+i}")
    for i in range(2): A(f"v_mov_b32 v{QA_R+i}, v{QB_R+i}")
    A(f"{name}_sl0:")
    for r in range(16): A(f"v_mov_b32 v{OA+r}, 0")
    MX = 44
    frag_addr(A, 42, 43)
    A(f"""
    v_mov_b32 v{MX}, 0xff7fffff
    v_mul_u32_u24 v{T0}, 320, v131
    v_lshlrev_b32 v{T1}, 4, v3
    v_add_u32 v{T0}, v{T0}, v{T1}
    s_mov_b32 s57, 0
    {name}_sloop:
    s_lshl_b32 s56, s57, 9
    s_add_u32 s56, s56, {BR + QKOFF}
    s_add_u32 s58, s66, 80
    s_lshl_b32 s58, s58, 15
    s_add_u32 s58, s58, s56
    buffer_load_dwordx4 {v(SETS[0]['km'],4)}, v42, s[8:11], s58 offen sc1
    s_add_u32 s58, s67, 80
    s_lshl_b32 s58, s58, 15
    s_add_u32 s58, s58, s56
    buffer_load_dwordx2 {v(SETS[0]['kr'],2)}, v43, s[8:11], s58 offen sc1
    s_lshr_b32 s56, s57, 2
    s_mul_i32 s56, s56, {VC}
    s_and_b32 s58, s57, 3
    s_mul_i32 s58, s58, 1280
    s_add_u32 s58, s58, s56
    s_add_u32 s58, s58, s53
    s_mov_b64 exec, s[42:43]
    buffer_load_dwordx4 {v(SETS[0]['v0'],4)}, v{T0}, s[8:11], s58 offen sc1
    buffer_load_dwordx4 {v(SETS[0]['v1'],4)}, v{T0}, s[8:11], s58 offen offset:640 sc1
    s_mov_b64 exec, -1
    s_waitcnt vmcnt(0)
    """)
    mf16(A, S0, SETS[0]['km'], QA_M, "0"); mf8(A, S0, SETS[0]['kr'], QA_R)
    A(f"v_max3_f32 v45, v{S0}, v{S0+1}, v{S0+2}")
    for r in range(3, 15, 2): A(f"v_max3_f32 v45, v45, v{S0+r}, v{S0+r+1}")
    A(f"""
    v_max_f32 v45, v45, v{S0+15}
    v_mov_b32 v46, v45
    v_permlane32_swap_b32 v45, v46
    v_max3_f32 v45, v45, v46, v{MX}
    v_sub_f32 v46, v{MX}, v45
    v_exp_f32 v46, v46
    v_mov_b32 v{MX}, v45
    """)
    for r in range(16): A(f"v_sub_f32 v{S0+r}, v{S0+r}, v45")
    for r in range(16): A(f"v_exp_f32 v{S0+r}, v{S0+r}")
    for r in range(16): A(f"v_mul_f32 v{OA+r}, v{OA+r}, v46")
    for i in range(8): A(f"v_cvt_pk_bf16_f32 v{P0+i}, v{S0+2*i}, v{S0+2*i+1}")
    mf16(A, OA, SETS[0]['v0'], P0); mf16(A, OA, SETS[0]['v1'], P0 + 4)
    A(f"""
    s_add_u32 s57, s57, 1
    s_cmp_lt_u32 s57, 64
    s_cbranch_scc1 {name}_sloop
    s_nop 15
    v_mov_b32 v16, v{OA+8}
    v_mov_b32 v17, v{OA+8}
    v_permlane32_swap_b32 v16, v17
    s_branch {name}_fin
    """)
    if STOP_AFTER != "P2":
        import fused3
        A(f"{name}_p3:")
        fused3.gen_p3(A, name, fo_flag)
```

```python
import os
from asmlib import *
from layout2 import *
from fused import poll_ws, set_flag_ws, flag_issue, flag_check, SPIN_MAX

OSF = os.environ.get('OSF', ' nt')
ST3 = 18432; NS3 = 7
def stage_addr(j): return 98304 + j * ST3 if j < 3 else 24576 + (j - 3) * ST3
OUTB = 153600
LO, LW, LL, LC = 94, 95, 100, 101
def p3_loader_setup(A):
    A(f"""
    v_lshlrev_b32 v191, 2, v1
    s_mul_i32 s{LO}, s33, {ORB}
    s_add_u32 s{LO}, s{LO}, {OOFF}
    s_lshl_b32 s55, s35, 10
    s_add_u32 s{LO}, s{LO}, s55
    s_mul_i32 s{LW}, s34, {10*10240}
    s_add_u32 s{LW}, s{LW}, {WOP}
    s_add_u32 s{LW}, s{LW}, s55
    """)
    if os.environ.get("ROT3", "1") == "1":
        A(f"""
        s_lshl_b32 s55, s34, 13
        s_add_u32 s{LO}, s{LO}, s55
        s_mul_i32 s55, s34, 10240
        s_add_u32 s{LW}, s{LW}, s55
        s_sub_u32 s{LL}, 10, s34
        """)
    else:
        A(f"s_mov_b32 s{LL}, 10")

def p3_issue(A, name, c, do_o=True, do_w=True):
    if os.environ.get("X3") == "nodma" and c >= 3: return
    sa = stage_addr(c % NS3)
    br, kc = c // 10, c % 10
    A(f"s_lshl_b32 s56, s35, 10")
    A(f"s_add_u32 s56, s56, {sa}")
    if do_o:
        A(f"""
        s_cmp_le_u32 s{LL}, {kc}
        s_cselect_b32 s58, {10*8192}, 0
        s_add_u32 s57, s{LO}, {(BR if br else 0) + kc*8192}
        s_sub_u32 s57, s57, s58
        s_mov_b32 m0, s56
        s_add_u32 s58, s57, 4096
        buffer_load_dwordx4 v2, s[8:11], s57 offen sc1 lds
        s_add_u32 m0, s56, 4096
        s_nop 0
        buffer_load_dwordx4 v2, s[8:11], s58 offen sc1 lds
        """)
    if do_w:
        L = A.new("p3w")
        wo = br*80*10240 + kc*10240
        A(f"""
        s_cmp_le_u32 s{LL}, {kc}
        s_cselect_b32 s58, {10*10240}, 0
        s_add_u32 s57, s{LW}, {wo}
        s_sub_u32 s57, s57, s58
        s_add_u32 m0, s56, 8192
        s_add_u32 s58, s57, 4096
        buffer_load_dwordx4 v2, s[8:11], s57 offen sc1 lds
        s_add_u32 m0, s56, {8192 + 4096}
        s_add_u32 s57, s57, 8192
        buffer_load_dwordx4 v2, s[8:11], s58 offen sc1 lds
        s_cmp_ge_u32 s35, 2
        s_cbranch_scc1 {L}
        s_add_u32 m0, s56, {8192 + 8192}
        s_nop 0
        buffer_load_dwordx4 v2, s[8:11], s57 offen sc1 lds
        {L}:
        """)

def p3_prefetch(A, name):
    p3_loader_setup(A)
    A(f"""
    s_lshl_b32 s55, s33, 8
    s_add_u32 s55, s55, {FO}
    """)
    poll_ws(A, 191, 55, 208, 64, width=1)
    for c in range(3): p3_issue(A, name, c)

def gen_p3(A, name, fo_flag):
    A(f"""
    s_cmp_eq_u32 s36, 1
    s_cbranch_scc1 {name}_p3load
    s_load_dwordx2 s[24:25], s[0:1], 56
    """)
    stamp(A, 1)
    OA_, WA_ = 4, 6
    ACC = 96
    FSET = [16, 56]
    LOB, HIB = stage_addr(3), stage_addr(0)
    A(f"""
    v_and_b32 v8, 15, v1
    v_lshrrev_b32 v9, 4, v1
    s_lshr_b32 s44, s35, 1
    s_lshl_b32 s44, s44, 5
    v_add_u32 v10, s44, v8
    v_lshlrev_b32 v10, 4, v10
    v_lshlrev_b32 v11, 10, v9
    v_add_u32 v10, v10, v11
    v_add_u32 v{OA_}, {LOB}, v10
    v_add_u32 v{OA_+1}, {HIB}, v10
    v_lshlrev_b32 v10, 3, v1
    s_and_b32 s45, s35, 1
    s_lshl_b32 s45, s45, 10
    s_add_u32 s45, s45, 8192
    v_add_u32 v10, s45, v10
    v_add_u32 v{WA_}, {LOB}, v10
    v_add_u32 v{WA_+1}, {HIB}, v10
    v_add_u32 v10, s44, v8
    v_mul_u32_u24 v10, 160, v10
    v_lshlrev_b32 v11, 3, v9
    s_and_b32 s45, s35, 1
    s_lshl_b32 s45, s45, 6
    s_add_u32 s45, s45, {OUTB}
    v_add3_u32 v10, v10, v11, s45
    """)
    for r in range(3):
        A(f"""
        s_lshl_b32 s51, s35, 6
        s_add_u32 s51, s51, {r*256}
        v_add_u32 v11, s51, v1
        v_lshlrev_b32 v{12+r}, 4, v11
        v_add_u32 v{12+r}, {OUTB}, v{12+r}
        v_mul_u32_u24 v8, 6554, v11
        v_lshrrev_b32 v8, 16, v8
        v_mul_u32_u24 v9, 10, v8
        v_sub_u32 v9, v11, v9
        v_lshlrev_b32 v9, 4, v9
        v_mul_u32_u24 v8, 2560, v8
        v_add_u32 v{140+r}, v8, v9
        """)
    A(f"""
    s_mul_i32 s50, s33, {64*2560}
    s_mul_i32 s51, s34, 160
    s_add_u32 s50, s50, s51
    s_waitcnt lgkmcnt(0)
    """)
    srd(A, 28, 24, 25, OUT_BYTES)
    def reads(c):
        j = c % NS3
        hi = 1 if j < 3 else 0
        so = (j if j < 3 else j - 3) * ST3
        L = []
        for kk in range(2):
            b = FSET[c % 2] + 20*kk
            for st in range(2): L.append(f"ds_read_b128 {v(b+4*st,4)}, v{OA_+hi} offset:{so+kk*4096+st*256}")
            for jt in range(3):
                for jj in range(2): L.append(f"ds_read_b64_tr_b16 {v(b+8+4*jt+2*jj,2)}, v{WA_+hi} offset:{so+kk*5120+jj*2560+jt*512}")
        return L
    def mf(c, first):
        L = []
        for kk in range(2):
            b = FSET[c % 2] + 20*kk
            for jt in range(3):
                for st in range(2):
                    D = v(ACC+4*(2*jt+st),4)
                    C = "0" if (first and kk == 0) else D
                    L.append(f"v_mfma_f32_16x16x32_bf16 {D}, {v(b+8+4*jt,4)}, {v(b+4*st,4)}, {C}")
        return L
    def epilogue(br):
        for jt in range(3):
            for st in range(2):
                r0 = ACC+4*(2*jt+st); t_ = 124 + 2*((2*jt+st) % 4)
                A(f"v_cvt_pk_bf16_f32 v{t_}, v{r0}, v{r0+1}")
                A(f"v_cvt_pk_bf16_f32 v{t_+1}, v{r0+2}, v{r0+3}")
                A(f"ds_write_b64 v10, {v(t_,2)} offset:{st*16*160+jt*32}")
        L = A.new("p3o")
        A(f"""
        s_waitcnt lgkmcnt(0)
        s_barrier
        s_add_u32 s51, s50, {1280*br}
        ds_read_b128 v[144:147], v12
        ds_read_b128 v[148:151], v13
        ds_read_b128 v[152:155], v14
        s_waitcnt lgkmcnt(1)
        buffer_store_dwordx4 v[144:147], v140, s[28:31], s51 offen{OSF}
        buffer_store_dwordx4 v[148:151], v141, s[28:31], s51 offen{OSF}
        s_cmp_ge_u32 s35, 2
        s_cbranch_scc1 {L}
        s_waitcnt lgkmcnt(0)
        buffer_store_dwordx4 v[152:155], v142, s[28:31], s51 offen{OSF}
        {L}:
        """)
    A("s_barrier")
    stamp(A, 2)
    for l in reads(0): A(l)
    for c in range(20):
        A("s_waitcnt lgkmcnt(0)")
        A("s_barrier")
        R = reads(c + 1) if c < 19 else []
        M = mf(c, c % 10 == 0)
        if os.environ.get("X3") == "nomf": M = ["s_nop 0"] * 12
        if os.environ.get("X3") == "nord": R = []
        for m in M:
            A(m)
            for _ in range(2):
                if R: A(R.pop(0))
        for r_ in R: A(r_)
        if c == 1:
            A("s_waitcnt vmcnt(0)")
            fo_flag(A, 1)
        if c == 9:
            epilogue(0)
        if c == 19:
            stamp(A, 3)
            epilogue(1)
    A(f"s_branch {name}_p3done")
    A(f"{name}_p3load:")
    A(f"""
    s_waitcnt vmcnt(3)
    s_barrier
    """)
    sched = {0: [(3,1,1), (4,1,1)], 1: [(5,1,1), (6,1,1)], 2: [(7,1,1), (8,1,1)], 3: [(9,1,1)]}
    for c in range(4, 10): sched[c] = [(c + 6, 0, 1)]
    for c in range(10, 14): sched[c] = [(c + 6, 1, 1)]
    ops = []
    ops += ["ostore"] * 3
    def log(ch, do_o, do_w):
        if do_o: ops.extend([("o", ch)] * 2)
        if do_w: ops.extend([("w", ch)] * 2)
    def allowed(ch):
        last = max(i for i, o in enumerate(ops) if isinstance(o, tuple) and o[1] == ch)
        return len(ops) - 1 - last
    for c in range(0, 21):
        if c > 0:
            A(f"s_waitcnt vmcnt({allowed(c) if 3 <= c < 20 else (0 if c == 20 else 63)})" if c >= 3 else "s_nop 0")
            A("s_barrier")
        for (ch, do_o, do_w) in sched.get(c, []):
            p3_issue(A, name, ch, do_o=bool(do_o), do_w=bool(do_w)); log(ch, do_o, do_w)
        if c == 1:
            A("s_waitcnt vmcnt(16)")
            fo_flag(A, 1); ops.append("flag")
        if c == 8:
            A(f"""
            s_lshl_b32 s55, s33, 8
            s_add_u32 s55, s55, {FO + 8192}
            """)
            flag_issue(A, 191, 55, 208, width=1); ops.append("flag")
        if c == 9:
            A(f"""
            s_lshl_b32 s55, s33, 8
            s_add_u32 s55, s55, {FO + 8192}
            """)
            stamp(A, 7)
            A("s_waitcnt vmcnt(2)")
            flag_check(A, 191, 55, 208, 64, width=1)
            stamp(A, 8)
            for m in range(10, 16):
                p3_issue(A, name, m, do_w=False); log(m, 1, 0)
        if c == 10: A("s_barrier")
    A("s_barrier")
    A(f"{name}_p3done:")
    stamp(A, 9); stamp(A, 11, real=True)
    stamp_flush(A, 12, 0, 32, base=70)
    A("s_endpgm")
```

```python
import os
from asmlib import *
from layout2 import *

LDS = 163840
SIGC = int(os.environ.get('SIGC', '12'))
SPIN_MAX = 50000
R1 = 32768; ST1 = 32768; NS1 = 4
LOG2E = 0x3fb8aa3b
QSCALE = 0x3ea52b5c
LSTAMP = os.environ.get('LSTAMP', '0') == '1'
NTX = ' nt' if os.environ.get('NTX', '0') == '1' else ''
NTW = ' nt' if os.environ.get('NTW', '0') == '1' else ''
STOP_AFTER = os.environ.get("STOP_AFTER", "")

def poll_dbg(A, lane_off_v, tmp_v, mask_lo, target, sleep=4):
    L = A.new("poll")
    A(f"""
    s_mov_b32 s59, 0
    {L}:
    global_load_dword v{tmp_v}, v{lane_off_v}, s[4:5] sc1
    s_waitcnt vmcnt(0)
    v_cmp_le_u32 vcc, {target}, v{tmp_v}
    s_and_b32 s58, vcc_lo, {mask_lo:#x}
    s_cmp_eq_u32 s58, {mask_lo:#x}
    s_cbranch_scc1 {L}_ok
    s_sleep {sleep}
    s_add_u32 s59, s59, 1
    s_cmp_lt_u32 s59, {SPIN_MAX}
    s_cbranch_scc1 {L}
    {L}_ok:
    """)

def poll_ws(A, voff, soff, T, nlanes, width=4, target=1, sleep=8):
    L = A.new("pw")
    mask = (1 << nlanes) - 1
    ld = {4: "buffer_load_dwordx4 " + v(T,4), 1: f"buffer_load_dword v{T}"}[width]
    def check():
        A("s_waitcnt vmcnt(0)")
        if width == 4:
            A(f"v_and_b32 v{T}, v{T}, v{T+1}")
            A(f"v_and_b32 v{T+2}, v{T+2}, v{T+3}")
            A(f"v_and_b32 v{T}, v{T}, v{T+2}")
        A(f"v_cmp_eq_u32 vcc, {target}, v{T}")
        if nlanes >= 64:
            A(f"s_cmp_eq_u64 vcc, -1")
        else:
            A(f"s_and_b32 s58, vcc_hi, {(mask >> 32):#x}") if nlanes > 32 else None
            if nlanes > 32:
                A(f"s_cmp_eq_u32 s58, {(mask >> 32):#x}")
                A(f"s_cselect_b32 s58, vcc_lo, 0")
                A(f"s_cmp_eq_u32 s58, -1")
            else:
                A(f"s_and_b32 s58, vcc_lo, {mask:#x}")
                A(f"s_cmp_eq_u32 s58, {mask:#x}")
    A(f"{ld}, v{voff}, s[8:11], s{soff} offen sc1")
    check()
    A(f"s_cbranch_scc1 {L}_ok")
    A(f"s_mov_b32 s59, 0")
    A(f"{L}:")
    A(f"s_sleep {sleep}")
    A(f"{ld}, v{voff}, s[8:11], s{soff} offen sc1")
    check()
    A(f"""
    s_cbranch_scc1 {L}_ok
    s_add_u32 s59, s59, 1
    s_cmp_lt_u32 s59, {SPIN_MAX}
    s_cbranch_scc1 {L}
    {L}_ok:
    """)

def flag_issue(A, voff, soff, T, width=4):
    ld = {4: "buffer_load_dwordx4 " + v(T,4), 1: f"buffer_load_dword v{T}"}[width]
    A(f"{ld}, v{voff}, s[8:11], s{soff} offen sc1")
def flag_check(A, voff, soff, T, nlanes, width=4, target=1, sleep=8, masked=False):
    L = A.new("fc")
    mask = (1 << nlanes) - 1
    if width == 4:
        A(f"v_and_b32 v{T}, v{T}, v{T+1}")
        A(f"v_and_b32 v{T+2}, v{T+2}, v{T+3}")
        A(f"v_and_b32 v{T}, v{T}, v{T+2}")
    A(f"v_cmp_eq_u32 vcc, {target}, v{T}")
    if nlanes >= 64:
        A(f"s_cmp_eq_u64 vcc, -1")
    elif nlanes > 32:
        A(f"s_and_b32 s58, vcc_hi, {(mask >> 32):#x}")
        A(f"s_cmp_eq_u32 s58, {(mask >> 32):#x}")
        A(f"s_cselect_b32 s58, vcc_lo, 0")
        A(f"s_cmp_eq_u32 s58, -1")
    else:
        A(f"s_and_b32 s58, vcc_lo, {mask:#x}")
        A(f"s_cmp_eq_u32 s58, {mask:#x}")
    A(f"s_cbranch_scc1 {L}")
    if masked: A(f"s_mov_b32 exec_lo, {(1 << nlanes) - 1:#x}\ns_mov_b32 exec_hi, 0")
    poll_ws(A, voff, soff, T, nlanes, width, target, sleep)
    if masked: A("s_mov_b64 exec, -1")
    A(f"{L}:")

def set_flag_ws(A, soff, tv0, tv1):
    A(f"""
    v_mov_b32 v{tv0}, 0
    v_mov_b32 v{tv1}, 1
    s_mov_b64 exec, 1
    buffer_store_dword v{tv1}, v{tv0}, s[8:11], s{soff} offen sc1
    s_mov_b64 exec, -1
    """)

def check_prep(A, tv0, tv1):
    L = A.new("cp")
    A(f"""
    v_mov_b32 v{tv0}, {FPREP*4}
    global_load_dword v{tv1}, v{tv0}, s[4:5] sc1
    s_mov_b32 s59, 0
    {L}:
    s_waitcnt vmcnt(0)
    v_readfirstlane_b32 s58, v{tv1}
    s_cmp_ge_u32 s58, 16
    s_cbranch_scc1 {L}_ok
    s_sleep 16
    global_load_dword v{tv1}, v{tv0}, s[4:5] sc1
    s_add_u32 s59, s59, 1
    s_cmp_lt_u32 s59, {SPIN_MAX}
    s_cbranch_scc1 {L}
    {L}_ok:
    """)

NTF = 24
def tile_flags_voff(A, vd):
    A(f"""
    s_mul_i32 s56, s33, 20
    s_add_u32 s57, s56, 19
    s_lshr_b32 s56, s56, 7
    s_lshr_b32 s57, s57, 7
    v_lshrrev_b32 v{vd}, 3, v1
    v_min_u32 v{vd}, 2, v{vd}
    v_mul_u32_u24 v{vd}, 5, v{vd}
    v_bfe_u32 v{vd+1}, v1, 2, 1
    v_cmp_eq_u32 vcc, 1, v{vd+1}
    v_mov_b32 v{vd+1}, s56
    v_mov_b32 v{vd+2}, s57
    v_cndmask_b32 v{vd+1}, v{vd+1}, v{vd+2}, vcc
    v_add_u32 v{vd}, v{vd}, v{vd+1}
    v_lshlrev_b32 v{vd}, 7, v{vd}
    v_and_b32 v{vd+1}, 3, v1
    v_lshlrev_b32 v{vd+1}, 4, v{vd+1}
    v_add_u32 v{vd}, v{vd}, v{vd+1}
    """)

def signal_dbg(A, idx_s, tv0, tv1):
    A(f"""
    s_lshl_b32 s58, s{idx_s}, 2
    v_mov_b32 v{tv0}, s58
    v_mov_b32 v{tv1}, 1
    s_mov_b64 exec, 1
    global_atomic_add v{tv0}, v{tv1}, s[4:5] sc1
    s_mov_b64 exec, -1
    """)

def gen_common(A, name):
    A(f"""
    s_cmp_ge_u32 s2, 256
    s_cbranch_scc1 {name}_done
    s_load_dwordx4 s[20:23], s[0:1], 0
    s_load_dwordx4 s[24:27], s[0:1], 32
    s_load_dwordx4 s[4:7], s[0:1], 64
    s_load_dwordx2 s[28:29], s[0:1], 16
    v_and_b32 v1, 63, v0
    v_lshrrev_b32 v2, 6, v0
    v_and_b32 v3, 31, v1
    v_readfirstlane_b32 s32, v2
    v_lshrrev_b32 v131, 5, v1
    v_lshlrev_b32 v2, 4, v1
    v_lshlrev_b32 v132, 3, v3
    s_and_b32 s39, s2, 7
    s_lshr_b32 s64, s2, 3
    s_lshl_b32 s33, s39, 2
    s_lshr_b32 s45, s64, 3
    s_add_u32 s33, s33, s45
    s_and_b32 s34, s64, 7
    s_and_b32 s35, s32, 3
    s_lshr_b32 s36, s32, 2
    s_lshr_b32 s65, s39, 1
    s_lshl_b32 s37, s65, 2
    s_and_b32 s30, s39, 1
    s_cmp_eq_u32 s30, 0
    s_cbranch_scc0 {name}_map1
    s_lshr_b32 s46, s64, 3
    s_add_u32 s37, s37, s46
    s_and_b32 s38, s64, 7
    s_mov_b32 s31, 0
    s_branch {name}_map2
    {name}_map1:
    s_mul_i32 s46, s64, 37
    s_lshr_b32 s46, s46, 8
    s_add_u32 s37, s37, s46
    s_mul_i32 s46, s46, 7
    s_sub_u32 s38, s64, s46
    s_add_u32 s38, s38, 8
    s_cmp_ge_u32 s64, 28
    s_cselect_b32 s31, 1, 0
    {name}_map2:
    s_mov_b32 s40, 1.0
    s_mov_b32 s41, -1.0
    s_mov_b32 s42, 0x000fffff
    s_mov_b32 s43, 0x000fffff
    s_and_b32 s45, s33, 1
    s_mul_i32 s66, s33, 5
    s_add_u32 s66, s66, s45
    s_lshr_b32 s66, s66, 1
    s_add_u32 s67, s66, 2
    s_cmp_eq_u32 s45, 1
    s_cselect_b32 s46, 3, 0
    s_sub_u32 s67, s67, s46
    s_lshl_b32 s68, s45, 3
    s_mul_i32 s53, s33, {VH}
    s_add_u32 s53, s53, {BR + VOFF}
    s_waitcnt lgkmcnt(0)
    """)
    srd(A, 8, 6, 7, WS_BYTES)
    for r in (188, 189, 190, 191): A(f"v_mov_b32 v{r}, 0")

def p2_stage_dma(A, st, dyn=None):
    L = A.new("sd")
    if dyn is None:
        A(f"""
        s_lshr_b32 s56, s35, 1
        s_mul_i32 s57, s56, {PART}
        s_add_u32 s57, s57, {(st % 4) * SLOT}
        s_lshl_b32 s56, s56, 3
        s_add_u32 s56, s56, {st}
        """)
    else:
        A(f"""
        s_lshr_b32 s56, s35, 1
        s_mul_i32 s57, s56, {PART}
        s_add_u32 s57, s57, s{dyn[0]}
        s_lshl_b32 s56, s56, 3
        s_add_u32 s56, s56, s{dyn[1]}
        """)
    A(f"""
    s_bitcmp1_b32 s35, 0
    s_cbranch_scc1 {L}_v
    s_lshl_b32 s56, s56, 11
    s_add_u32 s58, s66, 80
    s_lshl_b32 s58, s58, 15
    s_add_u32 s58, s58, s56
    s_add_u32 s58, s58, {BR + QKOFF}
    s_add_u32 s59, s67, 80
    s_lshl_b32 s59, s59, 15
    s_add_u32 s59, s59, s56
    s_add_u32 s59, s59, {BR + QKOFF}
    """)
    for e, (src, off) in enumerate(((58, 0), (58, 1024), (58, QKG), (58, QKG + 1024), (59, 0), (59, 1024))):
        A(f"s_add_u32 m0, s57, {e*1024}")
        A(f"s_add_u32 s56, s{src}, {off}")
        A(f"buffer_load_dwordx4 v2, s[8:11], s56 offen sc1 lds")
    A(f"""
    s_branch {L}_e
    {L}_v:
    s_mul_i32 s56, s56, {VC}
    s_add_u32 s56, s56, s53
    """)
    for e in range(5):
        A(f"s_add_u32 m0, s57, {6144 + e*1024}")
        A(f"s_add_u32 s58, s56, {e*1024}")
        A(f"buffer_load_dwordx4 v2, s[8:11], s58 offen sc1 lds")
    A(f"{L}_e:")

QA_M, QB_M, QA_R, QB_R = 4, 8, 12, 14
def frag_addr(A, vm, vr):
    A(f"""
    v_lshlrev_b32 v{vm}, 15, v131
    v_lshlrev_b32 v{vr}, 4, v3
    v_add_u32 v{vm}, v{vm}, v{vr}
    v_add_u32 v{vr}, s68, v{vr}
    """)
QL = 22528
def p2_q_dma(A):
    A(f"""
    s_lshl_b32 s56, s34, 8
    s_lshl_b32 s57, s35, 6
    s_add_u32 s56, s56, s57
    s_lshl_b32 s56, s56, 4
    s_add_u32 s56, s56, {BR + QKOFF}
    s_lshl_b32 s57, s35, 10
    s_add_u32 s57, s57, {QL}
    s_lshl_b32 s58, s66, 15
    s_add_u32 s58, s58, s56
    s_mov_b32 m0, s57
    s_add_u32 s59, s58, {QKG}
    buffer_load_dwordx4 v2, s[8:11], s58 offen sc1 lds
    s_add_u32 m0, s57, 4096
    s_lshl_b32 s58, s67, 15
    buffer_load_dwordx4 v2, s[8:11], s59 offen sc1 lds
    s_add_u32 s58, s58, s56
    s_add_u32 s58, s58, s68
    v_lshrrev_b32 v12, 1, v1
    v_lshlrev_b32 v12, 4, v12
    v_and_b32 v13, 1, v1
    v_lshlrev_b32 v13, 2, v13
    v_add_u32 v12, v12, v13
    s_lshl_b32 s57, s35, 9
    s_add_u32 s57, s57, {QL + 8192}
    s_mov_b32 m0, s57
    s_add_u32 s59, s58, 512
    buffer_load_dword v12, s[8:11], s58 offen sc1 lds
    s_add_u32 m0, s57, 256
    s_nop 0
    buffer_load_dword v12, s[8:11], s59 offen sc1 lds
    """)
def p2_q_reads(A, tm=133, tr=134):
    A(f"""
    s_lshl_b32 s56, s35, 10
    s_add_u32 s56, s56, {QL}
    v_lshlrev_b32 v{tm}, 12, v131
    v_lshlrev_b32 v{tr}, 4, v3
    v_add3_u32 v{tm}, v{tm}, v{tr}, s56
    s_lshl_b32 s56, s35, 9
    s_add_u32 s56, s56, {QL + 8192}
    v_add_u32 v{tr}, s56, v132
    v_mov_b32 v{QA_R}, 0
    v_mov_b32 v{QA_R+1}, 0
    v_mov_b32 v{QA_R+2}, 0
    v_mov_b32 v{QA_R+3}, 0
    ds_read_b128 {v(QA_M,4)}, v{tm}
    ds_read_b128 {v(QB_M,4)}, v{tm} offset:512
    s_mov_b32 exec_hi, 0
    ds_read_b64 {v(QA_R,2)}, v{tr}
    ds_read_b64 {v(QB_R,2)}, v{tr} offset:256
    s_mov_b64 exec, -1
    s_waitcnt lgkmcnt(0)
    s_barrier
    """)

XV, WV = 192, 196
CXA, CWA, CXA2, CWA2, CEA = 4, 8, 10, 14, 128
EA = 200
ACC = 64
def p1_loader(A, name):
    A.c("P1 loader")
    A(f"""
    v_lshrrev_b32 v7, 3, v1
    s_lshl_b32 s44, s35, 5
    v_add_u32 v7, s44, v7
    v_mul_u32_u24 v7, 1280, v7
    v_lshrrev_b32 v8, 4, v1
    v_and_b32 v9, 7, v1
    """)
    for i in range(4):
        A(f"""
        v_add_u32 v10, {4*i}, v8
        v_and_b32 v10, 7, v10
        v_xor_b32 v10, v10, v9
        v_lshlrev_b32 v10, 4, v10
        v_add_u32 v10, v10, v7
        v_add_u32 v{XV+i}, {8*i*1280}, v10
        """)
    A(f"""
    s_lshl_b32 s44, s35, 4
    v_add_u32 v7, s44, v8
    v_mul_u32_u24 v7, 3840, v7
    v_lshrrev_b32 v9, 2, v1
    v_xor_b32 v9, v9, v8
    v_and_b32 v9, 3, v9
    v_lshlrev_b32 v9, 6, v9
    v_and_b32 v10, 3, v1
    v_lshlrev_b32 v10, 4, v10
    v_add3_u32 v{WV}, v7, v9, v10
    s_lshl_b32 s44, s35, 12
    s_add_u32 s45, s44, 16384
    s_and_b32 s52, s37, 3
    s_mul_i32 s52, s52, 3
    s_add_u32 s52, s52, s38
    s_lshl_b32 s54, s65, 1
    s_add_u32 s52, s52, s54
    s_cmp_ge_u32 s52, 20
    s_cselect_b32 s54, 20, 0
    s_sub_u32 s52, s52, s54
    s_cmp_ge_u32 s52, 10
    s_cselect_b32 s54, 10, 0
    s_sub_u32 s52, s52, s54
    """)
    if os.environ.get("ROT", "1") != "1": A("s_mov_b32 s52, 0")
    A(f"""
    s_mov_b32 s55, s52
    s_mul_i32 s46, s37, {128*1280}
    s_lshl_b32 s54, s55, 7
    s_add_u32 s46, s46, s54
    s_lshl_b32 s47, s38, 8
    s_mul_i32 s54, s55, {64*3840}
    s_add_u32 s47, s47, s54
    s_mov_b32 s56, s55
    s_mov_b32 s48, {R1}
    s_mov_b32 s49, 0
    """)
    srd(A, 12, 24, 25, X_BYTES)
    srd(A, 16, 26, 27, W_BYTES)
    def issue(tag):
        for i in range(4 if not (os.environ.get("XP") == "nodma" and tag == "lp") else 0):
            A(f"s_add_u32 s50, s48, s44")
            A(f"s_add_u32 m0, s50, {i*1024}")
            A(f"s_add_u32 s51, s47, {i*4*3840}")
            A(f"buffer_load_dwordx4 v{XV+i}, s[12:15], s46 offen{NTX} lds")
            A(f"s_add_u32 s50, s48, s45")
            A(f"s_add_u32 m0, s50, {i*1024}")
            A(f"s_nop 0")
            A(f"buffer_load_dwordx4 v{WV}, s[16:19], s51 offen{NTW} lds")
        A(f"""
        s_add_u32 s46, s46, 128
        s_add_u32 s47, s47, {64*3840}
        s_add_u32 s48, s48, {ST1}
        s_cmp_eq_u32 s48, {R1+NS1*ST1}
        s_cselect_b32 s48, {R1}, s48
        s_add_u32 s56, s56, 1
        s_cmp_eq_u32 s56, 10
        s_cselect_b32 s54, {10*128}, 0
        s_sub_u32 s46, s46, s54
        s_cmp_eq_u32 s56, 10
        s_cselect_b32 s54, {10*64*3840}, 0
        s_sub_u32 s47, s47, s54
        s_cmp_eq_u32 s56, 10
        s_cselect_b32 s56, 0, s56
        s_add_u32 s49, s49, 1
        s_cmp_eq_u32 s49, 10
        s_cbranch_scc0 {name}_ld_{tag}
        """)
        srd(A, 12, 20, 21, X_BYTES)
        srd(A, 16, 22, 23, W_BYTES)
        A(f"""
        {name}_ld_{tag}:
        """)
    SPD = int(os.environ.get("SPD", "6"))
    def spf_bases(xl, xh, wl, wh):
        A(f"""
        s_lshl_b32 s54, s64, 2
        s_add_u32 s54, s54, s35
        s_lshl_b32 s55, s65, 9
        s_lshl_b32 s57, s54, 2
        s_add_u32 s55, s55, s57
        s_mul_i32 s55, s55, 1280
        s_add_u32 s60, s{xl}, s55
        s_addc_u32 s61, s{xh}, 0
        s_lshr_b32 s55, s54, 1
        s_mul_i32 s55, s55, 3840
        s_and_b32 s57, s54, 1
        s_lshl_b32 s57, s57, 10
        s_add_u32 s55, s55, s57
        s_lshl_b32 s57, s30, 11
        s_add_u32 s55, s55, s57
        s_add_u32 s62, s{wl}, s55
        s_addc_u32 s63, s{wh}, 0
        """)
    def spf_one():
        for r in range(4): A(f"s_load_dword s94, s[60:61], {r*1280}")
        for r in range(8): A(f"s_load_dword s95, s[62:63], {r*128}")
        A(f"""
        s_add_u32 s60, s60, 128
        s_addc_u32 s61, s61, 0
        s_add_u32 s62, s62, {64*3840}
        s_addc_u32 s63, s63, 0
        """)
    issue("p0"); issue("p1"); issue("p2")
    if SPD:
        spf_bases(24, 25, 26, 27)
        A(f"""
        s_add_u32 s60, s60, {3*128}
        s_addc_u32 s61, s61, 0
        s_add_u32 s62, s62, {3*64*3840}
        s_addc_u32 s63, s63, 0
        s_mov_b32 s100, 3
        """)
        for _ in range(SPD - 3):
            spf_one(); A("s_add_u32 s100, s100, 1")
    stamp(A, 1)
    if STAMPS: A("s_mov_b32 s74, 0\ns_mov_b32 s75, 0\ns_mov_b32 s76, 0\ns_mov_b32 s77, 0\ns_mov_b32 s80, 0\ns_mov_b32 s81, 0")
    if os.environ.get("XP") == "nobar":
        A(f"""
        s_mov_b32 s52, 0
        {name}_xl:
        s_waitcnt vmcnt({os.environ.get("XVM", "16")})
        """)
        issue("xp")
        A(f"""
        s_add_u32 s52, s52, 1
        s_cmp_lt_u32 s52, 17
        s_cbranch_scc1 {name}_xl
        s_waitcnt vmcnt(0)
        """)
        stamp(A, 4); stamp(A, 9); stamp(A, 11, real=True)
        stamp_flush(A, 12, 0, 32, base=70)
        A("s_endpgm")
    A(f"""
    s_mov_b32 s52, 0
    {name}_lloop:
    """)
    if STAMPS and LSTAMP:
        A("""
        s_memtime s[86:87]
        s_waitcnt lgkmcnt(0)
        s_waitcnt vmcnt(16)
        s_memtime s[88:89]
        s_waitcnt lgkmcnt(0)
        s_sub_u32 s90, s88, s86
        s_add_u32 s74, s74, s90
        s_barrier
        s_memtime s[86:87]
        s_waitcnt lgkmcnt(0)
        s_sub_u32 s90, s86, s88
        s_add_u32 s76, s76, s90
        """)
    else:
        A("s_waitcnt vmcnt(16)")
        A("s_barrier")
    issue("lp")
    if SPD:
        A(f"""
        s_cmp_ge_u32 s100, 20
        s_cbranch_scc1 {name}_nsp
        s_cmp_eq_u32 s100, 10
        s_cbranch_scc0 {name}_sp1
        """)
        spf_bases(20, 21, 22, 23)
        A(f"{name}_sp1:")
        spf_one()
        A(f"""
        s_add_u32 s100, s100, 1
        {name}_nsp:
        """)
    if STAMPS and LSTAMP:
        A("""
        s_memtime s[88:89]
        s_waitcnt lgkmcnt(0)
        s_sub_u32 s90, s88, s86
        s_add_u32 s80, s80, s90
        """)
    A(f"""
    s_add_u32 s52, s52, 1
    s_cmp_lt_u32 s52, 17
    s_cbranch_scc1 {name}_lloop
    s_waitcnt vmcnt(16)
    s_barrier
    s_waitcnt vmcnt(8)
    s_barrier
    s_waitcnt vmcnt(0)
    s_barrier
    s_mov_b32 s54, {FBW}
    """)
    tile_flags_voff(A, 7)
    A("s_mov_b32 exec_lo, 0xffffff\ns_mov_b32 exec_hi, 0")
    flag_issue(A, 7, 54, 16)
    A("s_mov_b64 exec, -1")
    import fused2
    fused2.kv_dma_setup(A)
    A(f"""
    s_barrier
    s_waitcnt vmcnt(0)
    s_mov_b32 s54, {FBW}
    """)
    stamp(A, 7)
    flag_check(A, 7, 54, 16, NTF, masked=True)
    stamp(A, 8)
    p2_stage_dma(A, 0)
    p2_q_dma(A)
    A(f"""
    s_waitcnt vmcnt(0)
    s_barrier
    """)

def stage0_all(A):
    A("s_mov_b32 s63, s35")
    for p in range(4):
        A(f"s_mov_b32 s35, {p}")
        p2_stage_dma(A, 0)
        p2_q_dma(A)
    A("s_mov_b32 s35, s63")

PF_MODE = os.environ.get('PF_MODE', 'plain')
def prefetch_share(A, xl, xh, wl, wh, nw, widx):
    if PF_MODE == 'off': return
    srd(A, 12, xl, xh, X_BYTES)
    srd(A, 16, wl, wh, W_BYTES)
    A(f"""
    s_mul_i32 s50, s2, 10240
    s_mul_i32 s51, s2, 9600
    s_lshl_b32 s52, s{widx}, 10
    s_add_u32 s50, s50, s52
    s_add_u32 s51, s51, s52
    """)
    for r in range(-(-10 // nw)):
        L = A.new("pf")
        lim = 10 - r * nw
        if lim < nw:
            A(f"s_cmp_ge_u32 s{widx}, {lim}")
            A(f"s_cbranch_scc1 {L}")
        A(f"s_add_u32 s52, s50, {r*nw*1024}")
        A(f"buffer_load_dwordx4 v[216:219], v2, s[12:15], s52 offen")
        A(f"s_add_u32 s52, s51, {r*nw*1024}")
        A(f"buffer_load_dwordx4 v[220:223], v2, s[16:19], s52 offen")
        if lim < nw: A(f"{L}:")

L2PF = int(os.environ.get('L2PF', '5'))
def l2pf_setup(A):
    L = A.new("l2")
    A(f"""
    s_mov_b32 s69, 0
    s_cmp_lg_u32 s32, 1
    s_cbranch_scc1 {L}_e
    s_cmp_ge_u32 s64, 24
    s_cbranch_scc1 {L}_e
    s_mov_b32 s69, 1
    s_cmp_ge_u32 s64, 8
    s_cbranch_scc1 {L}_w
    s_lshl_b32 s44, s65, 9
    s_lshl_b32 s45, s64, 6
    s_add_u32 s44, s44, s45
    v_add_u32 v5, s44, v1
    v_mul_u32_u24 v5, 1280, v5
    s_mov_b32 s55, 128
    """)
    srd(A, 96, 24, 25, X_BYTES)
    A(f"""
    s_branch {L}_go
    {L}_w:
    s_sub_u32 s44, s64, 8
    s_lshl_b32 s44, s44, 2
    v_lshrrev_b32 v5, 4, v1
    v_add_u32 v5, s44, v5
    v_mul_u32_u24 v5, 3840, v5
    v_and_b32 v6, 15, v1
    v_lshlrev_b32 v6, 7, v6
    s_lshl_b32 s44, s30, 11
    v_add3_u32 v5, v5, v6, s44
    s_mov_b32 s55, {64*3840}
    """)
    srd(A, 96, 26, 27, W_BYTES)
    A(f"""
    {L}_go:
    s_mul_i32 s54, s55, 4
    s_mov_b32 s57, 4
    {L}_e:
    """)
def l2pf_one(A):
    if not L2PF: return
    L = A.new("l2o")
    A(f"""
    s_cmp_eq_u32 s69, 1
    s_cbranch_scc0 {L}_e
    s_cmp_ge_u32 s57, 20
    s_cbranch_scc1 {L}_e
    s_cmp_eq_u32 s57, 10
    s_cbranch_scc0 {L}_n
    s_mov_b32 s54, 0
    s_cmp_ge_u32 s64, 8
    s_cbranch_scc1 {L}_w
    """)
    srd(A, 96, 20, 21, X_BYTES)
    A(f"s_branch {L}_n")
    A(f"{L}_w:")
    srd(A, 96, 22, 23, W_BYTES)
    A(f"""
    {L}_n:
    buffer_load_dword v224, v5, s[96:99], s54 offen
    s_add_u32 s54, s54, s55
    s_add_u32 s57, s57, 1
    {L}_e:
    """)

def p1_compute(A, name, orient):
    tag = f"{name}_c{orient}"
    FB_ = [16, 32, 48, 144]
    ACCS = [64, 160]
    T = 224
    def reads(c, kk):
        q = c % 4
        b = FB_[kk]
        xa = (CXA if q < 2 else CXA2) + kk; wa = CWA if q < 2 else CWA2
        so = (q & 1) * ST1
        L = []
        L.append(f"ds_read_b128 {v(b,4)}, v{xa} offset:{so}")
        for jj in range(2): L.append(f"ds_read_b64_tr_b16 {v(b+8+2*jj,2)}, v{wa} offset:{so+kk*4096+jj*1024}")
        L.append(f"ds_read_b128 {v(b+4,4)}, v{xa} offset:{so+4096}")
        for jj in range(2): L.append(f"ds_read_b64_tr_b16 {v(b+12+2*jj,2)}, v{wa+1} offset:{so+kk*4096+jj*1024}")
        return L
    def mf(c, kk):
        b = FB_[kk]; acc = ACCS[c // 10]
        first = (c % 10 == 0 and kk == 0)
        L = []
        for nt in range(2):
            for st in range(2):
                X = v(b+4*st,4); W = v(b+8+4*nt,4)
                if orient == "T":
                    D = v(acc+16*(2*nt+st),16); L.append(f"v_mfma_f32_32x32x16_bf16 {D}, {W}, {X}, {'0' if first else D}")
                else:
                    D = v(acc+16*(2*st+nt),16); L.append(f"v_mfma_f32_32x32x16_bf16 {D}, {X}, {W}, {'0' if first else D}")
        return L
    def epilogue(br_is_B):
        acc = ACCS[0 if br_is_B else 1]
        L = []
        if orient == "T":
            n = 0
            for nt in range(2):
                for st in range(2):
                    r0 = acc+16*(2*nt+st)
                    for ip in range(2):
                        t_ = T + 4*(n % 4); n += 1
                        if br_is_B:
                            for e in range(8): L.append(f"v_mul_f32 v{r0+8*ip+e}, s62, v{r0+8*ip+e}")
                        for e in range(4): L.append(f"v_cvt_pk_bf16_f32 v{t_+e}, v{r0+8*ip+2*e}, v{r0+8*ip+2*e+1}")
                        L.append(f"s_add_u32 s55, s61, {(4*nt+2*ip)*QKG + st*512}")
                        L.append(f"s_nop 0")
                        L.append(f"v_permlane32_swap_b32 v{t_}, v{t_+2}")
                        L.append(f"v_permlane32_swap_b32 v{t_+1}, v{t_+3}")
                        L.append(f"buffer_store_dwordx4 {v(t_,4)}, v{CEA}, s[8:11], s55 offen sc1")
        else:
            for nt in range(2):
                for st in range(2):
                    for m in range(2):
                        r0 = acc+16*(2*st+nt)+8*m
                        t_ = T + 4*((2*st+m) % 4)
                        for e in range(4): L.append(f"v_cvt_pk_bf16_f32 v{t_+e}, v{r0+2*e}, v{r0+2*e+1}")
                        L.append(f"buffer_store_dwordx4 {v(t_,4)}, v{CEA+nt}, s[8:11], s61 offen offset:{(2*st+m)*640} sc1")
        return L
    if orient == "T":
        A(f"""
        s_lshl_b32 s44, s38, 4
        s_and_b32 s45, s35, 1
        s_lshl_b32 s45, s45, 3
        s_add_u32 s44, s44, s45
        v_add_u32 v{T}, s44, v131
        v_lshlrev_b32 v{T}, 15, v{T}
        s_lshl_b32 s44, s37, 7
        s_lshr_b32 s45, s35, 1
        s_lshl_b32 s45, s45, 6
        s_add_u32 s44, s44, s45
        v_add_u32 v{T+1}, s44, v3
        v_lshlrev_b32 v{T+1}, 4, v{T+1}
        v_add_u32 v{CEA}, v{T}, v{T+1}
        s_mov_b32 s60, {QKOFF}
        s_mov_b32 s62, 1.0
        s_cmp_lt_u32 s38, 5
        s_cselect_b32 s62, {QSCALE:#x}, s62
        """)
    else:
        A(f"""
        s_sub_u32 s44, s38, 10
        s_lshl_b32 s44, s44, 7
        s_and_b32 s45, s35, 1
        s_lshl_b32 s45, s45, 6
        s_add_u32 s44, s44, s45
        s_mul_i32 s60, s37, {VC}
        s_add_u32 s60, s60, {VOFF}
        s_lshr_b32 s45, s35, 1
        s_mul_i32 s45, s45, {4*640}
        s_add_u32 s60, s60, s45
        v_mul_u32_u24 v{T}, 320, v131
        s_mov_b32 s45, {VH}
        """)
        for nt in range(2):
            A(f"""
            v_add_u32 v{T+1}, s44, v3
            v_add_u32 v{T+1}, {32*nt}, v{T+1}
            v_mul_u32_u24 v{T+2}, 3277, v{T+1}
            v_lshrrev_b32 v{T+2}, 16, v{T+2}
            v_mul_u32_u24 v{T+3}, 20, v{T+2}
            v_sub_u32 v{T+3}, v{T+1}, v{T+3}
            v_lshlrev_b32 v{T+3}, 4, v{T+3}
            v_mul_lo_u32 v{T+2}, v{T+2}, s45
            v_add3_u32 v{CEA+nt}, v{T+2}, v{T+3}, v{T}
            """)
    for kk in range(4): A(f"v_add_u32 v{CXA2+kk}, {2*ST1}, v{CXA+kk}")
    for nt in range(2): A(f"v_add_u32 v{CWA2+nt}, {2*ST1}, v{CWA+nt}")
    A(f"s_add_u32 s61, s60, {BR}")
    stamp(A, 1)
    A("s_barrier")
    stamp(A, 2)
    for l in reads(0, 0) + reads(0, 1): A(l)
    EPI = epilogue(True)
    def emit(M, R, extra_per=0):
        R = list(R)
        for i_, m in enumerate(M):
            A(m)
            for _ in range(3):
                if R: A(R.pop(0))
            for _ in range(extra_per):
                if EPI: A(EPI.pop(0))
    for c in range(20):
        ex = 0
        if c in (10, 11): ex = -(-len(epilogue(True)) // 30)
        A("s_waitcnt lgkmcnt(6)")
        emit(mf(c, 0), reads(c, 2), ex if c != 10 else 0)
        A("s_waitcnt lgkmcnt(6)")
        emit(mf(c, 1), reads(c, 3), ex)
        if c == SIGC: A("s_waitcnt vmcnt(0)")
        A("s_waitcnt lgkmcnt(0)")
        A("s_barrier")
        emit(mf(c, 2), reads(c + 1, 0), ex)
        A("s_waitcnt lgkmcnt(6)")
        emit(mf(c, 3), reads(c + 1, 1), ex)
        if c == 11:
            while EPI: A(EPI.pop(0))
        if c == 15:
            import fused2
            fused2.kv_dma_setup(A)
        if c == 4:
            L = A.new("fp")
            A(f"""
            s_cmp_eq_u32 s32, 0
            s_cbranch_scc0 {L}
            v_mov_b32 v240, {FPREP*4}
            global_load_dword v241, v240, s[4:5] sc1
            {L}:
            """)
        if c == 9: stamp(A, 5)
        if c == SIGC:
            A(f"s_cmp_eq_u32 s32, 0")
            A(f"s_cbranch_scc1 {tag}_hk_sig")
            A(f"{tag}_rt_sig:")
    stamp(A, 3)
    A(f"s_mov_b32 s61, s60")
    for l in epilogue(False): A(l)
    A(f"s_branch {name}_cdone")
    A(f"{tag}_hk_sig:")
    stamp(A, 7)
    L = A.new("cp")
    A(f"""
    v_readfirstlane_b32 s58, v241
    s_cmp_ge_u32 s58, 16
    s_cbranch_scc1 {L}
    """)
    check_prep(A, 240, 241)
    A(f"""
    {L}:
    s_lshl_b32 s54, s38, 7
    s_lshl_b32 s55, s37, 2
    s_add_u32 s54, s54, s55
    s_add_u32 s54, s54, {FBW}
    """)
    set_flag_ws(A, 54, 240, 241)
    A(f"s_branch {tag}_rt_sig")

def p1_compute_setup(A):
    A(f"""
    s_lshr_b32 s44, s35, 1
    s_lshl_b32 s44, s44, 6
    v_add_u32 v20, s44, v3
    v_lshlrev_b32 v20, 7, v20
    v_add_u32 v20, {R1}, v20
    v_lshrrev_b32 v16, 1, v3
    v_and_b32 v16, 7, v16
    v_xor_b32 v16, v16, v131
    """)
    for kk in range(4):
        A(f"""
        v_xor_b32 v17, {2*kk}, v16
        v_lshlrev_b32 v17, 4, v17
        v_add_u32 v{CXA+kk}, v20, v17
        """)
    A(f"""
    v_lshrrev_b32 v16, 2, v1
    v_and_b32 v16, 3, v16
    v_lshlrev_b32 v17, 11, v131
    v_lshlrev_b32 v18, 8, v16
    v_add_u32 v17, v17, v18
    v_lshrrev_b32 v18, 4, v1
    v_and_b32 v18, 1, v18
    v_lshlrev_b32 v18, 5, v18
    v_add_u32 v17, v17, v18
    v_and_b32 v18, 3, v1
    v_lshlrev_b32 v18, 3, v18
    v_add_u32 v17, v17, v18
    v_add_u32 v17, {R1+16384}, v17
    s_and_b32 s44, s35, 1
    s_lshl_b32 s44, s44, 1
    """)
    for nt in range(2):
        A(f"""
        s_add_u32 s45, s44, {nt}
        v_xor_b32 v18, s45, v16
        v_lshlrev_b32 v18, 6, v18
        v_add_u32 v{CWA+nt}, v17, v18
        """)


STK = 16384
NSK = int(os.environ.get("NSK", "8"))
DEP = int(os.environ.get("DEP", "4"))
def p1k_loader(A, name):
    XV_, WV_ = 192, 194
    A(f"""
    v_lshrrev_b32 v7, 2, v1
    s_lshl_b32 s44, s35, 5
    v_add_u32 v7, s44, v7
    v_mul_u32_u24 v7, 1280, v7
    v_lshrrev_b32 v8, 4, v1
    v_and_b32 v9, 3, v1
    v_xor_b32 v10, v9, v8
    v_and_b32 v10, 3, v10
    v_lshlrev_b32 v10, 4, v10
    v_add_u32 v{XV_}, v7, v10
    v_add_u32 v{XV_+1}, {16*1280}, v{XV_}
    s_lshl_b32 s44, s35, 3
    v_add_u32 v7, s44, v8
    v_mul_u32_u24 v7, 3840, v7
    v_lshrrev_b32 v10, 2, v1
    v_xor_b32 v10, v10, v8
    v_and_b32 v10, 3, v10
    v_lshlrev_b32 v10, 6, v10
    v_lshlrev_b32 v9, 4, v9
    v_add3_u32 v{WV_}, v7, v10, v9
    s_lshl_b32 s44, s35, 11
    s_add_u32 s44, s44, {R1}
    s_add_u32 s45, s44, 8192
    s_and_b32 s52, s37, 3
    s_mul_i32 s52, s52, 6
    s_lshl_b32 s54, s38, 1
    s_add_u32 s52, s52, s54
    s_lshl_b32 s54, s65, 2
    s_add_u32 s52, s52, s54
    s_cmp_ge_u32 s52, 40
    s_cselect_b32 s54, 40, 0
    s_sub_u32 s52, s52, s54
    s_cmp_ge_u32 s52, 20
    s_cselect_b32 s54, 20, 0
    s_sub_u32 s52, s52, s54
    s_mov_b32 s56, s52
    s_mul_i32 s46, s37, {128*1280}
    s_lshl_b32 s54, s52, 6
    s_add_u32 s46, s46, s54
    s_lshl_b32 s47, s38, 8
    s_mul_i32 s54, s52, {32*3840}
    s_add_u32 s47, s47, s54
    s_mov_b32 s48, 0
    s_mov_b32 s49, 0
    """)
    srd(A, 12, 24, 25, X_BYTES)
    srd(A, 16, 26, 27, W_BYTES)
    def issue(tag):
        for i in range(2):
            A(f"s_add_u32 s50, s48, s44")
            A(f"s_add_u32 m0, s50, {i*1024}")
            A(f"s_add_u32 s51, s47, {i*4*3840}")
            A(f"buffer_load_dwordx4 v{XV_+i}, s[12:15], s46 offen lds")
            A(f"s_add_u32 s50, s48, s45")
            A(f"s_add_u32 m0, s50, {i*1024}")
            A(f"s_nop 0")
            A(f"buffer_load_dwordx4 v{WV_}, s[16:19], s51 offen lds")
        A(f"""
        s_add_u32 s46, s46, 64
        s_add_u32 s47, s47, {32*3840}
        s_add_u32 s48, s48, {STK}
        s_and_b32 s48, s48, {NSK*STK - 1:#x}
        s_add_u32 s56, s56, 1
        s_cmp_eq_u32 s56, 20
        s_cselect_b32 s54, {20*64}, 0
        s_sub_u32 s46, s46, s54
        s_cmp_eq_u32 s56, 20
        s_cselect_b32 s54, {20*32*3840}, 0
        s_sub_u32 s47, s47, s54
        s_cmp_eq_u32 s56, 20
        s_cselect_b32 s56, 0, s56
        s_add_u32 s49, s49, 1
        s_cmp_eq_u32 s49, 20
        s_cbranch_scc0 {name}_lk_{tag}
        """)
        srd(A, 12, 20, 21, X_BYTES)
        srd(A, 16, 22, 23, W_BYTES)
        A(f"{name}_lk_{tag}:")
    for k in range(DEP): issue(f"p{k}")
    stamp(A, 1)
    A(f"""
    s_waitcnt vmcnt({4*(DEP-1)})
    s_barrier
    s_mov_b32 s52, 0
    {name}_lkloop:
    s_waitcnt vmcnt({4*(DEP-2)})
    s_barrier
    """)
    issue("lp")
    A(f"""
    s_add_u32 s52, s52, 1
    s_cmp_lt_u32 s52, {40 - DEP}
    s_cbranch_scc1 {name}_lkloop
    """)
    EARLY = int(os.environ.get("EARLY", "36"))
    import fused2
    A(f"s_mov_b32 s54, {FBW}")
    tile_flags_voff(A, 7)
    for b in range(41 - DEP, 41):
        left = max(0, 39 - b)
        if b < EARLY: A(f"s_waitcnt vmcnt({4*left})")
        elif b == EARLY: A("s_waitcnt vmcnt(0)")
        if b == EARLY - 1:
            pass
        A("s_barrier")
        if b == EARLY - 2:
            A("s_mov_b32 exec_lo, 0xffffff\ns_mov_b32 exec_hi, 0")
            flag_issue(A, 7, 54, 16)
            A("s_mov_b64 exec, -1")
        if b == EARLY:
            L = A.new("ea")
            A("s_mov_b32 s63, 0")
            A(f"v_and_b32 v16, v16, v17\nv_and_b32 v18, v18, v19\nv_and_b32 v16, v16, v18\nv_cmp_eq_u32 vcc, 1, v16\ns_and_b32 s58, vcc_lo, 0xffffff\ns_cmp_eq_u32 s58, 0xffffff")
            A(f"s_cbranch_scc0 {L}")
            A("s_mov_b32 s63, 1")
            p2_stage_dma(A, 0)
            p2_q_dma(A)
            A(f"{L}:")
            fused2.kv_dma_setup(A)
    L = A.new("eb")
    A(f"""
    s_cmp_eq_u32 s63, 1
    s_cbranch_scc1 {L}
    s_mov_b32 s54, {FBW}
    s_mov_b32 exec_lo, 0xffffff
    s_mov_b32 exec_hi, 0
    """)
    stamp(A, 7)
    poll_ws(A, 7, 54, 16, NTF)
    stamp(A, 8)
    A("s_mov_b64 exec, -1")
    p2_stage_dma(A, 0)
    p2_q_dma(A)
    A(f"""
    {L}:
    s_waitcnt vmcnt(0)
    s_barrier
    """)

def p1k_compute(A, name, orient):
    tag = f"{name}_k{orient}"
    XA_, WA_, EA_ = 4, 8, 128
    FB_ = [16, 32]
    T = 144
    def reads(q, kk, b):
        hi = q // 4; so = (q % 4) * STK; b = FB_[b]
        xa = XA_ + 2*hi + kk; wa = WA_ + 2*hi
        L = [f"ds_read_b128 {v(b,4)}, v{xa} offset:{so}"]
        for jj in range(2): L.append(f"ds_read_b64_tr_b16 {v(b+8+2*jj,2)}, v{wa} offset:{so+kk*4096+jj*1024}")
        L.append(f"ds_read_b128 {v(b+4,4)}, v{xa} offset:{so+2048}")
        for jj in range(2): L.append(f"ds_read_b64_tr_b16 {v(b+12+2*jj,2)}, v{wa+1} offset:{so+kk*4096+jj*1024}")
        return L
    def mf(b):
        b = FB_[b]; L = []
        for nt in range(2):
            for s_ in range(2):
                X = v(b+4*s_,4); W = v(b+8+4*nt,4)
                if orient == "T":
                    D = v(ACC+16*(2*nt+s_),16); L.append(f"v_mfma_f32_32x32x16_bf16 {D}, {W}, {X}, {D}")
                else:
                    D = v(ACC+16*(2*s_+nt),16); L.append(f"v_mfma_f32_32x32x16_bf16 {D}, {X}, {W}, {D}")
        return L
    def step(M, R):
        R = list(R)
        for m in M:
            A(m)
            for _ in range(3):
                if R: A(R.pop(0))
    A(f"""
    s_lshr_b32 s44, s35, 1
    s_lshl_b32 s44, s44, 6
    v_add_u32 v18, s44, v3
    v_lshlrev_b32 v18, 6, v18
    v_add_u32 v18, {R1}, v18
    v_lshrrev_b32 v19, 2, v3
    v_and_b32 v19, 3, v19
    v_xor_b32 v19, v19, v131
    v_lshlrev_b32 v20, 4, v19
    v_add_u32 v{XA_}, v18, v20
    v_xor_b32 v19, 2, v19
    v_lshlrev_b32 v20, 4, v19
    v_add_u32 v{XA_+1}, v18, v20
    v_add_u32 v{XA_+2}, 65536, v{XA_}
    v_add_u32 v{XA_+3}, 65536, v{XA_+1}
    v_lshrrev_b32 v16, 2, v1
    v_and_b32 v16, 3, v16
    v_lshlrev_b32 v18, 11, v131
    v_lshlrev_b32 v19, 8, v16
    v_add_u32 v18, v18, v19
    v_lshrrev_b32 v19, 4, v1
    v_and_b32 v19, 1, v19
    v_lshlrev_b32 v19, 5, v19
    v_add_u32 v18, v18, v19
    v_and_b32 v19, 3, v1
    v_lshlrev_b32 v19, 3, v19
    v_add_u32 v18, v18, v19
    v_add_u32 v18, {R1 + 8192}, v18
    s_and_b32 s44, s35, 1
    s_lshl_b32 s44, s44, 1
    """)
    for nt in range(2):
        A(f"""
        s_add_u32 s45, s44, {nt}
        v_xor_b32 v19, s45, v16
        v_lshlrev_b32 v19, 6, v19
        v_add_u32 v{WA_+nt}, v18, v19
        v_add_u32 v{WA_+2+nt}, 65536, v{WA_+nt}
        """)
    if orient == "T":
        A(f"""
        s_lshl_b32 s44, s38, 4
        s_and_b32 s45, s35, 1
        s_lshl_b32 s45, s45, 3
        s_add_u32 s44, s44, s45
        v_add_u32 v{T}, s44, v131
        v_lshlrev_b32 v{T}, 15, v{T}
        s_lshl_b32 s44, s37, 7
        s_lshr_b32 s45, s35, 1
        s_lshl_b32 s45, s45, 6
        s_add_u32 s44, s44, s45
        v_add_u32 v{T+1}, s44, v3
        v_lshlrev_b32 v{T+1}, 4, v{T+1}
        v_add_u32 v{EA_}, v{T}, v{T+1}
        s_mov_b32 s61, {BR + QKOFF}
        s_mov_b32 s62, 1.0
        s_cmp_lt_u32 s38, 5
        s_cselect_b32 s62, {QSCALE:#x}, s62
        """)
    else:
        A(f"""
        s_sub_u32 s44, s38, 10
        s_lshl_b32 s44, s44, 7
        s_and_b32 s45, s35, 1
        s_lshl_b32 s45, s45, 6
        s_add_u32 s44, s44, s45
        s_mul_i32 s61, s37, {VC}
        s_add_u32 s61, s61, {BR + VOFF}
        s_lshr_b32 s45, s35, 1
        s_mul_i32 s45, s45, {4*640}
        s_add_u32 s61, s61, s45
        v_mul_u32_u24 v{T}, 320, v131
        s_mov_b32 s45, {VH}
        """)
        for nt in range(2):
            A(f"""
            v_add_u32 v{T+1}, s44, v3
            v_add_u32 v{T+1}, {32*nt}, v{T+1}
            v_mul_u32_u24 v{T+2}, 3277, v{T+1}
            v_lshrrev_b32 v{T+2}, 16, v{T+2}
            v_mul_u32_u24 v{T+3}, 20, v{T+2}
            v_sub_u32 v{T+3}, v{T+1}, v{T+3}
            v_lshlrev_b32 v{T+3}, 4, v{T+3}
            v_mul_lo_u32 v{T+2}, v{T+2}, s45
            v_add3_u32 v{EA_+nt}, v{T+2}, v{T+3}, v{T}
            """)
    for i in range(64): A(f"v_mov_b32 v{ACC+i}, 0")
    stamp(A, 1)
    A("s_mov_b32 s63, 0")
    A("s_barrier")
    stamp(A, 2)
    for l in reads(0, 0, 0): A(l)
    A("s_mov_b32 s46, 0")
    A(f"{tag}_loop:")
    for q in range(8):
        qq = q % NSK
        A("s_waitcnt lgkmcnt(0)")
        step(mf(0), reads(qq, 1, 1))
        if q == 0:
            A(f"s_cmp_eq_u32 s46, 3")
            A(f"s_cbranch_scc1 {tag}_vm")
            A(f"{tag}_vmr:")
        A("s_waitcnt lgkmcnt(0)")
        A("s_barrier")
        M = mf(1)
        step(M, reads((q + 1) % NSK, 0, 0))
        if q == 0:
            A(f"s_cmp_eq_u32 s46, 3")
            A(f"s_cbranch_scc1 {tag}_sig")
            A(f"{tag}_sigr:")
            A(f"s_cmp_eq_u32 s46, 1")
            A(f"s_cbranch_scc1 {tag}_fp")
            A(f"{tag}_fpr:")
        if q == 3:
            A(f"s_cmp_eq_u32 s46, 2")
            A(f"s_cbranch_scc1 {tag}_epi")
            A(f"{tag}_epir:")
        if q == 7:
            A("s_add_u32 s46, s46, 1")
            A("s_cmp_lt_u32 s46, 5")
            A(f"s_cbranch_scc1 {tag}_loop")
    stamp(A, 3)
    A(f"{tag}_epi:")
    A("s_waitcnt lgkmcnt(0)")
    n = 0
    if orient == "T":
        for nt in range(2):
            for s_ in range(2):
                r0 = ACC+16*(2*nt+s_)
                for ip in range(2):
                    t_ = T + 4*(n % 4); n += 1
                    for e in range(8): A(f"v_mul_f32 v{r0+8*ip+e}, s62, v{r0+8*ip+e}")
                    for e in range(4): A(f"v_cvt_pk_bf16_f32 v{t_+e}, v{r0+8*ip+2*e}, v{r0+8*ip+2*e+1}")
                    A(f"s_add_u32 s55, s61, {(4*nt+2*ip)*QKG + s_*512}")
                    A(f"v_permlane32_swap_b32 v{t_}, v{t_+2}")
                    A(f"v_permlane32_swap_b32 v{t_+1}, v{t_+3}")
                    A(f"buffer_store_dwordx4 {v(t_,4)}, v{EA_}, s[8:11], s55 offen sc1")
    else:
        for nt in range(2):
            for s_ in range(2):
                for m in range(2):
                    r0 = ACC+16*(2*s_+nt)+8*m
                    t_ = T + 4*((2*s_+m) % 4)
                    for e in range(4): A(f"v_cvt_pk_bf16_f32 v{t_+e}, v{r0+2*e}, v{r0+2*e+1}")
                    A(f"buffer_store_dwordx4 {v(t_,4)}, v{EA_+nt}, s[8:11], s61 offen offset:{(2*s_+m)*640} sc1")
    A(f"""
    s_cmp_eq_u32 s63, 1
    s_cbranch_scc1 {tag}_fin
    s_mov_b32 s63, 1
    s_sub_u32 s61, s61, {BR:#x}
    s_mov_b32 s62, 1.0
    """)
    stamp(A, 5)
    for i in range(64): A(f"v_mov_b32 v{ACC+i}, 0")
    A(f"s_branch {tag}_epir")
    A(f"{tag}_fin:")
    import fused2
    fused2.kv_dma_setup(A)
    A(f"s_branch {name}_cdone")
    A(f"{tag}_vm:")
    A("s_waitcnt vmcnt(0)")
    A(f"s_branch {tag}_vmr")
    A(f"{tag}_fp:")
    A(f"""
    s_cmp_eq_u32 s32, 0
    s_cbranch_scc0 {tag}_fpr
    v_mov_b32 v160, {FPREP*4}
    global_load_dword v161, v160, s[4:5] sc1
    s_branch {tag}_fpr
    {tag}_sig:
    s_cmp_eq_u32 s32, 0
    s_cbranch_scc0 {tag}_sigr
    """)
    stamp(A, 7)
    L = A.new("cp")
    A(f"""
    v_readfirstlane_b32 s58, v161
    s_cmp_ge_u32 s58, 16
    s_cbranch_scc1 {L}
    """)
    check_prep(A, 160, 161)
    A(f"""
    {L}:
    s_lshl_b32 s54, s38, 7
    s_lshl_b32 s55, s37, 2
    s_add_u32 s54, s54, s55
    s_add_u32 s54, s54, {FBW}
    """)
    set_flag_ws(A, 54, 160, 161)
    A(f"s_branch {tag}_sigr")

def p1_prep(A, name):
    A.c("prep WGs")
    A(f"""
    s_lshl_b32 s69, s65, 2
    s_add_u32 s69, s69, s64
    s_sub_u32 s69, s69, 28
    s_cmp_ge_u32 s32, 3
    s_cbranch_scc1 {name}_prep_done
    """)
    srd(A, 12, 28, 29, 32*20*20*2)
    A(f"""
    s_cmp_eq_u32 s32, 2
    s_cbranch_scc1 {name}_sel
    s_lshl_b32 s44, s69, 1
    s_add_u32 s44, s44, s32
    v_subrev_u32 v4, 2, v3
    v_cmp_gt_u32 vcc, 18, v3
    v_cndmask_b32 v4, v4, v3, vcc
    v_and_b32 v5, 30, v3
    v_cmp_eq_u32 s[46:47], 20, v5
    s_or_b64 s[46:47], s[46:47], vcc
    v_lshlrev_b32 v4, 1, v4
    s_mul_i32 s45, s44, 800
    v_add_u32 v4, s45, v4
    s_and_b32 s45, s44, 1
    s_mul_i32 s48, s45, {4*40}
    v_mul_u32_u24 v5, {8*40}, v131
    v_add3_u32 v5, v4, v5, s48
    v_mov_b32 v6, 0x7fffffff
    v_cndmask_b32 v5, v6, v5, s[46:47]
    v_cmp_eq_u32 vcc, 0, v131
    s_and_b64 s[46:47], s[46:47], vcc
    s_cmp_eq_u32 s45, 1
    s_cselect_b32 s48, 0, {16*40}
    v_add_u32 v4, s48, v4
    v_cndmask_b32 v4, v6, v4, s[46:47]
    """)
    for j in range(8): A(f"buffer_load_ushort v{16+j}, v5, s[12:15], 0 offen offset:{40*j}")
    for j in range(4): A(f"buffer_load_ushort v{24+j}, v4, s[12:15], 0 offen offset:{40*j}")
    A("s_waitcnt vmcnt(0)")
    for j in range(12):
        A(f"v_lshlrev_b32 v{16+j}, 16, v{16+j}")
        A(f"v_mul_f32 v{16+j}, {LOG2E:#x}, v{16+j}")
    for j in range(6): A(f"v_cvt_pk_bf16_f32 v{32+j}, v{16+2*j}, v{17+2*j}")
    A(f"""
    s_mul_i32 s45, s44, 1536
    s_add_u32 s45, s45, {WPH}
    v_lshlrev_b32 v7, 3, v1
    buffer_store_dwordx4 v[32:35], v2, s[8:11], s45 offen sc1
    buffer_store_dwordx2 v[36:37], v7, s[8:11], s45 offen offset:1024 sc1
    s_branch {name}_prep_done
    {name}_sel:
    s_cmp_lg_u32 s69, 0
    s_cbranch_scc1 {name}_prep_done
    v_lshlrev_b32 v4, 2, v131
    v_sub_u32 v4, v3, v4
    """)
    for j in range(12):
        tgt = (8*(j//4) + (j%4)) if j < 8 else 16 + (j-8)
        A(f"""
        v_cmp_eq_u32 vcc, {tgt}, v4
        v_mov_b32 v5, 0x3f80
        v_cndmask_b32 v{16+j}, 0, v5, vcc
        """)
    for j in range(6): A(f"v_lshl_or_b32 v{32+j}, v{17+2*j}, 16, v{16+2*j}")
    A(f"""
    s_mov_b32 s45, {SEL}
    v_lshlrev_b32 v7, 3, v1
    buffer_store_dwordx4 v[32:35], v2, s[8:11], s45 offen sc1
    buffer_store_dwordx2 v[36:37], v7, s[8:11], s45 offen offset:1024 sc1
    v_mov_b32 v40, 0
    v_mov_b32 v41, 0
    v_mov_b32 v42, 0
    v_mov_b32 v43, 0
    """)
    for j in range(FZERO_BYTES // 1024):
        A(f"s_mov_b32 s45, {FZERO_LO + j*1024}")
        A(f"buffer_store_dwordx4 v[40:43], v2, s[8:11], s45 offen sc1")
    A(f"""
    {name}_prep_done:
    """)
    stamp(A, 1)
    A(f"""
    s_load_dwordx2 s[44:45], s[0:1], 24
    s_load_dwordx2 s[46:47], s[0:1], 48
    s_waitcnt lgkmcnt(0)
    """)
    srd(A, 12, 44, 45, WO_BYTES)
    srd(A, 16, 46, 47, WO_BYTES)
    for i in range(13):
        L = A.new("wr")
        tv = 64 + 4 * i
        A(f"""
        s_add_u32 s48, s32, {8*i}
        s_cmp_ge_u32 s48, 100
        s_cbranch_scc1 {L}
        s_mul_i32 s49, s48, 205
        s_lshr_b32 s49, s49, 11
        s_mul_i32 s50, s49, 10
        s_sub_u32 s50, s48, s50
        s_mul_i32 s51, s69, 10
        s_add_u32 s49, s49, s51
        s_lshl_b32 s50, s50, 6
        v_add_u32 v10, s50, v1
        v_lshrrev_b32 v11, 5, v10
        v_mul_u32_u24 v12, 205, v11
        v_lshrrev_b32 v12, 11, v12
        v_mul_u32_u24 v13, 10, v12
        v_sub_u32 v11, v11, v13
        v_mul_u32_u24 v13, 52, v11
        v_lshrrev_b32 v13, 8, v13
        v_mul_u32_u24 v14, 5, v13
        v_sub_u32 v11, v11, v14
        v_lshlrev_b32 v12, 5, v12
        v_lshlrev_b32 v13, 2, v13
        v_add_u32 v12, v12, v13
        v_lshrrev_b32 v13, 3, v10
        v_and_b32 v13, 3, v13
        v_lshlrev_b32 v13, 3, v13
        v_add_u32 v12, v12, v13
        v_lshrrev_b32 v13, 1, v10
        v_and_b32 v13, 3, v13
        v_add_u32 v12, v12, v13
        v_mul_u32_u24 v12, 1280, v12
        v_lshlrev_b32 v11, 5, v11
        v_and_b32 v13, 1, v10
        v_lshlrev_b32 v13, 4, v13
        v_add3_u32 v10, v12, v11, v13
        s_cmp_ge_u32 s49, 80
        s_cselect_b32 s51, 80, 0
        s_sub_u32 s51, s49, s51
        s_mul_i32 s52, s51, 205
        s_lshr_b32 s52, s52, 11
        s_mul_i32 s54, s52, 10
        s_sub_u32 s54, s51, s54
        s_mul_i32 s54, s54, {64*1280}
        s_mul_i32 s52, s52, 160
        s_add_u32 s54, s54, s52
        s_cmp_ge_u32 s49, 80
        s_cbranch_scc1 {L}_b
        buffer_load_dwordx4 {v(tv,4)}, v10, s[12:15], s54 offen
        s_branch {L}
        {L}_b:
        buffer_load_dwordx4 {v(tv,4)}, v10, s[16:19], s54 offen
        {L}:
        """)
    stamp(A, 2)
    A("s_waitcnt vmcnt(0)")
    stamp(A, 3)
    for i in range(13):
        L = A.new("ws")
        tv = 64 + 4 * i
        A(f"""
        s_add_u32 s48, s32, {8*i}
        s_cmp_ge_u32 s48, 100
        s_cbranch_scc1 {L}
        s_mul_i32 s49, s69, 100
        s_add_u32 s49, s49, s48
        s_lshl_b32 s49, s49, 10
        s_add_u32 s49, s49, {WOP}
        buffer_store_dwordx4 {v(tv,4)}, v2, s[8:11], s49 offen sc1
        {L}:
        """)
    A("s_waitcnt vmcnt(0)")
    stamp(A, 7)
    A(f"""
    s_cmp_eq_u32 s36, 0
    s_cbranch_scc0 {name}_prep_npf
    """)
    prefetch_share(A, 20, 21, 22, 23, 4, 35)
    A(f"""
    {name}_prep_npf:
    s_barrier
    s_cmp_eq_u32 s32, 4
    s_cbranch_scc0 {name}_prep_w
    s_mov_b32 s50, {FPREP}
    """)
    signal_dbg(A, 50, 48, 49)
    check_prep(A, 48, 49)
    A(f"s_mov_b32 s50, {FBW}")
    tile_flags_voff(A, 7)
    A("s_mov_b32 exec_lo, 0xffffff\ns_mov_b32 exec_hi, 0")
    poll_ws(A, 7, 50, 16, NTF, sleep=32)
    A("s_mov_b64 exec, -1")
    stage0_all(A)
    A(f"""
    s_waitcnt vmcnt(0)
    {name}_prep_w:
    """)
    import fused2
    fused2.kv_dma_setup(A)
    A(f"""
    s_barrier
    s_branch {name}_p2entry
    """)

def code_prefetch(A, name, nblk=6):
    if os.environ.get("CODEPF", "1") != "1": return
    L = A.new("cpf")
    A(f"""
    s_cmp_eq_u32 s32, 7
    s_cbranch_scc0 {L}
    s_and_b32 s54, s64, {int(os.environ.get("CPFMASK", "15"))}
    s_cmp_eq_u32 s54, 0
    s_cbranch_scc0 {L}
    s_getpc_b64 s[54:55]
    {L}_pc:
    s_sub_u32 s54, s54, {L}_pc-{name}
    s_subb_u32 s55, s55, 0
    s_mov_b32 s56, {name}_end-{name}
    v_lshlrev_b32 v228, 7, v1
    """)
    for i in range(nblk):
        A(f"""
        v_cmp_gt_u32 vcc, s56, v228
        s_and_b64 exec, vcc, vcc
        s_cbranch_execz {L}_x
        global_load_dword v229, v228, s[54:55]
        v_add_u32 v228, 8192, v228
        """)
    A(f"""
    {L}_x:
    s_mov_b64 exec, -1
    {L}:
    """)

def tlb_warm(A, name):
    mode = os.environ.get("TLBW", "1")
    if mode == "0": return
    L = A.new("tw")
    A(f"""
    s_cmp_eq_u32 s32, 6
    s_cbranch_scc0 {L}
    s_cmp_ge_u32 s64, {32 - int(os.environ.get("TLBN", "1"))}
    s_cbranch_scc0 {L}
    s_load_dwordx2 s[44:45], s[0:1], 24
    s_load_dwordx2 s[46:47], s[0:1], 48
    s_load_dwordx2 s[48:49], s[0:1], 56
    v_lshlrev_b32 v230, 16, v1
    s_waitcnt lgkmcnt(0)
    """)
    for (lo, hi, sz) in ((20, 21, X_BYTES), (22, 23, W_BYTES), (24, 25, X_BYTES), (26, 27, W_BYTES), (44, 45, WO_BYTES), (46, 47, WO_BYTES)):
        srd(A, 12, lo, hi, sz)
        A("buffer_load_dword v231, v230, s[12:15], 0 offen")
    srd(A, 12, 48, 49, OUT_BYTES)
    A("buffer_load_dword v231, v230, s[12:15], 0 offen")
    A("s_mov_b32 s50, 0x400000")
    A("buffer_load_dword v231, v230, s[12:15], s50 offen")
    for i in range(8):
        A(f"s_mov_b32 s50, {i*0x400000:#x}")
        A("buffer_load_dword v231, v230, s[8:11], s50 offen")
    A(f"{L}:")

def gen_fused(A, name):
    kernel_begin(A, name)
    stamp(A, 10, real=True)
    gen_common(A, name)
    stamp(A, 0)
    tlb_warm(A, name)
    code_prefetch(A, name)
    prefetch_share(A, 24, 25, 26, 27, 8, 32)
    A(f"""
    s_cmp_eq_u32 s31, 1
    s_cbranch_scc1 {name}_prep
    s_cmp_eq_u32 s36, 1
    s_cbranch_scc1 {name}_loader
    """)
    if os.environ.get("XP") == "nobar": A("s_endpgm")
    K32 = os.environ.get("P1K", "64") == "32"
    if not K32: p1_compute_setup(A)
    A(f"""
    s_cmp_ge_u32 s38, 10
    s_cbranch_scc1 {name}_compN
    """)
    (p1k_compute if K32 else p1_compute)(A, name, "T")
    A(f"{name}_compN:")
    (p1k_compute if K32 else p1_compute)(A, name, "N")
    A(f"{name}_cdone:")
    A("s_barrier")
    A(f"s_branch {name}_p2entry")
    A(f"{name}_prep:")
    p1_prep(A, name)
    A(f"{name}_loader:")
    (p1k_loader if os.environ.get("P1K", "64") == "32" else p1_loader)(A, name)
    A(f"{name}_p2entry:")
    stamp(A, 4)
    if STOP_AFTER == "P1":
        A("s_waitcnt vmcnt(0)")
        stamp(A, 9)
        stamp(A, 11, real=True)
        stamp_flush(A, 12, 0, 32, base=70)
        A("s_endpgm")
    else:
        import fused2
        fused2.gen_p2(A, name)
    A(f"{name}_done:")
    A("s_endpgm")
    A(f"{name}_end:")
    return kernel_desc(name, 256)
```

```python
import os
from asmlib import *
from layout2 import *

LDS = 163840
SIGC = int(os.environ.get('SIGC', '13'))
SPIN_MAX = 50000
R1 = 32768; ST1 = 32768; NS1 = 4
LOG2E = 0x3fb8aa3b
QSCALE = 0x3ea52b5c
LSTAMP = os.environ.get('LSTAMP', '0') == '1'
NTX = ' nt' if os.environ.get('NTX', '0') == '1' else ''
NTW = ' nt' if os.environ.get('NTW', '0') == '1' else ''
STOP_AFTER = os.environ.get("STOP_AFTER", "")

def poll_dbg(A, lane_off_v, tmp_v, mask_lo, target, sleep=4):
    L = A.new("poll")
    A(f"""
    s_mov_b32 s59, 0
    {L}:
    global_load_dword v{tmp_v}, v{lane_off_v}, s[4:5] sc1
    s_waitcnt vmcnt(0)
    v_cmp_le_u32 vcc, {target}, v{tmp_v}
    s_and_b32 s58, vcc_lo, {mask_lo:#x}
    s_cmp_eq_u32 s58, {mask_lo:#x}
    s_cbranch_scc1 {L}_ok
    s_sleep {sleep}
    s_add_u32 s59, s59, 1
    s_cmp_lt_u32 s59, {SPIN_MAX}
    s_cbranch_scc1 {L}
    {L}_ok:
    """)

def poll_ws(A, voff, soff, T, nlanes, width=4, target=1, sleep=8):
    L = A.new("pw")
    mask = (1 << nlanes) - 1
    ld = {4: "buffer_load_dwordx4 " + v(T,4), 1: f"buffer_load_dword v{T}"}[width]
    def check():
        A("s_waitcnt vmcnt(0)")
        if width == 4:
            A(f"v_and_b32 v{T}, v{T}, v{T+1}")
            A(f"v_and_b32 v{T+2}, v{T+2}, v{T+3}")
            A(f"v_and_b32 v{T}, v{T}, v{T+2}")
        A(f"v_cmp_eq_u32 vcc, {target}, v{T}")
        if nlanes >= 64:
            A(f"s_cmp_eq_u64 vcc, -1")
        else:
            A(f"s_and_b32 s58, vcc_hi, {(mask >> 32):#x}") if nlanes > 32 else None
            if nlanes > 32:
                A(f"s_cmp_eq_u32 s58, {(mask >> 32):#x}")
                A(f"s_cselect_b32 s58, vcc_lo, 0")
                A(f"s_cmp_eq_u32 s58, -1")
            else:
                A(f"s_and_b32 s58, vcc_lo, {mask:#x}")
                A(f"s_cmp_eq_u32 s58, {mask:#x}")
    A(f"{ld}, v{voff}, s[8:11], s{soff} offen sc1")
    check()
    A(f"s_cbranch_scc1 {L}_ok")
    A(f"s_mov_b32 s59, 0")
    A(f"{L}:")
    A(f"s_sleep {sleep}")
    A(f"{ld}, v{voff}, s[8:11], s{soff} offen sc1")
    check()
    A(f"""
    s_cbranch_scc1 {L}_ok
    s_add_u32 s59, s59, 1
    s_cmp_lt_u32 s59, {SPIN_MAX}
    s_cbranch_scc1 {L}
    {L}_ok:
    """)

def flag_issue(A, voff, soff, T, width=4):
    ld = {4: "buffer_load_dwordx4 " + v(T,4), 1: f"buffer_load_dword v{T}"}[width]
    A(f"{ld}, v{voff}, s[8:11], s{soff} offen sc1")
def flag_check(A, voff, soff, T, nlanes, width=4, target=1, sleep=8, masked=False):
    L = A.new("fc")
    mask = (1 << nlanes) - 1
    if width == 4:
        A(f"v_and_b32 v{T}, v{T}, v{T+1}")
        A(f"v_and_b32 v{T+2}, v{T+2}, v{T+3}")
        A(f"v_and_b32 v{T}, v{T}, v{T+2}")
    A(f"v_cmp_eq_u32 vcc, {target}, v{T}")
    if nlanes >= 64:
        A(f"s_cmp_eq_u64 vcc, -1")
    elif nlanes > 32:
        A(f"s_and_b32 s58, vcc_hi, {(mask >> 32):#x}")
        A(f"s_cmp_eq_u32 s58, {(mask >> 32):#x}")
        A(f"s_cselect_b32 s58, vcc_lo, 0")
        A(f"s_cmp_eq_u32 s58, -1")
    else:
        A(f"s_and_b32 s58, vcc_lo, {mask:#x}")
        A(f"s_cmp_eq_u32 s58, {mask:#x}")
    A(f"s_cbranch_scc1 {L}")
    if masked: A(f"s_mov_b32 exec_lo, {(1 << nlanes) - 1:#x}\ns_mov_b32 exec_hi, 0")
    poll_ws(A, voff, soff, T, nlanes, width, target, sleep)
    if masked: A("s_mov_b64 exec, -1")
    A(f"{L}:")

def set_flag_ws(A, soff, tv0, tv1):
    A(f"""
    v_mov_b32 v{tv0}, 0
    v_mov_b32 v{tv1}, 1
    s_mov_b64 exec, 1
    buffer_store_dword v{tv1}, v{tv0}, s[8:11], s{soff} offen sc1
    s_mov_b64 exec, -1
    """)

def check_prep(A, tv0, tv1):
    L = A.new("cp")
    A(f"""
    v_mov_b32 v{tv0}, {FPREP*4}
    global_load_dword v{tv1}, v{tv0}, s[4:5] sc1
    s_mov_b32 s59, 0
    {L}:
    s_waitcnt vmcnt(0)
    v_readfirstlane_b32 s58, v{tv1}
    s_cmp_ge_u32 s58, 16
    s_cbranch_scc1 {L}_ok
    s_sleep 16
    global_load_dword v{tv1}, v{tv0}, s[4:5] sc1
    s_add_u32 s59, s59, 1
    s_cmp_lt_u32 s59, {SPIN_MAX}
    s_cbranch_scc1 {L}
    {L}_ok:
    """)

NTF = 24
def tile_flags_voff(A, vd):
    A(f"""
    s_mul_i32 s56, s33, 20
    s_add_u32 s57, s56, 19
    s_lshr_b32 s56, s56, 7
    s_lshr_b32 s57, s57, 7
    v_lshrrev_b32 v{vd}, 3, v1
    v_min_u32 v{vd}, 2, v{vd}
    v_mul_u32_u24 v{vd}, 5, v{vd}
    v_bfe_u32 v{vd+1}, v1, 2, 1
    v_cmp_eq_u32 vcc, 1, v{vd+1}
    v_mov_b32 v{vd+1}, s56
    v_mov_b32 v{vd+2}, s57
    v_cndmask_b32 v{vd+1}, v{vd+1}, v{vd+2}, vcc
    v_add_u32 v{vd}, v{vd}, v{vd+1}
    v_lshlrev_b32 v{vd}, 7, v{vd}
    v_and_b32 v{vd+1}, 3, v1
    v_lshlrev_b32 v{vd+1}, 4, v{vd+1}
    v_add_u32 v{vd}, v{vd}, v{vd+1}
    """)

def signal_dbg(A, idx_s, tv0, tv1):
    A(f"""
    s_lshl_b32 s58, s{idx_s}, 2
    v_mov_b32 v{tv0}, s58
    v_mov_b32 v{tv1}, 1
    s_mov_b64 exec, 1
    global_atomic_add v{tv0}, v{tv1}, s[4:5] sc1
    s_mov_b64 exec, -1
    """)

def gen_common(A, name):
    A(f"""
    s_cmp_ge_u32 s2, 256
    s_cbranch_scc1 {name}_done
    s_load_dwordx4 s[20:23], s[0:1], 0
    s_load_dwordx4 s[24:27], s[0:1], 32
    s_load_dwordx4 s[4:7], s[0:1], 64
    s_load_dwordx2 s[28:29], s[0:1], 16
    v_and_b32 v1, 63, v0
    v_lshrrev_b32 v2, 6, v0
    v_and_b32 v3, 31, v1
    v_readfirstlane_b32 s32, v2
    v_lshrrev_b32 v131, 5, v1
    v_lshlrev_b32 v2, 4, v1
    v_lshlrev_b32 v132, 3, v3
    s_and_b32 s39, s2, 7
    s_lshr_b32 s64, s2, 3
    s_lshl_b32 s33, s39, 2
    s_lshr_b32 s45, s64, 3
    s_add_u32 s33, s33, s45
    s_and_b32 s34, s64, 7
    s_and_b32 s35, s32, 3
    s_lshr_b32 s36, s32, 2
    s_lshr_b32 s65, s39, 1
    s_lshl_b32 s37, s65, 2
    s_and_b32 s30, s39, 1
    s_cmp_eq_u32 s30, 0
    s_cbranch_scc0 {name}_map1
    s_lshr_b32 s46, s64, 3
    s_add_u32 s37, s37, s46
    s_and_b32 s38, s64, 7
    s_mov_b32 s31, 0
    s_branch {name}_map2
    {name}_map1:
    s_mul_i32 s46, s64, 37
    s_lshr_b32 s46, s46, 8
    s_add_u32 s37, s37, s46
    s_mul_i32 s46, s46, 7
    s_sub_u32 s38, s64, s46
    s_add_u32 s38, s38, 8
    s_cmp_ge_u32 s64, 28
    s_cselect_b32 s31, 1, 0
    {name}_map2:
    s_mov_b32 s40, 1.0
    s_mov_b32 s41, -1.0
    s_mov_b32 s42, 0x000fffff
    s_mov_b32 s43, 0x000fffff
    s_and_b32 s45, s33, 1
    s_mul_i32 s66, s33, 5
    s_add_u32 s66, s66, s45
    s_lshr_b32 s66, s66, 1
    s_add_u32 s67, s66, 2
    s_cmp_eq_u32 s45, 1
    s_cselect_b32 s46, 3, 0
    s_sub_u32 s67, s67, s46
    s_lshl_b32 s68, s45, 3
    s_mul_i32 s53, s33, {VH}
    s_add_u32 s53, s53, {BR + VOFF}
    s_waitcnt lgkmcnt(0)
    """)
    srd(A, 8, 6, 7, WS_BYTES)
    for r in (188, 189, 190, 191): A(f"v_mov_b32 v{r}, 0")

def p2_stage_dma(A, st, dyn=None):
    L = A.new("sd")
    if dyn is None:
        A(f"""
        s_lshr_b32 s56, s35, 1
        s_mul_i32 s57, s56, {PART}
        s_add_u32 s57, s57, {(st % 4) * SLOT}
        s_lshl_b32 s56, s56, 3
        s_add_u32 s56, s56, {st}
        """)
    else:
        A(f"""
        s_lshr_b32 s56, s35, 1
        s_mul_i32 s57, s56, {PART}
        s_add_u32 s57, s57, s{dyn[0]}
        s_lshl_b32 s56, s56, 3
        s_add_u32 s56, s56, s{dyn[1]}
        """)
    A(f"""
    s_bitcmp1_b32 s35, 0
    s_cbranch_scc1 {L}_v
    s_lshl_b32 s56, s56, 11
    s_add_u32 s58, s66, 80
    s_lshl_b32 s58, s58, 15
    s_add_u32 s58, s58, s56
    s_add_u32 s58, s58, {BR + QKOFF}
    s_add_u32 s59, s67, 80
    s_lshl_b32 s59, s59, 15
    s_add_u32 s59, s59, s56
    s_add_u32 s59, s59, {BR + QKOFF}
    """)
    for e, (src, off) in enumerate(((58, 0), (58, 1024), (58, QKG), (58, QKG + 1024), (59, 0), (59, 1024))):
        A(f"s_add_u32 m0, s57, {e*1024}")
        A(f"s_add_u32 s56, s{src}, {off}")
        A(f"buffer_load_dwordx4 v2, s[8:11], s56 offen sc1 lds")
    A(f"""
    s_branch {L}_e
    {L}_v:
    s_mul_i32 s56, s56, {VC}
    s_add_u32 s56, s56, s53
    """)
    for e in range(5):
        A(f"s_add_u32 m0, s57, {6144 + e*1024}")
        A(f"s_add_u32 s58, s56, {e*1024}")
        A(f"buffer_load_dwordx4 v2, s[8:11], s58 offen sc1 lds")
    A(f"{L}_e:")

QA_M, QB_M, QA_R, QB_R = 4, 8, 12, 14
def frag_addr(A, vm, vr):
    A(f"""
    v_lshlrev_b32 v{vm}, 15, v131
    v_lshlrev_b32 v{vr}, 4, v3
    v_add_u32 v{vm}, v{vm}, v{vr}
    v_add_u32 v{vr}, s68, v{vr}
    """)
QL = 22528
def p2_q_dma(A):
    A(f"""
    s_lshl_b32 s56, s34, 8
    s_lshl_b32 s57, s35, 6
    s_add_u32 s56, s56, s57
    s_lshl_b32 s56, s56, 4
    s_add_u32 s56, s56, {BR + QKOFF}
    s_lshl_b32 s57, s35, 10
    s_add_u32 s57, s57, {QL}
    s_lshl_b32 s58, s66, 15
    s_add_u32 s58, s58, s56
    s_mov_b32 m0, s57
    s_add_u32 s59, s58, {QKG}
    buffer_load_dwordx4 v2, s[8:11], s58 offen sc1 lds
    s_add_u32 m0, s57, 4096
    s_lshl_b32 s58, s67, 15
    buffer_load_dwordx4 v2, s[8:11], s59 offen sc1 lds
    s_add_u32 s58, s58, s56
    s_add_u32 s58, s58, s68
    v_lshrrev_b32 v12, 1, v1
    v_lshlrev_b32 v12, 4, v12
    v_and_b32 v13, 1, v1
    v_lshlrev_b32 v13, 2, v13
    v_add_u32 v12, v12, v13
    s_lshl_b32 s57, s35, 9
    s_add_u32 s57, s57, {QL + 8192}
    s_mov_b32 m0, s57
    s_add_u32 s59, s58, 512
    buffer_load_dword v12, s[8:11], s58 offen sc1 lds
    s_add_u32 m0, s57, 256
    s_nop 0
    buffer_load_dword v12, s[8:11], s59 offen sc1 lds
    """)
def p2_q_reads(A, tm=133, tr=134):
    A(f"""
    s_lshl_b32 s56, s35, 10
    s_add_u32 s56, s56, {QL}
    v_lshlrev_b32 v{tm}, 12, v131
    v_lshlrev_b32 v{tr}, 4, v3
    v_add3_u32 v{tm}, v{tm}, v{tr}, s56
    s_lshl_b32 s56, s35, 9
    s_add_u32 s56, s56, {QL + 8192}
    v_add_u32 v{tr}, s56, v132
    v_mov_b32 v{QA_R}, 0
    v_mov_b32 v{QA_R+1}, 0
    v_mov_b32 v{QA_R+2}, 0
    v_mov_b32 v{QA_R+3}, 0
    ds_read_b128 {v(QA_M,4)}, v{tm}
    ds_read_b128 {v(QB_M,4)}, v{tm} offset:512
    s_mov_b32 exec_hi, 0
    ds_read_b64 {v(QA_R,2)}, v{tr}
    ds_read_b64 {v(QB_R,2)}, v{tr} offset:256
    s_mov_b64 exec, -1
    s_waitcnt lgkmcnt(0)
    s_barrier
    """)

XV, WV = 192, 196
CXA, CWA, CXA2, CWA2, CEA = 4, 8, 10, 14, 128
EA = 200
ACC = 64
def p1_loader(A, name):
    A.c("P1 loader")
    A(f"""
    v_lshrrev_b32 v7, 3, v1
    s_lshl_b32 s44, s35, 5
    v_add_u32 v7, s44, v7
    v_mul_u32_u24 v7, 1280, v7
    v_lshrrev_b32 v8, 4, v1
    v_and_b32 v9, 7, v1
    """)
    for i in range(4):
        A(f"""
        v_add_u32 v10, {4*i}, v8
        v_and_b32 v10, 7, v10
        v_xor_b32 v10, v10, v9
        v_lshlrev_b32 v10, 4, v10
        v_add_u32 v10, v10, v7
        v_add_u32 v{XV+i}, {8*i*1280}, v10
        """)
    A(f"""
    s_lshl_b32 s44, s35, 4
    v_add_u32 v7, s44, v8
    v_mul_u32_u24 v7, 3840, v7
    v_lshrrev_b32 v9, 2, v1
    v_xor_b32 v9, v9, v8
    v_and_b32 v9, 3, v9
    v_lshlrev_b32 v9, 6, v9
    v_and_b32 v10, 3, v1
    v_lshlrev_b32 v10, 4, v10
    v_add3_u32 v{WV}, v7, v9, v10
    s_lshl_b32 s44, s35, 12
    s_add_u32 s45, s44, 16384
    s_and_b32 s52, s37, 3
    s_mul_i32 s52, s52, 3
    s_add_u32 s52, s52, s38
    s_lshl_b32 s54, s65, 1
    s_add_u32 s52, s52, s54
    s_cmp_ge_u32 s52, 20
    s_cselect_b32 s54, 20, 0
    s_sub_u32 s52, s52, s54
    s_cmp_ge_u32 s52, 10
    s_cselect_b32 s54, 10, 0
    s_sub_u32 s52, s52, s54
    """)
    if os.environ.get("ROT", "1") != "1": A("s_mov_b32 s52, 0")
    A(f"""
    s_mov_b32 s55, s52
    s_mul_i32 s46, s37, {128*1280}
    s_lshl_b32 s54, s55, 7
    s_add_u32 s46, s46, s54
    s_lshl_b32 s47, s38, 8
    s_mul_i32 s54, s55, {64*3840}
    s_add_u32 s47, s47, s54
    s_mov_b32 s56, s55
    s_mov_b32 s48, {R1}
    s_mov_b32 s49, 0
    """)
    srd(A, 12, 24, 25, X_BYTES)
    srd(A, 16, 26, 27, W_BYTES)
    def issue(tag):
        for i in range(4 if not (os.environ.get("XP") == "nodma" and tag == "lp") else 0):
            A(f"s_add_u32 s50, s48, s44")
            A(f"s_add_u32 m0, s50, {i*1024}")
            A(f"s_add_u32 s51, s47, {i*4*3840}")
            A(f"buffer_load_dwordx4 v{XV+i}, s[12:15], s46 offen{NTX} lds")
            A(f"s_add_u32 s50, s48, s45")
            A(f"s_add_u32 m0, s50, {i*1024}")
            A(f"s_nop 0")
            A(f"buffer_load_dwordx4 v{WV}, s[16:19], s51 offen{NTW} lds")
        A(f"""
        s_add_u32 s46, s46, 128
        s_add_u32 s47, s47, {64*3840}
        s_add_u32 s48, s48, {ST1}
        s_cmp_eq_u32 s48, {R1+NS1*ST1}
        s_cselect_b32 s48, {R1}, s48
        s_add_u32 s56, s56, 1
        s_cmp_eq_u32 s56, 10
        s_cselect_b32 s54, {10*128}, 0
        s_sub_u32 s46, s46, s54
        s_cmp_eq_u32 s56, 10
        s_cselect_b32 s54, {10*64*3840}, 0
        s_sub_u32 s47, s47, s54
        s_cmp_eq_u32 s56, 10
        s_cselect_b32 s56, 0, s56
        s_add_u32 s49, s49, 1
        s_cmp_eq_u32 s49, 10
        s_cbranch_scc0 {name}_ld_{tag}
        """)
        srd(A, 12, 20, 21, X_BYTES)
        srd(A, 16, 22, 23, W_BYTES)
        A(f"""
        {name}_ld_{tag}:
        """)
    SPD = int(os.environ.get("SPD", "0"))
    def spf_bases(xl, xh, wl, wh):
        A(f"""
        s_lshl_b32 s54, s64, 2
        s_add_u32 s54, s54, s35
        s_lshl_b32 s55, s65, 9
        s_lshl_b32 s57, s54, 2
        s_add_u32 s55, s55, s57
        s_mul_i32 s55, s55, 1280
        s_add_u32 s60, s{xl}, s55
        s_addc_u32 s61, s{xh}, 0
        s_lshr_b32 s55, s54, 1
        s_mul_i32 s55, s55, 3840
        s_and_b32 s57, s54, 1
        s_lshl_b32 s57, s57, 10
        s_add_u32 s55, s55, s57
        s_lshl_b32 s57, s30, 11
        s_add_u32 s55, s55, s57
        s_add_u32 s62, s{wl}, s55
        s_addc_u32 s63, s{wh}, 0
        """)
    def spf_one():
        for r in range(4): A(f"s_load_dword s94, s[60:61], {r*1280}")
        for r in range(8): A(f"s_load_dword s95, s[62:63], {r*128}")
        A(f"""
        s_add_u32 s60, s60, 128
        s_addc_u32 s61, s61, 0
        s_add_u32 s62, s62, {64*3840}
        s_addc_u32 s63, s63, 0
        """)
    issue("p0"); issue("p1"); issue("p2")
    if SPD:
        spf_bases(24, 25, 26, 27)
        A(f"""
        s_add_u32 s60, s60, {3*128}
        s_addc_u32 s61, s61, 0
        s_add_u32 s62, s62, {3*64*3840}
        s_addc_u32 s63, s63, 0
        s_mov_b32 s100, 3
        """)
        for _ in range(SPD - 3):
            spf_one(); A("s_add_u32 s100, s100, 1")
    stamp(A, 1)
    if STAMPS: A("s_mov_b32 s74, 0\ns_mov_b32 s75, 0\ns_mov_b32 s76, 0\ns_mov_b32 s77, 0\ns_mov_b32 s80, 0\ns_mov_b32 s81, 0")
    if os.environ.get("XP") == "nobar":
        A(f"""
        s_mov_b32 s52, 0
        {name}_xl:
        s_waitcnt vmcnt({os.environ.get("XVM", "16")})
        """)
        issue("xp")
        A(f"""
        s_add_u32 s52, s52, 1
        s_cmp_lt_u32 s52, 17
        s_cbranch_scc1 {name}_xl
        s_waitcnt vmcnt(0)
        """)
        stamp(A, 4); stamp(A, 9); stamp(A, 11, real=True)
        stamp_flush(A, 12, 0, 32, base=70)
        A("s_endpgm")
    A(f"""
    s_mov_b32 s52, 0
    {name}_lloop:
    """)
    if STAMPS and LSTAMP:
        A("""
        s_memtime s[86:87]
        s_waitcnt lgkmcnt(0)
        s_waitcnt vmcnt(16)
        s_memtime s[88:89]
        s_waitcnt lgkmcnt(0)
        s_sub_u32 s90, s88, s86
        s_add_u32 s74, s74, s90
        s_barrier
        s_memtime s[86:87]
        s_waitcnt lgkmcnt(0)
        s_sub_u32 s90, s86, s88
        s_add_u32 s76, s76, s90
        """)
    else:
        A("s_waitcnt vmcnt(16)")
        A("s_barrier")
    issue("lp")
    if SPD:
        A(f"""
        s_cmp_ge_u32 s100, 20
        s_cbranch_scc1 {name}_nsp
        s_cmp_eq_u32 s100, 10
        s_cbranch_scc0 {name}_sp1
        """)
        spf_bases(20, 21, 22, 23)
        A(f"{name}_sp1:")
        spf_one()
        A(f"""
        s_add_u32 s100, s100, 1
        {name}_nsp:
        """)
    if STAMPS and LSTAMP:
        A("""
        s_memtime s[88:89]
        s_waitcnt lgkmcnt(0)
        s_sub_u32 s90, s88, s86
        s_add_u32 s80, s80, s90
        """)
    A(f"""
    s_add_u32 s52, s52, 1
    s_cmp_lt_u32 s52, 17
    s_cbranch_scc1 {name}_lloop
    s_waitcnt vmcnt(16)
    s_barrier
    s_waitcnt vmcnt(8)
    s_barrier
    s_waitcnt vmcnt(0)
    s_barrier
    s_mov_b32 s54, {FBW}
    """)
    tile_flags_voff(A, 7)
    A("s_mov_b32 exec_lo, 0xffffff\ns_mov_b32 exec_hi, 0")
    flag_issue(A, 7, 54, 16)
    A("s_mov_b64 exec, -1")
    import fused2
    fused2.kv_dma_setup(A)
    A(f"""
    s_barrier
    s_waitcnt vmcnt(0)
    s_mov_b32 s54, {FBW}
    """)
    stamp(A, 7)
    flag_check(A, 7, 54, 16, NTF, masked=True)
    stamp(A, 8)
    p2_stage_dma(A, 0)
    p2_q_dma(A)
    A(f"""
    s_waitcnt vmcnt(0)
    s_barrier
    """)

def stage0_all(A):
    A("s_mov_b32 s63, s35")
    for p in range(4):
        A(f"s_mov_b32 s35, {p}")
        p2_stage_dma(A, 0)
        p2_q_dma(A)
    A("s_mov_b32 s35, s63")

PF_MODE = os.environ.get('PF_MODE', 'off')
def prefetch_share(A, xl, xh, wl, wh, nw, widx):
    if PF_MODE == 'off': return
    srd(A, 12, xl, xh, X_BYTES)
    srd(A, 16, wl, wh, W_BYTES)
    A(f"""
    s_mul_i32 s50, s2, 10240
    s_mul_i32 s51, s2, 9600
    s_lshl_b32 s52, s{widx}, 10
    s_add_u32 s50, s50, s52
    s_add_u32 s51, s51, s52
    """)
    for r in range(-(-10 // nw)):
        L = A.new("pf")
        lim = 10 - r * nw
        if lim < nw:
            A(f"s_cmp_ge_u32 s{widx}, {lim}")
            A(f"s_cbranch_scc1 {L}")
        A(f"s_add_u32 s52, s50, {r*nw*1024}")
        A(f"buffer_load_dwordx4 v[216:219], v2, s[12:15], s52 offen")
        A(f"s_add_u32 s52, s51, {r*nw*1024}")
        A(f"buffer_load_dwordx4 v[220:223], v2, s[16:19], s52 offen")
        if lim < nw: A(f"{L}:")

L2PF = int(os.environ.get('L2PF', '5'))
def l2pf_setup(A):
    L = A.new("l2")
    A(f"""
    s_mov_b32 s69, 0
    s_cmp_lg_u32 s32, 1
    s_cbranch_scc1 {L}_e
    s_cmp_ge_u32 s64, 24
    s_cbranch_scc1 {L}_e
    s_mov_b32 s69, 1
    s_cmp_ge_u32 s64, 8
    s_cbranch_scc1 {L}_w
    s_lshl_b32 s44, s65, 9
    s_lshl_b32 s45, s64, 6
    s_add_u32 s44, s44, s45
    v_add_u32 v5, s44, v1
    v_mul_u32_u24 v5, 1280, v5
    s_mov_b32 s55, 128
    """)
    srd(A, 96, 24, 25, X_BYTES)
    A(f"""
    s_branch {L}_go
    {L}_w:
    s_sub_u32 s44, s64, 8
    s_lshl_b32 s44, s44, 2
    v_lshrrev_b32 v5, 4, v1
    v_add_u32 v5, s44, v5
    v_mul_u32_u24 v5, 3840, v5
    v_and_b32 v6, 15, v1
    v_lshlrev_b32 v6, 7, v6
    s_lshl_b32 s44, s30, 11
    v_add3_u32 v5, v5, v6, s44
    s_mov_b32 s55, {64*3840}
    """)
    srd(A, 96, 26, 27, W_BYTES)
    A(f"""
    {L}_go:
    s_mul_i32 s54, s55, 4
    s_mov_b32 s57, 4
    {L}_e:
    """)
def l2pf_one(A):
    if not L2PF: return
    L = A.new("l2o")
    A(f"""
    s_cmp_eq_u32 s69, 1
    s_cbranch_scc0 {L}_e
    s_cmp_ge_u32 s57, 20
    s_cbranch_scc1 {L}_e
    s_cmp_eq_u32 s57, 10
    s_cbranch_scc0 {L}_n
    s_mov_b32 s54, 0
    s_cmp_ge_u32 s64, 8
    s_cbranch_scc1 {L}_w
    """)
    srd(A, 96, 20, 21, X_BYTES)
    A(f"s_branch {L}_n")
    A(f"{L}_w:")
    srd(A, 96, 22, 23, W_BYTES)
    A(f"""
    {L}_n:
    buffer_load_dword v224, v5, s[96:99], s54 offen
    s_add_u32 s54, s54, s55
    s_add_u32 s57, s57, 1
    {L}_e:
    """)

def p1_compute(A, name, orient):
    tag = f"{name}_c{orient}"
    FB_ = [16, 32, 48, 144]
    ACCS = [64, 160]
    T = 224
    def reads(c, kk):
        q = c % 4
        b = FB_[kk]
        xa = (CXA if q < 2 else CXA2) + kk; wa = CWA if q < 2 else CWA2
        so = (q & 1) * ST1
        L = []
        L.append(f"ds_read_b128 {v(b,4)}, v{xa} offset:{so}")
        for jj in range(2): L.append(f"ds_read_b64_tr_b16 {v(b+8+2*jj,2)}, v{wa} offset:{so+kk*4096+jj*1024}")
        L.append(f"ds_read_b128 {v(b+4,4)}, v{xa} offset:{so+4096}")
        for jj in range(2): L.append(f"ds_read_b64_tr_b16 {v(b+12+2*jj,2)}, v{wa+1} offset:{so+kk*4096+jj*1024}")
        return L
    def mf(c, kk):
        b = FB_[kk]; acc = ACCS[c // 10]
        first = (c % 10 == 0 and kk == 0)
        L = []
        for nt in range(2):
            for st in range(2):
                X = v(b+4*st,4); W = v(b+8+4*nt,4)
                if orient == "T":
                    D = v(acc+16*(2*nt+st),16); L.append(f"v_mfma_f32_32x32x16_bf16 {D}, {W}, {X}, {'0' if first else D}")
                else:
                    D = v(acc+16*(2*st+nt),16); L.append(f"v_mfma_f32_32x32x16_bf16 {D}, {X}, {W}, {'0' if first else D}")
        return L
    def epilogue(br_is_B):
        acc = ACCS[0 if br_is_B else 1]
        L = []
        if orient == "T":
            n = 0
            for nt in range(2):
                for st in range(2):
                    r0 = acc+16*(2*nt+st)
                    for ip in range(2):
                        t_ = T + 4*(n % 4); n += 1
                        if br_is_B:
                            for e in range(8): L.append(f"v_mul_f32 v{r0+8*ip+e}, s62, v{r0+8*ip+e}")
                        for e in range(4): L.append(f"v_cvt_pk_bf16_f32 v{t_+e}, v{r0+8*ip+2*e}, v{r0+8*ip+2*e+1}")
                        L.append(f"s_add_u32 s55, s61, {(4*nt+2*ip)*QKG + st*512}")
                        L.append(f"s_nop 0")
                        L.append(f"v_permlane32_swap_b32 v{t_}, v{t_+2}")
                        L.append(f"v_permlane32_swap_b32 v{t_+1}, v{t_+3}")
                        L.append(f"buffer_store_dwordx4 {v(t_,4)}, v{CEA}, s[8:11], s55 offen sc1")
        else:
            for nt in range(2):
                for st in range(2):
                    for m in range(2):
                        r0 = acc+16*(2*st+nt)+8*m
                        t_ = T + 4*((2*st+m) % 4)
                        for e in range(4): L.append(f"v_cvt_pk_bf16_f32 v{t_+e}, v{r0+2*e}, v{r0+2*e+1}")
                        L.append(f"buffer_store_dwordx4 {v(t_,4)}, v{CEA+nt}, s[8:11], s61 offen offset:{(2*st+m)*640} sc1")
        return L
    if orient == "T":
        A(f"""
        s_lshl_b32 s44, s38, 4
        s_and_b32 s45, s35, 1
        s_lshl_b32 s45, s45, 3
        s_add_u32 s44, s44, s45
        v_add_u32 v{T}, s44, v131
        v_lshlrev_b32 v{T}, 15, v{T}
        s_lshl_b32 s44, s37, 7
        s_lshr_b32 s45, s35, 1
        s_lshl_b32 s45, s45, 6
        s_add_u32 s44, s44, s45
        v_add_u32 v{T+1}, s44, v3
        v_lshlrev_b32 v{T+1}, 4, v{T+1}
        v_add_u32 v{CEA}, v{T}, v{T+1}
        s_mov_b32 s60, {QKOFF}
        s_mov_b32 s62, 1.0
        s_cmp_lt_u32 s38, 5
        s_cselect_b32 s62, {QSCALE:#x}, s62
        """)
    else:
        A(f"""
        s_sub_u32 s44, s38, 10
        s_lshl_b32 s44, s44, 7
        s_and_b32 s45, s35, 1
        s_lshl_b32 s45, s45, 6
        s_add_u32 s44, s44, s45
        s_mul_i32 s60, s37, {VC}
        s_add_u32 s60, s60, {VOFF}
        s_lshr_b32 s45, s35, 1
        s_mul_i32 s45, s45, {4*640}
        s_add_u32 s60, s60, s45
        v_mul_u32_u24 v{T}, 320, v131
        s_mov_b32 s45, {VH}
        """)
        for nt in range(2):
            A(f"""
            v_add_u32 v{T+1}, s44, v3
            v_add_u32 v{T+1}, {32*nt}, v{T+1}
            v_mul_u32_u24 v{T+2}, 3277, v{T+1}
            v_lshrrev_b32 v{T+2}, 16, v{T+2}
            v_mul_u32_u24 v{T+3}, 20, v{T+2}
            v_sub_u32 v{T+3}, v{T+1}, v{T+3}
            v_lshlrev_b32 v{T+3}, 4, v{T+3}
            v_mul_lo_u32 v{T+2}, v{T+2}, s45
            v_add3_u32 v{CEA+nt}, v{T+2}, v{T+3}, v{T}
            """)
    for kk in range(4): A(f"v_add_u32 v{CXA2+kk}, {2*ST1}, v{CXA+kk}")
    for nt in range(2): A(f"v_add_u32 v{CWA2+nt}, {2*ST1}, v{CWA+nt}")
    A(f"s_add_u32 s61, s60, {BR}")
    stamp(A, 1)
    A("s_barrier")
    stamp(A, 2)
    for l in reads(0, 0) + reads(0, 1): A(l)
    EPI = epilogue(True)
    def emit(M, R, extra_per=0):
        R = list(R)
        for i_, m in enumerate(M):
            A(m)
            for _ in range(3):
                if R: A(R.pop(0))
            for _ in range(extra_per):
                if EPI: A(EPI.pop(0))
    for c in range(20):
        ex = 0
        if c in (10, 11): ex = -(-len(epilogue(True)) // 30)
        A("s_waitcnt lgkmcnt(6)")
        emit(mf(c, 0), reads(c, 2), ex if c != 10 else 0)
        A("s_waitcnt lgkmcnt(6)")
        emit(mf(c, 1), reads(c, 3), ex)
        if c == SIGC: A("s_waitcnt vmcnt(0)")
        A("s_waitcnt lgkmcnt(0)")
        A("s_barrier")
        emit(mf(c, 2), reads(c + 1, 0), ex)
        A("s_waitcnt lgkmcnt(6)")
        emit(mf(c, 3), reads(c + 1, 1), ex)
        if c == 11:
            while EPI: A(EPI.pop(0))
        if c == 15:
            import fused2
            fused2.kv_dma_setup(A)
        if c == 4:
            L = A.new("fp")
            A(f"""
            s_cmp_eq_u32 s32, 0
            s_cbranch_scc0 {L}
            v_mov_b32 v240, {FPREP*4}
            global_load_dword v241, v240, s[4:5] sc1
            {L}:
            """)
        if c == 9: stamp(A, 5)
        if c == SIGC:
            A(f"s_cmp_eq_u32 s32, 0")
            A(f"s_cbranch_scc1 {tag}_hk_sig")
            A(f"{tag}_rt_sig:")
    stamp(A, 3)
    A(f"s_mov_b32 s61, s60")
    for l in epilogue(False): A(l)
    A(f"s_branch {name}_cdone")
    A(f"{tag}_hk_sig:")
    stamp(A, 7)
    L = A.new("cp")
    A(f"""
    v_readfirstlane_b32 s58, v241
    s_cmp_ge_u32 s58, 16
    s_cbranch_scc1 {L}
    """)
    check_prep(A, 240, 241)
    A(f"""
    {L}:
    s_lshl_b32 s54, s38, 7
    s_lshl_b32 s55, s37, 2
    s_add_u32 s54, s54, s55
    s_add_u32 s54, s54, {FBW}
    """)
    set_flag_ws(A, 54, 240, 241)
    A(f"s_branch {tag}_rt_sig")

def p1_compute_setup(A):
    A(f"""
    s_lshr_b32 s44, s35, 1
    s_lshl_b32 s44, s44, 6
    v_add_u32 v20, s44, v3
    v_lshlrev_b32 v20, 7, v20
    v_add_u32 v20, {R1}, v20
    v_lshrrev_b32 v16, 1, v3
    v_and_b32 v16, 7, v16
    v_xor_b32 v16, v16, v131
    """)
    for kk in range(4):
        A(f"""
        v_xor_b32 v17, {2*kk}, v16
        v_lshlrev_b32 v17, 4, v17
        v_add_u32 v{CXA+kk}, v20, v17
        """)
    A(f"""
    v_lshrrev_b32 v16, 2, v1
    v_and_b32 v16, 3, v16
    v_lshlrev_b32 v17, 11, v131
    v_lshlrev_b32 v18, 8, v16
    v_add_u32 v17, v17, v18
    v_lshrrev_b32 v18, 4, v1
    v_and_b32 v18, 1, v18
    v_lshlrev_b32 v18, 5, v18
    v_add_u32 v17, v17, v18
    v_and_b32 v18, 3, v1
    v_lshlrev_b32 v18, 3, v18
    v_add_u32 v17, v17, v18
    v_add_u32 v17, {R1+16384}, v17
    s_and_b32 s44, s35, 1
    s_lshl_b32 s44, s44, 1
    """)
    for nt in range(2):
        A(f"""
        s_add_u32 s45, s44, {nt}
        v_xor_b32 v18, s45, v16
        v_lshlrev_b32 v18, 6, v18
        v_add_u32 v{CWA+nt}, v17, v18
        """)


STK = 16384
NSK = int(os.environ.get("NSK", "8"))
DEP = int(os.environ.get("DEP", "7"))
def p1k_loader(A, name):
    XV_, WV_ = 192, 194
    A(f"""
    v_lshrrev_b32 v7, 2, v1
    s_lshl_b32 s44, s35, 5
    v_add_u32 v7, s44, v7
    v_mul_u32_u24 v7, 1280, v7
    v_lshrrev_b32 v8, 4, v1
    v_and_b32 v9, 3, v1
    v_xor_b32 v10, v9, v8
    v_and_b32 v10, 3, v10
    v_lshlrev_b32 v10, 4, v10
    v_add_u32 v{XV_}, v7, v10
    v_add_u32 v{XV_+1}, {16*1280}, v{XV_}
    s_lshl_b32 s44, s35, 3
    v_add_u32 v7, s44, v8
    v_mul_u32_u24 v7, 3840, v7
    v_lshrrev_b32 v10, 2, v1
    v_xor_b32 v10, v10, v8
    v_and_b32 v10, 3, v10
    v_lshlrev_b32 v10, 6, v10
    v_lshlrev_b32 v9, 4, v9
    v_add3_u32 v{WV_}, v7, v10, v9
    s_lshl_b32 s44, s35, 11
    s_add_u32 s44, s44, {R1}
    s_add_u32 s45, s44, 8192
    s_and_b32 s52, s37, 3
    s_mul_i32 s52, s52, 6
    s_lshl_b32 s54, s38, 1
    s_add_u32 s52, s52, s54
    s_lshl_b32 s54, s65, 2
    s_add_u32 s52, s52, s54
    s_cmp_ge_u32 s52, 40
    s_cselect_b32 s54, 40, 0
    s_sub_u32 s52, s52, s54
    s_cmp_ge_u32 s52, 20
    s_cselect_b32 s54, 20, 0
    s_sub_u32 s52, s52, s54
    s_mov_b32 s56, s52
    s_mul_i32 s46, s37, {128*1280}
    s_lshl_b32 s54, s52, 6
    s_add_u32 s46, s46, s54
    s_lshl_b32 s47, s38, 8
    s_mul_i32 s54, s52, {32*3840}
    s_add_u32 s47, s47, s54
    s_mov_b32 s48, 0
    s_mov_b32 s49, 0
    """)
    srd(A, 12, 24, 25, X_BYTES)
    srd(A, 16, 26, 27, W_BYTES)
    def issue(tag):
        for i in range(2):
            A(f"s_add_u32 s50, s48, s44")
            A(f"s_add_u32 m0, s50, {i*1024}")
            A(f"s_add_u32 s51, s47, {i*4*3840}")
            A(f"buffer_load_dwordx4 v{XV_+i}, s[12:15], s46 offen lds")
            A(f"s_add_u32 s50, s48, s45")
            A(f"s_add_u32 m0, s50, {i*1024}")
            A(f"s_nop 0")
            A(f"buffer_load_dwordx4 v{WV_}, s[16:19], s51 offen lds")
        A(f"""
        s_add_u32 s46, s46, 64
        s_add_u32 s47, s47, {32*3840}
        s_add_u32 s48, s48, {STK}
        s_and_b32 s48, s48, {NSK*STK - 1:#x}
        s_add_u32 s56, s56, 1
        s_cmp_eq_u32 s56, 20
        s_cselect_b32 s54, {20*64}, 0
        s_sub_u32 s46, s46, s54
        s_cmp_eq_u32 s56, 20
        s_cselect_b32 s54, {20*32*3840}, 0
        s_sub_u32 s47, s47, s54
        s_cmp_eq_u32 s56, 20
        s_cselect_b32 s56, 0, s56
        s_add_u32 s49, s49, 1
        s_cmp_eq_u32 s49, 20
        s_cbranch_scc0 {name}_lk_{tag}
        """)
        srd(A, 12, 20, 21, X_BYTES)
        srd(A, 16, 22, 23, W_BYTES)
        A(f"{name}_lk_{tag}:")
    for k in range(DEP): issue(f"p{k}")
    stamp(A, 1)
    A(f"""
    s_waitcnt vmcnt({4*(DEP-1)})
    s_barrier
    s_mov_b32 s52, 0
    {name}_lkloop:
    s_waitcnt vmcnt({4*(DEP-2)})
    s_barrier
    """)
    issue("lp")
    A(f"""
    s_add_u32 s52, s52, 1
    s_cmp_lt_u32 s52, {40 - DEP}
    s_cbranch_scc1 {name}_lkloop
    """)
    EARLY = int(os.environ.get("EARLY", "37"))
    import fused2
    A(f"s_mov_b32 s54, {FBW}")
    tile_flags_voff(A, 7)
    for b in range(41 - DEP, 41):
        left = max(0, 39 - b)
        if b < EARLY: A(f"s_waitcnt vmcnt({4*left})")
        elif b == EARLY: A("s_waitcnt vmcnt(0)")
        if b == EARLY - 1:
            pass
        A("s_barrier")
        if b == EARLY - 2:
            A("s_mov_b32 exec_lo, 0xffffff\ns_mov_b32 exec_hi, 0")
            flag_issue(A, 7, 54, 16)
            A("s_mov_b64 exec, -1")
        if b == EARLY:
            L = A.new("ea")
            A("s_mov_b32 s63, 0")
            A(f"v_and_b32 v16, v16, v17\nv_and_b32 v18, v18, v19\nv_and_b32 v16, v16, v18\nv_cmp_eq_u32 vcc, 1, v16\ns_and_b32 s58, vcc_lo, 0xffffff\ns_cmp_eq_u32 s58, 0xffffff")
            A(f"s_cbranch_scc0 {L}")
            A("s_mov_b32 s63, 1")
            p2_stage_dma(A, 0)
            p2_q_dma(A)
            A(f"{L}:")
            fused2.kv_dma_setup(A)
    L = A.new("eb")
    A(f"""
    s_cmp_eq_u32 s63, 1
    s_cbranch_scc1 {L}
    s_mov_b32 s54, {FBW}
    s_mov_b32 exec_lo, 0xffffff
    s_mov_b32 exec_hi, 0
    """)
    stamp(A, 7)
    poll_ws(A, 7, 54, 16, NTF)
    stamp(A, 8)
    A("s_mov_b64 exec, -1")
    p2_stage_dma(A, 0)
    p2_q_dma(A)
    A(f"""
    {L}:
    s_waitcnt vmcnt(0)
    s_barrier
    """)

def p1k_compute(A, name, orient):
    tag = f"{name}_k{orient}"
    XA_, WA_, EA_ = 4, 8, 128
    FB_ = [16, 32]
    T = 144
    def reads(q, kk, b):
        hi = q // 4; so = (q % 4) * STK; b = FB_[b]
        xa = XA_ + 2*hi + kk; wa = WA_ + 2*hi
        L = [f"ds_read_b128 {v(b,4)}, v{xa} offset:{so}"]
        for jj in range(2): L.append(f"ds_read_b64_tr_b16 {v(b+8+2*jj,2)}, v{wa} offset:{so+kk*4096+jj*1024}")
        L.append(f"ds_read_b128 {v(b+4,4)}, v{xa} offset:{so+2048}")
        for jj in range(2): L.append(f"ds_read_b64_tr_b16 {v(b+12+2*jj,2)}, v{wa+1} offset:{so+kk*4096+jj*1024}")
        return L
    def mf(b):
        b = FB_[b]; L = []
        for nt in range(2):
            for s_ in range(2):
                X = v(b+4*s_,4); W = v(b+8+4*nt,4)
                if orient == "T":
                    D = v(ACC+16*(2*nt+s_),16); L.append(f"v_mfma_f32_32x32x16_bf16 {D}, {W}, {X}, {D}")
                else:
                    D = v(ACC+16*(2*s_+nt),16); L.append(f"v_mfma_f32_32x32x16_bf16 {D}, {X}, {W}, {D}")
        return L
    def step(M, R):
        R = list(R)
        for m in M:
            A(m)
            for _ in range(3):
                if R: A(R.pop(0))
    A(f"""
    s_lshr_b32 s44, s35, 1
    s_lshl_b32 s44, s44, 6
    v_add_u32 v18, s44, v3
    v_lshlrev_b32 v18, 6, v18
    v_add_u32 v18, {R1}, v18
    v_lshrrev_b32 v19, 2, v3
    v_and_b32 v19, 3, v19
    v_xor_b32 v19, v19, v131
    v_lshlrev_b32 v20, 4, v19
    v_add_u32 v{XA_}, v18, v20
    v_xor_b32 v19, 2, v19
    v_lshlrev_b32 v20, 4, v19
    v_add_u32 v{XA_+1}, v18, v20
    v_add_u32 v{XA_+2}, 65536, v{XA_}
    v_add_u32 v{XA_+3}, 65536, v{XA_+1}
    v_lshrrev_b32 v16, 2, v1
    v_and_b32 v16, 3, v16
    v_lshlrev_b32 v18, 11, v131
    v_lshlrev_b32 v19, 8, v16
    v_add_u32 v18, v18, v19
    v_lshrrev_b32 v19, 4, v1
    v_and_b32 v19, 1, v19
    v_lshlrev_b32 v19, 5, v19
    v_add_u32 v18, v18, v19
    v_and_b32 v19, 3, v1
    v_lshlrev_b32 v19, 3, v19
    v_add_u32 v18, v18, v19
    v_add_u32 v18, {R1 + 8192}, v18
    s_and_b32 s44, s35, 1
    s_lshl_b32 s44, s44, 1
    """)
    for nt in range(2):
        A(f"""
        s_add_u32 s45, s44, {nt}
        v_xor_b32 v19, s45, v16
        v_lshlrev_b32 v19, 6, v19
        v_add_u32 v{WA_+nt}, v18, v19
        v_add_u32 v{WA_+2+nt}, 65536, v{WA_+nt}
        """)
    if orient == "T":
        A(f"""
        s_lshl_b32 s44, s38, 4
        s_and_b32 s45, s35, 1
        s_lshl_b32 s45, s45, 3
        s_add_u32 s44, s44, s45
        v_add_u32 v{T}, s44, v131
        v_lshlrev_b32 v{T}, 15, v{T}
        s_lshl_b32 s44, s37, 7
        s_lshr_b32 s45, s35, 1
        s_lshl_b32 s45, s45, 6
        s_add_u32 s44, s44, s45
        v_add_u32 v{T+1}, s44, v3
        v_lshlrev_b32 v{T+1}, 4, v{T+1}
        v_add_u32 v{EA_}, v{T}, v{T+1}
        s_mov_b32 s61, {BR + QKOFF}
        s_mov_b32 s62, 1.0
        s_cmp_lt_u32 s38, 5
        s_cselect_b32 s62, {QSCALE:#x}, s62
        """)
    else:
        A(f"""
        s_sub_u32 s44, s38, 10
        s_lshl_b32 s44, s44, 7
        s_and_b32 s45, s35, 1
        s_lshl_b32 s45, s45, 6
        s_add_u32 s44, s44, s45
        s_mul_i32 s61, s37, {VC}
        s_add_u32 s61, s61, {BR + VOFF}
        s_lshr_b32 s45, s35, 1
        s_mul_i32 s45, s45, {4*640}
        s_add_u32 s61, s61, s45
        v_mul_u32_u24 v{T}, 320, v131
        s_mov_b32 s45, {VH}
        """)
        for nt in range(2):
            A(f"""
            v_add_u32 v{T+1}, s44, v3
            v_add_u32 v{T+1}, {32*nt}, v{T+1}
            v_mul_u32_u24 v{T+2}, 3277, v{T+1}
            v_lshrrev_b32 v{T+2}, 16, v{T+2}
            v_mul_u32_u24 v{T+3}, 20, v{T+2}
            v_sub_u32 v{T+3}, v{T+1}, v{T+3}
            v_lshlrev_b32 v{T+3}, 4, v{T+3}
            v_mul_lo_u32 v{T+2}, v{T+2}, s45
            v_add3_u32 v{EA_+nt}, v{T+2}, v{T+3}, v{T}
            """)
    for i in range(64): A(f"v_mov_b32 v{ACC+i}, 0")
    stamp(A, 1)
    A("s_mov_b32 s63, 0")
    A("s_barrier")
    stamp(A, 2)
    for l in reads(0, 0, 0): A(l)
    A("s_mov_b32 s46, 0")
    A(f"{tag}_loop:")
    SG = int(os.environ.get("SIGK", "24")); SGI, SGQ = SG // 8, SG % 8
    for q in range(8):
        qq = q % NSK
        A("s_waitcnt lgkmcnt(0)")
        step(mf(0), reads(qq, 1, 1))
        if q == SGQ:
            A(f"s_cmp_eq_u32 s46, {SGI}")
            A(f"s_cbranch_scc1 {tag}_vm")
            A(f"{tag}_vmr:")
        A("s_waitcnt lgkmcnt(0)")
        A("s_barrier")
        M = mf(1)
        step(M, reads((q + 1) % NSK, 0, 0))
        if q == SGQ:
            A(f"s_cmp_eq_u32 s46, {SGI}")
            A(f"s_cbranch_scc1 {tag}_sig")
            A(f"{tag}_sigr:")
        if q == 0:
            A(f"s_cmp_eq_u32 s46, 1")
            A(f"s_cbranch_scc1 {tag}_fp")
            A(f"{tag}_fpr:")
        if q == 3:
            A(f"s_cmp_eq_u32 s46, 2")
            A(f"s_cbranch_scc1 {tag}_epi")
            A(f"{tag}_epir:")
        if q == 7:
            A("s_add_u32 s46, s46, 1")
            A("s_cmp_lt_u32 s46, 5")
            A(f"s_cbranch_scc1 {tag}_loop")
    stamp(A, 3)
    A(f"{tag}_epi:")
    A("s_waitcnt lgkmcnt(0)")
    n = 0
    if orient == "T":
        for nt in range(2):
            for s_ in range(2):
                r0 = ACC+16*(2*nt+s_)
                for ip in range(2):
                    t_ = T + 4*(n % 4); n += 1
                    for e in range(8): A(f"v_mul_f32 v{r0+8*ip+e}, s62, v{r0+8*ip+e}")
                    for e in range(4): A(f"v_cvt_pk_bf16_f32 v{t_+e}, v{r0+8*ip+2*e}, v{r0+8*ip+2*e+1}")
                    A(f"s_add_u32 s55, s61, {(4*nt+2*ip)*QKG + s_*512}")
                    A(f"v_permlane32_swap_b32 v{t_}, v{t_+2}")
                    A(f"v_permlane32_swap_b32 v{t_+1}, v{t_+3}")
                    A(f"buffer_store_dwordx4 {v(t_,4)}, v{EA_}, s[8:11], s55 offen sc1")
    else:
        for nt in range(2):
            for s_ in range(2):
                for m in range(2):
                    r0 = ACC+16*(2*s_+nt)+8*m
                    t_ = T + 4*((2*s_+m) % 4)
                    for e in range(4): A(f"v_cvt_pk_bf16_f32 v{t_+e}, v{r0+2*e}, v{r0+2*e+1}")
                    A(f"buffer_store_dwordx4 {v(t_,4)}, v{EA_+nt}, s[8:11], s61 offen offset:{(2*s_+m)*640} sc1")
    A(f"""
    s_cmp_eq_u32 s63, 1
    s_cbranch_scc1 {tag}_fin
    s_mov_b32 s63, 1
    s_sub_u32 s61, s61, {BR:#x}
    s_mov_b32 s62, 1.0
    """)
    stamp(A, 5)
    for i in range(64): A(f"v_mov_b32 v{ACC+i}, 0")
    A(f"s_branch {tag}_epir")
    A(f"{tag}_fin:")
    import fused2
    fused2.kv_dma_setup(A)
    A(f"s_branch {name}_cdone")
    A(f"{tag}_vm:")
    A("s_waitcnt vmcnt(0)")
    A(f"s_branch {tag}_vmr")
    A(f"{tag}_fp:")
    A(f"""
    s_cmp_eq_u32 s32, 0
    s_cbranch_scc0 {tag}_fpr
    v_mov_b32 v160, {FPREP*4}
    global_load_dword v161, v160, s[4:5] sc1
    s_branch {tag}_fpr
    {tag}_sig:
    s_cmp_eq_u32 s32, 0
    s_cbranch_scc0 {tag}_sigr
    """)
    stamp(A, 7)
    L = A.new("cp")
    A(f"""
    v_readfirstlane_b32 s58, v161
    s_cmp_ge_u32 s58, 16
    s_cbranch_scc1 {L}
    """)
    check_prep(A, 160, 161)
    A(f"""
    {L}:
    s_lshl_b32 s54, s38, 7
    s_lshl_b32 s55, s37, 2
    s_add_u32 s54, s54, s55
    s_add_u32 s54, s54, {FBW}
    """)
    set_flag_ws(A, 54, 160, 161)
    A(f"s_branch {tag}_sigr")

def p1_prep(A, name):
    A.c("prep WGs")
    A(f"""
    s_lshl_b32 s69, s65, 2
    s_add_u32 s69, s69, s64
    s_sub_u32 s69, s69, 28
    s_cmp_ge_u32 s32, 3
    s_cbranch_scc1 {name}_prep_done
    """)
    srd(A, 12, 28, 29, 32*20*20*2)
    A(f"""
    s_cmp_eq_u32 s32, 2
    s_cbranch_scc1 {name}_sel
    s_lshl_b32 s44, s69, 1
    s_add_u32 s44, s44, s32
    v_subrev_u32 v4, 2, v3
    v_cmp_gt_u32 vcc, 18, v3
    v_cndmask_b32 v4, v4, v3, vcc
    v_and_b32 v5, 30, v3
    v_cmp_eq_u32 s[46:47], 20, v5
    s_or_b64 s[46:47], s[46:47], vcc
    v_lshlrev_b32 v4, 1, v4
    s_mul_i32 s45, s44, 800
    v_add_u32 v4, s45, v4
    s_and_b32 s45, s44, 1
    s_mul_i32 s48, s45, {4*40}
    v_mul_u32_u24 v5, {8*40}, v131
    v_add3_u32 v5, v4, v5, s48
    v_mov_b32 v6, 0x7fffffff
    v_cndmask_b32 v5, v6, v5, s[46:47]
    v_cmp_eq_u32 vcc, 0, v131
    s_and_b64 s[46:47], s[46:47], vcc
    s_cmp_eq_u32 s45, 1
    s_cselect_b32 s48, 0, {16*40}
    v_add_u32 v4, s48, v4
    v_cndmask_b32 v4, v6, v4, s[46:47]
    """)
    for j in range(8): A(f"buffer_load_ushort v{16+j}, v5, s[12:15], 0 offen offset:{40*j}")
    for j in range(4): A(f"buffer_load_ushort v{24+j}, v4, s[12:15], 0 offen offset:{40*j}")
    A("s_waitcnt vmcnt(0)")
    for j in range(12):
        A(f"v_lshlrev_b32 v{16+j}, 16, v{16+j}")
        A(f"v_mul_f32 v{16+j}, {LOG2E:#x}, v{16+j}")
    for j in range(6): A(f"v_cvt_pk_bf16_f32 v{32+j}, v{16+2*j}, v{17+2*j}")
    A(f"""
    s_mul_i32 s45, s44, 1536
    s_add_u32 s45, s45, {WPH}
    v_lshlrev_b32 v7, 3, v1
    buffer_store_dwordx4 v[32:35], v2, s[8:11], s45 offen sc1
    buffer_store_dwordx2 v[36:37], v7, s[8:11], s45 offen offset:1024 sc1
    s_branch {name}_prep_done
    {name}_sel:
    s_cmp_lg_u32 s69, 0
    s_cbranch_scc1 {name}_prep_done
    v_lshlrev_b32 v4, 2, v131
    v_sub_u32 v4, v3, v4
    """)
    for j in range(12):
        tgt = (8*(j//4) + (j%4)) if j < 8 else 16 + (j-8)
        A(f"""
        v_cmp_eq_u32 vcc, {tgt}, v4
        v_mov_b32 v5, 0x3f80
        v_cndmask_b32 v{16+j}, 0, v5, vcc
        """)
    for j in range(6): A(f"v_lshl_or_b32 v{32+j}, v{17+2*j}, 16, v{16+2*j}")
    A(f"""
    s_mov_b32 s45, {SEL}
    v_lshlrev_b32 v7, 3, v1
    buffer_store_dwordx4 v[32:35], v2, s[8:11], s45 offen sc1
    buffer_store_dwordx2 v[36:37], v7, s[8:11], s45 offen offset:1024 sc1
    v_mov_b32 v40, 0
    v_mov_b32 v41, 0
    v_mov_b32 v42, 0
    v_mov_b32 v43, 0
    """)
    for j in range(FZERO_BYTES // 1024):
        A(f"s_mov_b32 s45, {FZERO_LO + j*1024}")
        A(f"buffer_store_dwordx4 v[40:43], v2, s[8:11], s45 offen sc1")
    A(f"""
    {name}_prep_done:
    """)
    stamp(A, 1)
    A(f"""
    s_load_dwordx2 s[44:45], s[0:1], 24
    s_load_dwordx2 s[46:47], s[0:1], 48
    s_waitcnt lgkmcnt(0)
    """)
    srd(A, 12, 44, 45, WO_BYTES)
    srd(A, 16, 46, 47, WO_BYTES)
    for i in range(13):
        L = A.new("wr")
        tv = 64 + 4 * i
        A(f"""
        s_add_u32 s48, s32, {8*i}
        s_cmp_ge_u32 s48, 100
        s_cbranch_scc1 {L}
        s_mul_i32 s49, s48, 205
        s_lshr_b32 s49, s49, 11
        s_mul_i32 s50, s49, 10
        s_sub_u32 s50, s48, s50
        s_mul_i32 s51, s69, 10
        s_add_u32 s49, s49, s51
        s_lshl_b32 s50, s50, 6
        v_add_u32 v10, s50, v1
        v_lshrrev_b32 v11, 5, v10
        v_mul_u32_u24 v12, 205, v11
        v_lshrrev_b32 v12, 11, v12
        v_mul_u32_u24 v13, 10, v12
        v_sub_u32 v11, v11, v13
        v_mul_u32_u24 v13, 52, v11
        v_lshrrev_b32 v13, 8, v13
        v_mul_u32_u24 v14, 5, v13
        v_sub_u32 v11, v11, v14
        v_lshlrev_b32 v12, 5, v12
        v_lshlrev_b32 v13, 2, v13
        v_add_u32 v12, v12, v13
        v_lshrrev_b32 v13, 3, v10
        v_and_b32 v13, 3, v13
        v_lshlrev_b32 v13, 3, v13
        v_add_u32 v12, v12, v13
        v_lshrrev_b32 v13, 1, v10
        v_and_b32 v13, 3, v13
        v_add_u32 v12, v12, v13
        v_mul_u32_u24 v12, 1280, v12
        v_lshlrev_b32 v11, 5, v11
        v_and_b32 v13, 1, v10
        v_lshlrev_b32 v13, 4, v13
        v_add3_u32 v10, v12, v11, v13
        s_cmp_ge_u32 s49, 80
        s_cselect_b32 s51, 80, 0
        s_sub_u32 s51, s49, s51
        s_mul_i32 s52, s51, 205
        s_lshr_b32 s52, s52, 11
        s_mul_i32 s54, s52, 10
        s_sub_u32 s54, s51, s54
        s_mul_i32 s54, s54, {64*1280}
        s_mul_i32 s52, s52, 160
        s_add_u32 s54, s54, s52
        s_cmp_ge_u32 s49, 80
        s_cbranch_scc1 {L}_b
        buffer_load_dwordx4 {v(tv,4)}, v10, s[12:15], s54 offen
        s_branch {L}
        {L}_b:
        buffer_load_dwordx4 {v(tv,4)}, v10, s[16:19], s54 offen
        {L}:
        """)
    stamp(A, 2)
    A("s_waitcnt vmcnt(0)")
    stamp(A, 3)
    for i in range(13):
        L = A.new("ws")
        tv = 64 + 4 * i
        A(f"""
        s_add_u32 s48, s32, {8*i}
        s_cmp_ge_u32 s48, 100
        s_cbranch_scc1 {L}
        s_mul_i32 s49, s69, 100
        s_add_u32 s49, s49, s48
        s_lshl_b32 s49, s49, 10
        s_add_u32 s49, s49, {WOP}
        buffer_store_dwordx4 {v(tv,4)}, v2, s[8:11], s49 offen sc1
        {L}:
        """)
    A("s_waitcnt vmcnt(0)")
    stamp(A, 7)
    A(f"""
    s_cmp_eq_u32 s36, 0
    s_cbranch_scc0 {name}_prep_npf
    """)
    prefetch_share(A, 20, 21, 22, 23, 4, 35)
    A(f"""
    {name}_prep_npf:
    s_barrier
    s_cmp_eq_u32 s32, 4
    s_cbranch_scc0 {name}_prep_w
    s_mov_b32 s50, {FPREP}
    """)
    signal_dbg(A, 50, 48, 49)
    check_prep(A, 48, 49)
    A(f"s_mov_b32 s50, {FBW}")
    tile_flags_voff(A, 7)
    A("s_mov_b32 exec_lo, 0xffffff\ns_mov_b32 exec_hi, 0")
    poll_ws(A, 7, 50, 16, NTF, sleep=32)
    A("s_mov_b64 exec, -1")
    stage0_all(A)
    A(f"""
    s_waitcnt vmcnt(0)
    {name}_prep_w:
    """)
    import fused2
    fused2.kv_dma_setup(A)
    A(f"""
    s_barrier
    s_branch {name}_p2entry
    """)

def code_prefetch(A, name, nblk=6):
    if os.environ.get("CODEPF", "1") != "1": return
    L = A.new("cpf")
    A(f"""
    s_cmp_eq_u32 s32, 7
    s_cbranch_scc0 {L}
    s_and_b32 s54, s64, {int(os.environ.get("CPFMASK", "15"))}
    s_cmp_eq_u32 s54, 0
    s_cbranch_scc0 {L}
    s_getpc_b64 s[54:55]
    {L}_pc:
    s_sub_u32 s54, s54, {L}_pc-{name}
    s_subb_u32 s55, s55, 0
    s_mov_b32 s56, {name}_end-{name}
    v_lshlrev_b32 v228, 7, v1
    """)
    for i in range(nblk):
        A(f"""
        v_cmp_gt_u32 vcc, s56, v228
        s_and_b64 exec, vcc, vcc
        s_cbranch_execz {L}_x
        global_load_dword v229, v228, s[54:55]
        v_add_u32 v228, 8192, v228
        """)
    A(f"""
    {L}_x:
    s_mov_b64 exec, -1
    {L}:
    """)

def tlb_warm(A, name):
    mode = os.environ.get("TLBW", "0")
    if mode == "0": return
    L = A.new("tw")
    A(f"""
    s_cmp_eq_u32 s32, 6
    s_cbranch_scc0 {L}
    s_cmp_ge_u32 s64, {32 - int(os.environ.get("TLBN", "1"))}
    s_cbranch_scc0 {L}
    s_load_dwordx2 s[44:45], s[0:1], 24
    s_load_dwordx2 s[46:47], s[0:1], 48
    s_load_dwordx2 s[48:49], s[0:1], 56
    v_lshlrev_b32 v230, 16, v1
    s_waitcnt lgkmcnt(0)
    """)
    for (lo, hi, sz) in ((20, 21, X_BYTES), (22, 23, W_BYTES), (24, 25, X_BYTES), (26, 27, W_BYTES), (44, 45, WO_BYTES), (46, 47, WO_BYTES)):
        srd(A, 12, lo, hi, sz)
        A("buffer_load_dword v231, v230, s[12:15], 0 offen")
    srd(A, 12, 48, 49, OUT_BYTES)
    A("buffer_load_dword v231, v230, s[12:15], 0 offen")
    A("s_mov_b32 s50, 0x400000")
    A("buffer_load_dword v231, v230, s[12:15], s50 offen")
    for i in range(8):
        A(f"s_mov_b32 s50, {i*0x400000:#x}")
        A("buffer_load_dword v231, v230, s[8:11], s50 offen")
    A(f"{L}:")

def gen_fused(A, name):
    kernel_begin(A, name)
    stamp(A, 10, real=True)
    gen_common(A, name)
    stamp(A, 0)
    tlb_warm(A, name)
    code_prefetch(A, name)
    prefetch_share(A, 24, 25, 26, 27, 8, 32)
    A(f"""
    s_cmp_eq_u32 s31, 1
    s_cbranch_scc1 {name}_prep
    s_cmp_eq_u32 s36, 1
    s_cbranch_scc1 {name}_loader
    """)
    if os.environ.get("XP") == "nobar": A("s_endpgm")
    K32 = os.environ.get("P1K", "32") == "32"
    if not K32: p1_compute_setup(A)
    A(f"""
    s_cmp_ge_u32 s38, 10
    s_cbranch_scc1 {name}_compN
    """)
    (p1k_compute if K32 else p1_compute)(A, name, "T")
    A(f"{name}_compN:")
    (p1k_compute if K32 else p1_compute)(A, name, "N")
    A(f"{name}_cdone:")
    A("s_barrier")
    A(f"s_branch {name}_p2entry")
    A(f"{name}_prep:")
    p1_prep(A, name)
    A(f"{name}_loader:")
    (p1k_loader if os.environ.get("P1K", "32") == "32" else p1_loader)(A, name)
    A(f"{name}_p2entry:")
    stamp(A, 4)
    if STOP_AFTER == "P1":
        A("s_waitcnt vmcnt(0)")
        stamp(A, 9)
        stamp(A, 11, real=True)
        stamp_flush(A, 12, 0, 32, base=70)
        A("s_endpgm")
    else:
        import fused2
        fused2.gen_p2(A, name)
    A(f"{name}_done:")
    A("s_endpgm")
    A(f"{name}_end:")
    return kernel_desc(name, 256)
```

```python
import os
from asmlib import *
from layout2 import *

LDS = 163840
SIGC = int(os.environ.get('SIGC', '13'))
SPIN_MAX = 50000
R1 = 32768; ST1 = 32768; NS1 = 4
LOG2E = 0x3fb8aa3b
QSCALE = 0x3ea52b5c
LSTAMP = os.environ.get('LSTAMP', '0') == '1'
NTX = ' nt' if os.environ.get('NTX', '0') == '1' else ''
NTW = ' nt' if os.environ.get('NTW', '0') == '1' else ''
STOP_AFTER = os.environ.get("STOP_AFTER", "")

def poll_dbg(A, lane_off_v, tmp_v, mask_lo, target, sleep=4):
    L = A.new("poll")
    A(f"""
    s_mov_b32 s59, 0
    {L}:
    global_load_dword v{tmp_v}, v{lane_off_v}, s[4:5] sc1
    s_waitcnt vmcnt(0)
    v_cmp_le_u32 vcc, {target}, v{tmp_v}
    s_and_b32 s58, vcc_lo, {mask_lo:#x}
    s_cmp_eq_u32 s58, {mask_lo:#x}
    s_cbranch_scc1 {L}_ok
    s_sleep {sleep}
    s_add_u32 s59, s59, 1
    s_cmp_lt_u32 s59, {SPIN_MAX}
    s_cbranch_scc1 {L}
    {L}_ok:
    """)

def poll_ws(A, voff, soff, T, nlanes, width=4, target=1, sleep=8):
    L = A.new("pw")
    mask = (1 << nlanes) - 1
    ld = {4: "buffer_load_dwordx4 " + v(T,4), 1: f"buffer_load_dword v{T}"}[width]
    def check():
        A("s_waitcnt vmcnt(0)")
        if width == 4:
            A(f"v_and_b32 v{T}, v{T}, v{T+1}")
            A(f"v_and_b32 v{T+2}, v{T+2}, v{T+3}")
            A(f"v_and_b32 v{T}, v{T}, v{T+2}")
        A(f"v_cmp_eq_u32 vcc, {target}, v{T}")
        if nlanes >= 64:
            A(f"s_cmp_eq_u64 vcc, -1")
        else:
            A(f"s_and_b32 s58, vcc_hi, {(mask >> 32):#x}") if nlanes > 32 else None
            if nlanes > 32:
                A(f"s_cmp_eq_u32 s58, {(mask >> 32):#x}")
                A(f"s_cselect_b32 s58, vcc_lo, 0")
                A(f"s_cmp_eq_u32 s58, -1")
            else:
                A(f"s_and_b32 s58, vcc_lo, {mask:#x}")
                A(f"s_cmp_eq_u32 s58, {mask:#x}")
    A(f"{ld}, v{voff}, s[8:11], s{soff} offen sc1")
    check()
    A(f"s_cbranch_scc1 {L}_ok")
    A(f"s_mov_b32 s59, 0")
    A(f"{L}:")
    A(f"s_sleep {sleep}")
    A(f"{ld}, v{voff}, s[8:11], s{soff} offen sc1")
    check()
    A(f"""
    s_cbranch_scc1 {L}_ok
    s_add_u32 s59, s59, 1
    s_cmp_lt_u32 s59, {SPIN_MAX}
    s_cbranch_scc1 {L}
    {L}_ok:
    """)

def flag_issue(A, voff, soff, T, width=4):
    ld = {4: "buffer_load_dwordx4 " + v(T,4), 1: f"buffer_load_dword v{T}"}[width]
    A(f"{ld}, v{voff}, s[8:11], s{soff} offen sc1")
def flag_check(A, voff, soff, T, nlanes, width=4, target=1, sleep=8, masked=False):
    L = A.new("fc")
    mask = (1 << nlanes) - 1
    if width == 4:
        A(f"v_and_b32 v{T}, v{T}, v{T+1}")
        A(f"v_and_b32 v{T+2}, v{T+2}, v{T+3}")
        A(f"v_and_b32 v{T}, v{T}, v{T+2}")
    A(f"v_cmp_eq_u32 vcc, {target}, v{T}")
    if nlanes >= 64:
        A(f"s_cmp_eq_u64 vcc, -1")
    elif nlanes > 32:
        A(f"s_and_b32 s58, vcc_hi, {(mask >> 32):#x}")
        A(f"s_cmp_eq_u32 s58, {(mask >> 32):#x}")
        A(f"s_cselect_b32 s58, vcc_lo, 0")
        A(f"s_cmp_eq_u32 s58, -1")
    else:
        A(f"s_and_b32 s58, vcc_lo, {mask:#x}")
        A(f"s_cmp_eq_u32 s58, {mask:#x}")
    A(f"s_cbranch_scc1 {L}")
    if masked: A(f"s_mov_b32 exec_lo, {(1 << nlanes) - 1:#x}\ns_mov_b32 exec_hi, 0")
    poll_ws(A, voff, soff, T, nlanes, width, target, sleep)
    if masked: A("s_mov_b64 exec, -1")
    A(f"{L}:")

def set_flag_ws(A, soff, tv0, tv1):
    A(f"""
    v_mov_b32 v{tv0}, 0
    v_mov_b32 v{tv1}, 1
    s_mov_b64 exec, 1
    buffer_store_dword v{tv1}, v{tv0}, s[8:11], s{soff} offen sc1
    s_mov_b64 exec, -1
    """)

def check_prep(A, tv0, tv1):
    L = A.new("cp")
    A(f"""
    v_mov_b32 v{tv0}, {FPREP*4}
    global_load_dword v{tv1}, v{tv0}, s[4:5] sc1
    s_mov_b32 s59, 0
    {L}:
    s_waitcnt vmcnt(0)
    v_readfirstlane_b32 s58, v{tv1}
    s_cmp_ge_u32 s58, 16
    s_cbranch_scc1 {L}_ok
    s_sleep 16
    global_load_dword v{tv1}, v{tv0}, s[4:5] sc1
    s_add_u32 s59, s59, 1
    s_cmp_lt_u32 s59, {SPIN_MAX}
    s_cbranch_scc1 {L}
    {L}_ok:
    """)

NTF = 24
def tile_flags_voff(A, vd):
    A(f"""
    s_mul_i32 s56, s33, 20
    s_add_u32 s57, s56, 19
    s_lshr_b32 s56, s56, 7
    s_lshr_b32 s57, s57, 7
    v_lshrrev_b32 v{vd}, 3, v1
    v_min_u32 v{vd}, 2, v{vd}
    v_mul_u32_u24 v{vd}, 5, v{vd}
    v_bfe_u32 v{vd+1}, v1, 2, 1
    v_cmp_eq_u32 vcc, 1, v{vd+1}
    v_mov_b32 v{vd+1}, s56
    v_mov_b32 v{vd+2}, s57
    v_cndmask_b32 v{vd+1}, v{vd+1}, v{vd+2}, vcc
    v_add_u32 v{vd}, v{vd}, v{vd+1}
    v_lshlrev_b32 v{vd}, 7, v{vd}
    v_and_b32 v{vd+1}, 3, v1
    v_lshlrev_b32 v{vd+1}, 4, v{vd+1}
    v_add_u32 v{vd}, v{vd}, v{vd+1}
    """)

def signal_dbg(A, idx_s, tv0, tv1):
    A(f"""
    s_lshl_b32 s58, s{idx_s}, 2
    v_mov_b32 v{tv0}, s58
    v_mov_b32 v{tv1}, 1
    s_mov_b64 exec, 1
    global_atomic_add v{tv0}, v{tv1}, s[4:5] sc1
    s_mov_b64 exec, -1
    """)

def gen_common(A, name):
    A(f"""
    s_cmp_ge_u32 s2, 256
    s_cbranch_scc1 {name}_done
    s_load_dwordx4 s[20:23], s[0:1], 0
    s_load_dwordx4 s[24:27], s[0:1], 32
    s_load_dwordx4 s[4:7], s[0:1], 64
    s_load_dwordx2 s[28:29], s[0:1], 16
    v_and_b32 v1, 63, v0
    v_lshrrev_b32 v2, 6, v0
    v_and_b32 v3, 31, v1
    v_readfirstlane_b32 s32, v2
    v_lshrrev_b32 v131, 5, v1
    v_lshlrev_b32 v2, 4, v1
    v_lshlrev_b32 v132, 3, v3
    s_and_b32 s39, s2, 7
    s_lshr_b32 s64, s2, 3
    s_lshl_b32 s33, s39, 2
    s_lshr_b32 s45, s64, 3
    s_add_u32 s33, s33, s45
    s_and_b32 s34, s64, 7
    s_and_b32 s35, s32, 3
    s_lshr_b32 s36, s32, 2
    s_lshr_b32 s65, s39, 1
    s_lshl_b32 s37, s65, 2
    s_and_b32 s30, s39, 1
    s_cmp_eq_u32 s30, 0
    s_cbranch_scc0 {name}_map1
    s_lshr_b32 s46, s64, 3
    s_add_u32 s37, s37, s46
    s_and_b32 s38, s64, 7
    s_mov_b32 s31, 0
    s_branch {name}_map2
    {name}_map1:
    s_mul_i32 s46, s64, 37
    s_lshr_b32 s46, s46, 8
    s_add_u32 s37, s37, s46
    s_mul_i32 s46, s46, 7
    s_sub_u32 s38, s64, s46
    s_add_u32 s38, s38, 8
    s_cmp_ge_u32 s64, 28
    s_cselect_b32 s31, 1, 0
    {name}_map2:
    s_mov_b32 s40, 1.0
    s_mov_b32 s41, -1.0
    s_mov_b32 s42, 0x000fffff
    s_mov_b32 s43, 0x000fffff
    s_and_b32 s45, s33, 1
    s_mul_i32 s66, s33, 5
    s_add_u32 s66, s66, s45
    s_lshr_b32 s66, s66, 1
    s_add_u32 s67, s66, 2
    s_cmp_eq_u32 s45, 1
    s_cselect_b32 s46, 3, 0
    s_sub_u32 s67, s67, s46
    s_lshl_b32 s68, s45, 3
    s_mul_i32 s53, s33, {VH}
    s_add_u32 s53, s53, {BR + VOFF}
    s_waitcnt lgkmcnt(0)
    """)
    WSB = int(os.environ.get("WSBASE", "0"), 0)
    if WSB:
        A(f"s_add_u32 s6, s6, {WSB:#x}")
        A(f"s_addc_u32 s7, s7, 0")
    srd(A, 8, 6, 7, WS_BYTES)
    for r in (188, 189, 190, 191): A(f"v_mov_b32 v{r}, 0")

def p2_stage_dma(A, st, dyn=None):
    L = A.new("sd")
    if dyn is None:
        A(f"""
        s_lshr_b32 s56, s35, 1
        s_mul_i32 s57, s56, {PART}
        s_add_u32 s57, s57, {(st % 4) * SLOT}
        s_lshl_b32 s56, s56, 3
        s_add_u32 s56, s56, {st}
        """)
    else:
        A(f"""
        s_lshr_b32 s56, s35, 1
        s_mul_i32 s57, s56, {PART}
        s_add_u32 s57, s57, s{dyn[0]}
        s_lshl_b32 s56, s56, 3
        s_add_u32 s56, s56, s{dyn[1]}
        """)
    A(f"""
    s_bitcmp1_b32 s35, 0
    s_cbranch_scc1 {L}_v
    s_lshl_b32 s56, s56, 11
    s_add_u32 s58, s66, 80
    s_lshl_b32 s58, s58, 15
    s_add_u32 s58, s58, s56
    s_add_u32 s58, s58, {BR + QKOFF}
    s_add_u32 s59, s67, 80
    s_lshl_b32 s59, s59, 15
    s_add_u32 s59, s59, s56
    s_add_u32 s59, s59, {BR + QKOFF}
    """)
    for e, (src, off) in enumerate(((58, 0), (58, 1024), (58, QKG), (58, QKG + 1024), (59, 0), (59, 1024))):
        A(f"s_add_u32 m0, s57, {e*1024}")
        A(f"s_add_u32 s56, s{src}, {off}")
        A(f"buffer_load_dwordx4 v2, s[8:11], s56 offen sc1 lds")
    A(f"""
    s_branch {L}_e
    {L}_v:
    s_mul_i32 s56, s56, {VC}
    s_add_u32 s56, s56, s53
    """)
    for e in range(5):
        A(f"s_add_u32 m0, s57, {6144 + e*1024}")
        A(f"s_add_u32 s58, s56, {e*1024}")
        A(f"buffer_load_dwordx4 v2, s[8:11], s58 offen sc1 lds")
    A(f"{L}_e:")

QA_M, QB_M, QA_R, QB_R = 4, 8, 12, 14
def frag_addr(A, vm, vr):
    A(f"""
    v_lshlrev_b32 v{vm}, 15, v131
    v_lshlrev_b32 v{vr}, 4, v3
    v_add_u32 v{vm}, v{vm}, v{vr}
    v_add_u32 v{vr}, s68, v{vr}
    """)
QL = 22528
def p2_q_dma(A):
    A(f"""
    s_lshl_b32 s56, s34, 8
    s_lshl_b32 s57, s35, 6
    s_add_u32 s56, s56, s57
    s_lshl_b32 s56, s56, 4
    s_add_u32 s56, s56, {BR + QKOFF}
    s_lshl_b32 s57, s35, 10
    s_add_u32 s57, s57, {QL}
    s_lshl_b32 s58, s66, 15
    s_add_u32 s58, s58, s56
    s_mov_b32 m0, s57
    s_add_u32 s59, s58, {QKG}
    buffer_load_dwordx4 v2, s[8:11], s58 offen sc1 lds
    s_add_u32 m0, s57, 4096
    s_lshl_b32 s58, s67, 15
    buffer_load_dwordx4 v2, s[8:11], s59 offen sc1 lds
    s_add_u32 s58, s58, s56
    s_add_u32 s58, s58, s68
    v_lshrrev_b32 v12, 1, v1
    v_lshlrev_b32 v12, 4, v12
    v_and_b32 v13, 1, v1
    v_lshlrev_b32 v13, 2, v13
    v_add_u32 v12, v12, v13
    s_lshl_b32 s57, s35, 9
    s_add_u32 s57, s57, {QL + 8192}
    s_mov_b32 m0, s57
    s_add_u32 s59, s58, 512
    buffer_load_dword v12, s[8:11], s58 offen sc1 lds
    s_add_u32 m0, s57, 256
    s_nop 0
    buffer_load_dword v12, s[8:11], s59 offen sc1 lds
    """)
def p2_q_reads(A, tm=133, tr=134):
    A(f"""
    s_lshl_b32 s56, s35, 10
    s_add_u32 s56, s56, {QL}
    v_lshlrev_b32 v{tm}, 12, v131
    v_lshlrev_b32 v{tr}, 4, v3
    v_add3_u32 v{tm}, v{tm}, v{tr}, s56
    s_lshl_b32 s56, s35, 9
    s_add_u32 s56, s56, {QL + 8192}
    v_add_u32 v{tr}, s56, v132
    v_mov_b32 v{QA_R}, 0
    v_mov_b32 v{QA_R+1}, 0
    v_mov_b32 v{QA_R+2}, 0
    v_mov_b32 v{QA_R+3}, 0
    ds_read_b128 {v(QA_M,4)}, v{tm}
    ds_read_b128 {v(QB_M,4)}, v{tm} offset:512
    s_mov_b32 exec_hi, 0
    ds_read_b64 {v(QA_R,2)}, v{tr}
    ds_read_b64 {v(QB_R,2)}, v{tr} offset:256
    s_mov_b64 exec, -1
    s_waitcnt lgkmcnt(0)
    s_barrier
    """)

XV, WV = 192, 196
CXA, CWA, CXA2, CWA2, CEA = 4, 8, 10, 14, 128
EA = 200
ACC = 64
def p1_loader(A, name):
    A.c("P1 loader")
    A(f"""
    v_lshrrev_b32 v7, 3, v1
    s_lshl_b32 s44, s35, 5
    v_add_u32 v7, s44, v7
    v_mul_u32_u24 v7, 1280, v7
    v_lshrrev_b32 v8, 4, v1
    v_and_b32 v9, 7, v1
    """)
    for i in range(4):
        A(f"""
        v_add_u32 v10, {4*i}, v8
        v_and_b32 v10, 7, v10
        v_xor_b32 v10, v10, v9
        v_lshlrev_b32 v10, 4, v10
        v_add_u32 v10, v10, v7
        v_add_u32 v{XV+i}, {8*i*1280}, v10
        """)
    A(f"""
    s_lshl_b32 s44, s35, 4
    v_add_u32 v7, s44, v8
    v_mul_u32_u24 v7, 3840, v7
    v_lshrrev_b32 v9, 2, v1
    v_xor_b32 v9, v9, v8
    v_and_b32 v9, 3, v9
    v_lshlrev_b32 v9, 6, v9
    v_and_b32 v10, 3, v1
    v_lshlrev_b32 v10, 4, v10
    v_add3_u32 v{WV}, v7, v9, v10
    s_lshl_b32 s44, s35, 12
    s_add_u32 s45, s44, 16384
    s_and_b32 s52, s37, 3
    s_mul_i32 s52, s52, 3
    s_add_u32 s52, s52, s38
    s_lshl_b32 s54, s65, 1
    s_add_u32 s52, s52, s54
    s_cmp_ge_u32 s52, 20
    s_cselect_b32 s54, 20, 0
    s_sub_u32 s52, s52, s54
    s_cmp_ge_u32 s52, 10
    s_cselect_b32 s54, 10, 0
    s_sub_u32 s52, s52, s54
    """)
    if os.environ.get("ROT", "1") != "1": A("s_mov_b32 s52, 0")
    A(f"""
    s_mov_b32 s55, s52
    s_mul_i32 s46, s37, {128*1280}
    s_lshl_b32 s54, s55, 7
    s_add_u32 s46, s46, s54
    s_lshl_b32 s47, s38, 8
    s_mul_i32 s54, s55, {64*3840}
    s_add_u32 s47, s47, s54
    s_mov_b32 s56, s55
    s_mov_b32 s48, {R1}
    s_mov_b32 s49, 0
    """)
    srd(A, 12, 24, 25, X_BYTES)
    srd(A, 16, 26, 27, W_BYTES)
    def issue(tag):
        for i in range(4 if not (os.environ.get("XP") == "nodma" and tag == "lp") else 0):
            A(f"s_add_u32 s50, s48, s44")
            A(f"s_add_u32 m0, s50, {i*1024}")
            A(f"s_add_u32 s51, s47, {i*4*3840}")
            A(f"buffer_load_dwordx4 v{XV+i}, s[12:15], s46 offen{NTX} lds")
            A(f"s_add_u32 s50, s48, s45")
            A(f"s_add_u32 m0, s50, {i*1024}")
            A(f"s_nop 0")
            A(f"buffer_load_dwordx4 v{WV}, s[16:19], s51 offen{NTW} lds")
        A(f"""
        s_add_u32 s46, s46, 128
        s_add_u32 s47, s47, {64*3840}
        s_add_u32 s48, s48, {ST1}
        s_cmp_eq_u32 s48, {R1+NS1*ST1}
        s_cselect_b32 s48, {R1}, s48
        s_add_u32 s56, s56, 1
        s_cmp_eq_u32 s56, 10
        s_cselect_b32 s54, {10*128}, 0
        s_sub_u32 s46, s46, s54
        s_cmp_eq_u32 s56, 10
        s_cselect_b32 s54, {10*64*3840}, 0
        s_sub_u32 s47, s47, s54
        s_cmp_eq_u32 s56, 10
        s_cselect_b32 s56, 0, s56
        s_add_u32 s49, s49, 1
        s_cmp_eq_u32 s49, 10
        s_cbranch_scc0 {name}_ld_{tag}
        """)
        srd(A, 12, 20, 21, X_BYTES)
        srd(A, 16, 22, 23, W_BYTES)
        A(f"""
        {name}_ld_{tag}:
        """)
    SPD = int(os.environ.get("SPD", "0"))
    def spf_bases(xl, xh, wl, wh):
        A(f"""
        s_lshl_b32 s54, s64, 2
        s_add_u32 s54, s54, s35
        s_lshl_b32 s55, s65, 9
        s_lshl_b32 s57, s54, 2
        s_add_u32 s55, s55, s57
        s_mul_i32 s55, s55, 1280
        s_add_u32 s60, s{xl}, s55
        s_addc_u32 s61, s{xh}, 0
        s_lshr_b32 s55, s54, 1
        s_mul_i32 s55, s55, 3840
        s_and_b32 s57, s54, 1
        s_lshl_b32 s57, s57, 10
        s_add_u32 s55, s55, s57
        s_lshl_b32 s57, s30, 11
        s_add_u32 s55, s55, s57
        s_add_u32 s62, s{wl}, s55
        s_addc_u32 s63, s{wh}, 0
        """)
    def spf_one():
        for r in range(4): A(f"s_load_dword s94, s[60:61], {r*1280}")
        for r in range(8): A(f"s_load_dword s95, s[62:63], {r*128}")
        A(f"""
        s_add_u32 s60, s60, 128
        s_addc_u32 s61, s61, 0
        s_add_u32 s62, s62, {64*3840}
        s_addc_u32 s63, s63, 0
        """)
    issue("p0"); issue("p1"); issue("p2")
    if SPD:
        spf_bases(24, 25, 26, 27)
        A(f"""
        s_add_u32 s60, s60, {3*128}
        s_addc_u32 s61, s61, 0
        s_add_u32 s62, s62, {3*64*3840}
        s_addc_u32 s63, s63, 0
        s_mov_b32 s100, 3
        """)
        for _ in range(SPD - 3):
            spf_one(); A("s_add_u32 s100, s100, 1")
    stamp(A, 1)
    if STAMPS: A("s_mov_b32 s74, 0\ns_mov_b32 s75, 0\ns_mov_b32 s76, 0\ns_mov_b32 s77, 0\ns_mov_b32 s80, 0\ns_mov_b32 s81, 0")
    if os.environ.get("XP") == "nobar":
        A(f"""
        s_mov_b32 s52, 0
        {name}_xl:
        s_waitcnt vmcnt({os.environ.get("XVM", "16")})
        """)
        issue("xp")
        A(f"""
        s_add_u32 s52, s52, 1
        s_cmp_lt_u32 s52, 17
        s_cbranch_scc1 {name}_xl
        s_waitcnt vmcnt(0)
        """)
        stamp(A, 4); stamp(A, 9); stamp(A, 11, real=True)
        stamp_flush(A, 12, 0, 32, base=70)
        A("s_endpgm")
    A(f"""
    s_mov_b32 s52, 0
    {name}_lloop:
    """)
    if STAMPS and LSTAMP:
        A("""
        s_memtime s[86:87]
        s_waitcnt lgkmcnt(0)
        s_waitcnt vmcnt(16)
        s_memtime s[88:89]
        s_waitcnt lgkmcnt(0)
        s_sub_u32 s90, s88, s86
        s_add_u32 s74, s74, s90
        s_barrier
        s_memtime s[86:87]
        s_waitcnt lgkmcnt(0)
        s_sub_u32 s90, s86, s88
        s_add_u32 s76, s76, s90
        """)
    else:
        A("s_waitcnt vmcnt(16)")
        A("s_barrier")
    issue("lp")
    if SPD:
        A(f"""
        s_cmp_ge_u32 s100, 20
        s_cbranch_scc1 {name}_nsp
        s_cmp_eq_u32 s100, 10
        s_cbranch_scc0 {name}_sp1
        """)
        spf_bases(20, 21, 22, 23)
        A(f"{name}_sp1:")
        spf_one()
        A(f"""
        s_add_u32 s100, s100, 1
        {name}_nsp:
        """)
    if STAMPS and LSTAMP:
        A("""
        s_memtime s[88:89]
        s_waitcnt lgkmcnt(0)
        s_sub_u32 s90, s88, s86
        s_add_u32 s80, s80, s90
        """)
    A(f"""
    s_add_u32 s52, s52, 1
    s_cmp_lt_u32 s52, 17
    s_cbranch_scc1 {name}_lloop
    s_waitcnt vmcnt(16)
    s_barrier
    s_waitcnt vmcnt(8)
    s_barrier
    s_waitcnt vmcnt(0)
    s_barrier
    s_mov_b32 s54, {FBW}
    """)
    tile_flags_voff(A, 7)
    A("s_mov_b32 exec_lo, 0xffffff\ns_mov_b32 exec_hi, 0")
    flag_issue(A, 7, 54, 16)
    A("s_mov_b64 exec, -1")
    import fused2
    fused2.kv_dma_setup(A)
    A(f"""
    s_barrier
    s_waitcnt vmcnt(0)
    s_mov_b32 s54, {FBW}
    """)
    stamp(A, 7)
    flag_check(A, 7, 54, 16, NTF, masked=True)
    stamp(A, 8)
    p2_stage_dma(A, 0)
    p2_q_dma(A)
    A(f"""
    s_waitcnt vmcnt(0)
    s_barrier
    """)

def stage0_all(A):
    A("s_mov_b32 s63, s35")
    for p in range(4):
        A(f"s_mov_b32 s35, {p}")
        p2_stage_dma(A, 0)
        p2_q_dma(A)
    A("s_mov_b32 s35, s63")

PF_MODE = os.environ.get('PF_MODE', 'off')
def prefetch_share(A, xl, xh, wl, wh, nw, widx):
    if PF_MODE == 'off': return
    srd(A, 12, xl, xh, X_BYTES)
    srd(A, 16, wl, wh, W_BYTES)
    A(f"""
    s_mul_i32 s50, s2, 10240
    s_mul_i32 s51, s2, 9600
    s_lshl_b32 s52, s{widx}, 10
    s_add_u32 s50, s50, s52
    s_add_u32 s51, s51, s52
    """)
    for r in range(-(-10 // nw)):
        L = A.new("pf")
        lim = 10 - r * nw
        if lim < nw:
            A(f"s_cmp_ge_u32 s{widx}, {lim}")
            A(f"s_cbranch_scc1 {L}")
        A(f"s_add_u32 s52, s50, {r*nw*1024}")
        A(f"buffer_load_dwordx4 v[216:219], v2, s[12:15], s52 offen")
        A(f"s_add_u32 s52, s51, {r*nw*1024}")
        A(f"buffer_load_dwordx4 v[220:223], v2, s[16:19], s52 offen")
        if lim < nw: A(f"{L}:")

L2PF = int(os.environ.get('L2PF', '5'))
def l2pf_setup(A):
    L = A.new("l2")
    A(f"""
    s_mov_b32 s69, 0
    s_cmp_lg_u32 s32, 1
    s_cbranch_scc1 {L}_e
    s_cmp_ge_u32 s64, 24
    s_cbranch_scc1 {L}_e
    s_mov_b32 s69, 1
    s_cmp_ge_u32 s64, 8
    s_cbranch_scc1 {L}_w
    s_lshl_b32 s44, s65, 9
    s_lshl_b32 s45, s64, 6
    s_add_u32 s44, s44, s45
    v_add_u32 v5, s44, v1
    v_mul_u32_u24 v5, 1280, v5
    s_mov_b32 s55, 128
    """)
    srd(A, 96, 24, 25, X_BYTES)
    A(f"""
    s_branch {L}_go
    {L}_w:
    s_sub_u32 s44, s64, 8
    s_lshl_b32 s44, s44, 2
    v_lshrrev_b32 v5, 4, v1
    v_add_u32 v5, s44, v5
    v_mul_u32_u24 v5, 3840, v5
    v_and_b32 v6, 15, v1
    v_lshlrev_b32 v6, 7, v6
    s_lshl_b32 s44, s30, 11
    v_add3_u32 v5, v5, v6, s44
    s_mov_b32 s55, {64*3840}
    """)
    srd(A, 96, 26, 27, W_BYTES)
    A(f"""
    {L}_go:
    s_mul_i32 s54, s55, 4
    s_mov_b32 s57, 4
    {L}_e:
    """)
def l2pf_one(A):
    if not L2PF: return
    L = A.new("l2o")
    A(f"""
    s_cmp_eq_u32 s69, 1
    s_cbranch_scc0 {L}_e
    s_cmp_ge_u32 s57, 20
    s_cbranch_scc1 {L}_e
    s_cmp_eq_u32 s57, 10
    s_cbranch_scc0 {L}_n
    s_mov_b32 s54, 0
    s_cmp_ge_u32 s64, 8
    s_cbranch_scc1 {L}_w
    """)
    srd(A, 96, 20, 21, X_BYTES)
    A(f"s_branch {L}_n")
    A(f"{L}_w:")
    srd(A, 96, 22, 23, W_BYTES)
    A(f"""
    {L}_n:
    buffer_load_dword v224, v5, s[96:99], s54 offen
    s_add_u32 s54, s54, s55
    s_add_u32 s57, s57, 1
    {L}_e:
    """)

def p1_compute(A, name, orient):
    tag = f"{name}_c{orient}"
    FB_ = [16, 32, 48, 144]
    ACCS = [64, 160]
    T = 224
    def reads(c, kk):
        q = c % 4
        b = FB_[kk]
        xa = (CXA if q < 2 else CXA2) + kk; wa = CWA if q < 2 else CWA2
        so = (q & 1) * ST1
        L = []
        L.append(f"ds_read_b128 {v(b,4)}, v{xa} offset:{so}")
        for jj in range(2): L.append(f"ds_read_b64_tr_b16 {v(b+8+2*jj,2)}, v{wa} offset:{so+kk*4096+jj*1024}")
        L.append(f"ds_read_b128 {v(b+4,4)}, v{xa} offset:{so+4096}")
        for jj in range(2): L.append(f"ds_read_b64_tr_b16 {v(b+12+2*jj,2)}, v{wa+1} offset:{so+kk*4096+jj*1024}")
        return L
    def mf(c, kk):
        b = FB_[kk]; acc = ACCS[c // 10]
        first = (c % 10 == 0 and kk == 0)
        L = []
        for nt in range(2):
            for st in range(2):
                X = v(b+4*st,4); W = v(b+8+4*nt,4)
                if orient == "T":
                    D = v(acc+16*(2*nt+st),16); L.append(f"v_mfma_f32_32x32x16_bf16 {D}, {W}, {X}, {'0' if first else D}")
                else:
                    D = v(acc+16*(2*st+nt),16); L.append(f"v_mfma_f32_32x32x16_bf16 {D}, {X}, {W}, {'0' if first else D}")
        return L
    def epilogue(br_is_B):
        acc = ACCS[0 if br_is_B else 1]
        L = []
        if orient == "T":
            n = 0
            for nt in range(2):
                for st in range(2):
                    r0 = acc+16*(2*nt+st)
                    for ip in range(2):
                        t_ = T + 4*(n % 4); n += 1
                        if br_is_B:
                            for e in range(8): L.append(f"v_mul_f32 v{r0+8*ip+e}, s62, v{r0+8*ip+e}")
                        for e in range(4): L.append(f"v_cvt_pk_bf16_f32 v{t_+e}, v{r0+8*ip+2*e}, v{r0+8*ip+2*e+1}")
                        L.append(f"s_add_u32 s55, s61, {(4*nt+2*ip)*QKG + st*512}")
                        L.append(f"s_nop 0")
                        L.append(f"v_permlane32_swap_b32 v{t_}, v{t_+2}")
                        L.append(f"v_permlane32_swap_b32 v{t_+1}, v{t_+3}")
                        L.append(f"buffer_store_dwordx4 {v(t_,4)}, v{CEA}, s[8:11], s55 offen sc1")
        else:
            for nt in range(2):
                for st in range(2):
                    for m in range(2):
                        r0 = acc+16*(2*st+nt)+8*m
                        t_ = T + 4*((2*st+m) % 4)
                        for e in range(4): L.append(f"v_cvt_pk_bf16_f32 v{t_+e}, v{r0+2*e}, v{r0+2*e+1}")
                        L.append(f"buffer_store_dwordx4 {v(t_,4)}, v{CEA+nt}, s[8:11], s61 offen offset:{(2*st+m)*640} sc1")
        return L
    if orient == "T":
        A(f"""
        s_lshl_b32 s44, s38, 4
        s_and_b32 s45, s35, 1
        s_lshl_b32 s45, s45, 3
        s_add_u32 s44, s44, s45
        v_add_u32 v{T}, s44, v131
        v_lshlrev_b32 v{T}, 15, v{T}
        s_lshl_b32 s44, s37, 7
        s_lshr_b32 s45, s35, 1
        s_lshl_b32 s45, s45, 6
        s_add_u32 s44, s44, s45
        v_add_u32 v{T+1}, s44, v3
        v_lshlrev_b32 v{T+1}, 4, v{T+1}
        v_add_u32 v{CEA}, v{T}, v{T+1}
        s_mov_b32 s60, {QKOFF}
        s_mov_b32 s62, 1.0
        s_cmp_lt_u32 s38, 5
        s_cselect_b32 s62, {QSCALE:#x}, s62
        """)
    else:
        A(f"""
        s_sub_u32 s44, s38, 10
        s_lshl_b32 s44, s44, 7
        s_and_b32 s45, s35, 1
        s_lshl_b32 s45, s45, 6
        s_add_u32 s44, s44, s45
        s_mul_i32 s60, s37, {VC}
        s_add_u32 s60, s60, {VOFF}
        s_lshr_b32 s45, s35, 1
        s_mul_i32 s45, s45, {4*640}
        s_add_u32 s60, s60, s45
        v_mul_u32_u24 v{T}, 320, v131
        s_mov_b32 s45, {VH}
        """)
        for nt in range(2):
            A(f"""
            v_add_u32 v{T+1}, s44, v3
            v_add_u32 v{T+1}, {32*nt}, v{T+1}
            v_mul_u32_u24 v{T+2}, 3277, v{T+1}
            v_lshrrev_b32 v{T+2}, 16, v{T+2}
            v_mul_u32_u24 v{T+3}, 20, v{T+2}
            v_sub_u32 v{T+3}, v{T+1}, v{T+3}
            v_lshlrev_b32 v{T+3}, 4, v{T+3}
            v_mul_lo_u32 v{T+2}, v{T+2}, s45
            v_add3_u32 v{CEA+nt}, v{T+2}, v{T+3}, v{T}
            """)
    for kk in range(4): A(f"v_add_u32 v{CXA2+kk}, {2*ST1}, v{CXA+kk}")
    for nt in range(2): A(f"v_add_u32 v{CWA2+nt}, {2*ST1}, v{CWA+nt}")
    A(f"s_add_u32 s61, s60, {BR}")
    stamp(A, 1)
    A("s_barrier")
    stamp(A, 2)
    for l in reads(0, 0) + reads(0, 1): A(l)
    EPI = epilogue(True)
    def emit(M, R, extra_per=0):
        R = list(R)
        for i_, m in enumerate(M):
            A(m)
            for _ in range(3):
                if R: A(R.pop(0))
            for _ in range(extra_per):
                if EPI: A(EPI.pop(0))
    for c in range(20):
        ex = 0
        if c in (10, 11): ex = -(-len(epilogue(True)) // 30)
        A("s_waitcnt lgkmcnt(6)")
        emit(mf(c, 0), reads(c, 2), ex if c != 10 else 0)
        A("s_waitcnt lgkmcnt(6)")
        emit(mf(c, 1), reads(c, 3), ex)
        if c == SIGC: A("s_waitcnt vmcnt(0)")
        A("s_waitcnt lgkmcnt(0)")
        A("s_barrier")
        emit(mf(c, 2), reads(c + 1, 0), ex)
        A("s_waitcnt lgkmcnt(6)")
        emit(mf(c, 3), reads(c + 1, 1), ex)
        if c == 11:
            while EPI: A(EPI.pop(0))
        if c == 15:
            import fused2
            fused2.kv_dma_setup(A)
        if c == 4:
            L = A.new("fp")
            A(f"""
            s_cmp_eq_u32 s32, 0
            s_cbranch_scc0 {L}
            v_mov_b32 v240, {FPREP*4}
            global_load_dword v241, v240, s[4:5] sc1
            {L}:
            """)
        if c == 9: stamp(A, 5)
        if c == SIGC:
            A(f"s_cmp_eq_u32 s32, 0")
            A(f"s_cbranch_scc1 {tag}_hk_sig")
            A(f"{tag}_rt_sig:")
    stamp(A, 3)
    A(f"s_mov_b32 s61, s60")
    for l in epilogue(False): A(l)
    A(f"s_branch {name}_cdone")
    A(f"{tag}_hk_sig:")
    stamp(A, 7)
    L = A.new("cp")
    A(f"""
    v_readfirstlane_b32 s58, v241
    s_cmp_ge_u32 s58, 16
    s_cbranch_scc1 {L}
    """)
    check_prep(A, 240, 241)
    A(f"""
    {L}:
    s_lshl_b32 s54, s38, 7
    s_lshl_b32 s55, s37, 2
    s_add_u32 s54, s54, s55
    s_add_u32 s54, s54, {FBW}
    """)
    set_flag_ws(A, 54, 240, 241)
    A(f"s_branch {tag}_rt_sig")

def p1_compute_setup(A):
    A(f"""
    s_lshr_b32 s44, s35, 1
    s_lshl_b32 s44, s44, 6
    v_add_u32 v20, s44, v3
    v_lshlrev_b32 v20, 7, v20
    v_add_u32 v20, {R1}, v20
    v_lshrrev_b32 v16, 1, v3
    v_and_b32 v16, 7, v16
    v_xor_b32 v16, v16, v131
    """)
    for kk in range(4):
        A(f"""
        v_xor_b32 v17, {2*kk}, v16
        v_lshlrev_b32 v17, 4, v17
        v_add_u32 v{CXA+kk}, v20, v17
        """)
    A(f"""
    v_lshrrev_b32 v16, 2, v1
    v_and_b32 v16, 3, v16
    v_lshlrev_b32 v17, 11, v131
    v_lshlrev_b32 v18, 8, v16
    v_add_u32 v17, v17, v18
    v_lshrrev_b32 v18, 4, v1
    v_and_b32 v18, 1, v18
    v_lshlrev_b32 v18, 5, v18
    v_add_u32 v17, v17, v18
    v_and_b32 v18, 3, v1
    v_lshlrev_b32 v18, 3, v18
    v_add_u32 v17, v17, v18
    v_add_u32 v17, {R1+16384}, v17
    s_and_b32 s44, s35, 1
    s_lshl_b32 s44, s44, 1
    """)
    for nt in range(2):
        A(f"""
        s_add_u32 s45, s44, {nt}
        v_xor_b32 v18, s45, v16
        v_lshlrev_b32 v18, 6, v18
        v_add_u32 v{CWA+nt}, v17, v18
        """)


STK = 16384
NSK = int(os.environ.get("NSK", "8"))
DEP = int(os.environ.get("DEP", "7"))
def p1k_loader(A, name):
    XV_, WV_ = 192, 194
    A(f"""
    v_lshrrev_b32 v7, 2, v1
    s_lshl_b32 s44, s35, 5
    v_add_u32 v7, s44, v7
    v_mul_u32_u24 v7, 1280, v7
    v_lshrrev_b32 v8, 4, v1
    v_and_b32 v9, 3, v1
    v_xor_b32 v10, v9, v8
    v_and_b32 v10, 3, v10
    v_lshlrev_b32 v10, 4, v10
    v_add_u32 v{XV_}, v7, v10
    v_add_u32 v{XV_+1}, {16*1280}, v{XV_}
    s_lshl_b32 s44, s35, 3
    v_add_u32 v7, s44, v8
    v_mul_u32_u24 v7, 3840, v7
    v_lshrrev_b32 v10, 2, v1
    v_xor_b32 v10, v10, v8
    v_and_b32 v10, 3, v10
    v_lshlrev_b32 v10, 6, v10
    v_lshlrev_b32 v9, 4, v9
    v_add3_u32 v{WV_}, v7, v10, v9
    s_lshl_b32 s44, s35, 11
    s_add_u32 s44, s44, {R1}
    s_add_u32 s45, s44, 8192
    s_and_b32 s52, s37, 3
    s_mul_i32 s52, s52, 6
    s_lshl_b32 s54, s38, 1
    s_add_u32 s52, s52, s54
    s_lshl_b32 s54, s65, 2
    s_add_u32 s52, s52, s54
    s_cmp_ge_u32 s52, 40
    s_cselect_b32 s54, 40, 0
    s_sub_u32 s52, s52, s54
    s_cmp_ge_u32 s52, 20
    s_cselect_b32 s54, 20, 0
    s_sub_u32 s52, s52, s54
    s_mov_b32 s56, s52
    s_mul_i32 s46, s37, {128*1280}
    s_lshl_b32 s54, s52, 6
    s_add_u32 s46, s46, s54
    s_lshl_b32 s47, s38, 8
    s_mul_i32 s54, s52, {32*3840}
    s_add_u32 s47, s47, s54
    s_mov_b32 s48, 0
    s_mov_b32 s49, 0
    """)
    srd(A, 12, 24, 25, X_BYTES)
    srd(A, 16, 26, 27, W_BYTES)
    def issue(tag):
        for i in range(2):
            A(f"s_add_u32 s50, s48, s44")
            A(f"s_add_u32 m0, s50, {i*1024}")
            A(f"s_add_u32 s51, s47, {i*4*3840}")
            A(f"buffer_load_dwordx4 v{XV_+i}, s[12:15], s46 offen lds")
            A(f"s_add_u32 s50, s48, s45")
            A(f"s_add_u32 m0, s50, {i*1024}")
            A(f"s_nop 0")
            A(f"buffer_load_dwordx4 v{WV_}, s[16:19], s51 offen lds")
        A(f"""
        s_add_u32 s46, s46, 64
        s_add_u32 s47, s47, {32*3840}
        s_add_u32 s48, s48, {STK}
        s_and_b32 s48, s48, {NSK*STK - 1:#x}
        s_add_u32 s56, s56, 1
        s_cmp_eq_u32 s56, 20
        s_cselect_b32 s54, {20*64}, 0
        s_sub_u32 s46, s46, s54
        s_cmp_eq_u32 s56, 20
        s_cselect_b32 s54, {20*32*3840}, 0
        s_sub_u32 s47, s47, s54
        s_cmp_eq_u32 s56, 20
        s_cselect_b32 s56, 0, s56
        s_add_u32 s49, s49, 1
        s_cmp_eq_u32 s49, 20
        s_cbranch_scc0 {name}_lk_{tag}
        """)
        srd(A, 12, 20, 21, X_BYTES)
        srd(A, 16, 22, 23, W_BYTES)
        A(f"{name}_lk_{tag}:")
    for k in range(DEP): issue(f"p{k}")
    stamp(A, 1)
    A(f"""
    s_waitcnt vmcnt({4*(DEP-1)})
    s_barrier
    s_mov_b32 s52, 0
    {name}_lkloop:
    s_waitcnt vmcnt({4*(DEP-2)})
    s_barrier
    """)
    issue("lp")
    A(f"""
    s_add_u32 s52, s52, 1
    s_cmp_lt_u32 s52, {40 - DEP}
    s_cbranch_scc1 {name}_lkloop
    """)
    EARLY = int(os.environ.get("EARLY", "38"))
    import fused2
    A(f"s_mov_b32 s54, {FBW}")
    tile_flags_voff(A, 7)
    for b in range(41 - DEP, 41):
        left = max(0, 39 - b)
        if b < EARLY: A(f"s_waitcnt vmcnt({4*left})")
        elif b == EARLY: A("s_waitcnt vmcnt(0)")
        if b == EARLY - 1:
            pass
        A("s_barrier")
        if b == EARLY - 2:
            A("s_mov_b32 exec_lo, 0xffffff\ns_mov_b32 exec_hi, 0")
            flag_issue(A, 7, 54, 16)
            A("s_mov_b64 exec, -1")
        if b == EARLY:
            L = A.new("ea")
            A("s_mov_b32 s63, 0")
            A(f"v_and_b32 v16, v16, v17\nv_and_b32 v18, v18, v19\nv_and_b32 v16, v16, v18\nv_cmp_eq_u32 vcc, 1, v16\ns_and_b32 s58, vcc_lo, 0xffffff\ns_cmp_eq_u32 s58, 0xffffff")
            A(f"s_cbranch_scc0 {L}")
            A("s_mov_b32 s63, 1")
            p2_stage_dma(A, 0)
            p2_q_dma(A)
            A(f"{L}:")
            fused2.kv_dma_setup(A)
    L = A.new("eb")
    A(f"""
    s_cmp_eq_u32 s63, 1
    s_cbranch_scc1 {L}
    s_mov_b32 s54, {FBW}
    s_mov_b32 exec_lo, 0xffffff
    s_mov_b32 exec_hi, 0
    """)
    stamp(A, 7)
    poll_ws(A, 7, 54, 16, NTF)
    stamp(A, 8)
    A("s_mov_b64 exec, -1")
    p2_stage_dma(A, 0)
    p2_q_dma(A)
    A(f"""
    {L}:
    s_waitcnt vmcnt(0)
    s_barrier
    """)

def p1k_compute(A, name, orient):
    tag = f"{name}_k{orient}"
    XA_, WA_, EA_ = 4, 8, 128
    FB_ = [16, 32]
    T = 144
    def reads(q, kk, b):
        hi = q // 4; so = (q % 4) * STK; b = FB_[b]
        xa = XA_ + 2*hi + kk; wa = WA_ + 2*hi
        L = [f"ds_read_b128 {v(b,4)}, v{xa} offset:{so}"]
        for jj in range(2): L.append(f"ds_read_b64_tr_b16 {v(b+8+2*jj,2)}, v{wa} offset:{so+kk*4096+jj*1024}")
        L.append(f"ds_read_b128 {v(b+4,4)}, v{xa} offset:{so+2048}")
        for jj in range(2): L.append(f"ds_read_b64_tr_b16 {v(b+12+2*jj,2)}, v{wa+1} offset:{so+kk*4096+jj*1024}")
        return L
    def mf(b):
        b = FB_[b]; L = []
        for nt in range(2):
            for s_ in range(2):
                X = v(b+4*s_,4); W = v(b+8+4*nt,4)
                if orient == "T":
                    D = v(ACC+16*(2*nt+s_),16); L.append(f"v_mfma_f32_32x32x16_bf16 {D}, {W}, {X}, {D}")
                else:
                    D = v(ACC+16*(2*s_+nt),16); L.append(f"v_mfma_f32_32x32x16_bf16 {D}, {X}, {W}, {D}")
        return L
    def step(M, R):
        R = list(R)
        for m in M:
            A(m)
            for _ in range(3):
                if R: A(R.pop(0))
    A(f"""
    s_lshr_b32 s44, s35, 1
    s_lshl_b32 s44, s44, 6
    v_add_u32 v18, s44, v3
    v_lshlrev_b32 v18, 6, v18
    v_add_u32 v18, {R1}, v18
    v_lshrrev_b32 v19, 2, v3
    v_and_b32 v19, 3, v19
    v_xor_b32 v19, v19, v131
    v_lshlrev_b32 v20, 4, v19
    v_add_u32 v{XA_}, v18, v20
    v_xor_b32 v19, 2, v19
    v_lshlrev_b32 v20, 4, v19
    v_add_u32 v{XA_+1}, v18, v20
    v_add_u32 v{XA_+2}, 65536, v{XA_}
    v_add_u32 v{XA_+3}, 65536, v{XA_+1}
    v_lshrrev_b32 v16, 2, v1
    v_and_b32 v16, 3, v16
    v_lshlrev_b32 v18, 11, v131
    v_lshlrev_b32 v19, 8, v16
    v_add_u32 v18, v18, v19
    v_lshrrev_b32 v19, 4, v1
    v_and_b32 v19, 1, v19
    v_lshlrev_b32 v19, 5, v19
    v_add_u32 v18, v18, v19
    v_and_b32 v19, 3, v1
    v_lshlrev_b32 v19, 3, v19
    v_add_u32 v18, v18, v19
    v_add_u32 v18, {R1 + 8192}, v18
    s_and_b32 s44, s35, 1
    s_lshl_b32 s44, s44, 1
    """)
    for nt in range(2):
        A(f"""
        s_add_u32 s45, s44, {nt}
        v_xor_b32 v19, s45, v16
        v_lshlrev_b32 v19, 6, v19
        v_add_u32 v{WA_+nt}, v18, v19
        v_add_u32 v{WA_+2+nt}, 65536, v{WA_+nt}
        """)
    if orient == "T":
        A(f"""
        s_lshl_b32 s44, s38, 4
        s_and_b32 s45, s35, 1
        s_lshl_b32 s45, s45, 3
        s_add_u32 s44, s44, s45
        v_add_u32 v{T}, s44, v131
        v_lshlrev_b32 v{T}, 15, v{T}
        s_lshl_b32 s44, s37, 7
        s_lshr_b32 s45, s35, 1
        s_lshl_b32 s45, s45, 6
        s_add_u32 s44, s44, s45
        v_add_u32 v{T+1}, s44, v3
        v_lshlrev_b32 v{T+1}, 4, v{T+1}
        v_add_u32 v{EA_}, v{T}, v{T+1}
        s_mov_b32 s61, {BR + QKOFF}
        s_mov_b32 s62, 1.0
        s_cmp_lt_u32 s38, 5
        s_cselect_b32 s62, {QSCALE:#x}, s62
        """)
    else:
        A(f"""
        s_sub_u32 s44, s38, 10
        s_lshl_b32 s44, s44, 7
        s_and_b32 s45, s35, 1
        s_lshl_b32 s45, s45, 6
        s_add_u32 s44, s44, s45
        s_mul_i32 s61, s37, {VC}
        s_add_u32 s61, s61, {BR + VOFF}
        s_lshr_b32 s45, s35, 1
        s_mul_i32 s45, s45, {4*640}
        s_add_u32 s61, s61, s45
        v_mul_u32_u24 v{T}, 320, v131
        s_mov_b32 s45, {VH}
        """)
        for nt in range(2):
            A(f"""
            v_add_u32 v{T+1}, s44, v3
            v_add_u32 v{T+1}, {32*nt}, v{T+1}
            v_mul_u32_u24 v{T+2}, 3277, v{T+1}
            v_lshrrev_b32 v{T+2}, 16, v{T+2}
            v_mul_u32_u24 v{T+3}, 20, v{T+2}
            v_sub_u32 v{T+3}, v{T+1}, v{T+3}
            v_lshlrev_b32 v{T+3}, 4, v{T+3}
            v_mul_lo_u32 v{T+2}, v{T+2}, s45
            v_add3_u32 v{EA_+nt}, v{T+2}, v{T+3}, v{T}
            """)
    for i in range(64): A(f"v_mov_b32 v{ACC+i}, 0")
    stamp(A, 1)
    A("s_mov_b32 s63, 0")
    A("s_barrier")
    stamp(A, 2)
    for l in reads(0, 0, 0): A(l)
    A("s_mov_b32 s46, 0")
    A(f"{tag}_loop:")
    SG = int(os.environ.get("SIGK", "22")); SGI, SGQ = SG // 8, SG % 8
    for q in range(8):
        qq = q % NSK
        A("s_waitcnt lgkmcnt(0)")
        step(mf(0), reads(qq, 1, 1))
        if q == SGQ:
            A(f"s_cmp_eq_u32 s46, {SGI}")
            A(f"s_cbranch_scc1 {tag}_vm")
            A(f"{tag}_vmr:")
        A("s_waitcnt lgkmcnt(0)")
        A("s_barrier")
        M = mf(1)
        step(M, reads((q + 1) % NSK, 0, 0))
        if q == SGQ:
            A(f"s_cmp_eq_u32 s46, {SGI}")
            A(f"s_cbranch_scc1 {tag}_sig")
            A(f"{tag}_sigr:")
        if q == 0:
            A(f"s_cmp_eq_u32 s46, 1")
            A(f"s_cbranch_scc1 {tag}_fp")
            A(f"{tag}_fpr:")
        if q == 3:
            A(f"s_cmp_eq_u32 s46, 2")
            A(f"s_cbranch_scc1 {tag}_epi")
            A(f"{tag}_epir:")
        if q == 7:
            A("s_add_u32 s46, s46, 1")
            A("s_cmp_lt_u32 s46, 5")
            A(f"s_cbranch_scc1 {tag}_loop")
    stamp(A, 3)
    A(f"{tag}_epi:")
    A("s_waitcnt lgkmcnt(0)")
    n = 0
    if orient == "T":
        for nt in range(2):
            for s_ in range(2):
                r0 = ACC+16*(2*nt+s_)
                for ip in range(2):
                    t_ = T + 4*(n % 4); n += 1
                    for e in range(8): A(f"v_mul_f32 v{r0+8*ip+e}, s62, v{r0+8*ip+e}")
                    for e in range(4): A(f"v_cvt_pk_bf16_f32 v{t_+e}, v{r0+8*ip+2*e}, v{r0+8*ip+2*e+1}")
                    A(f"s_add_u32 s55, s61, {(4*nt+2*ip)*QKG + s_*512}")
                    A(f"v_permlane32_swap_b32 v{t_}, v{t_+2}")
                    A(f"v_permlane32_swap_b32 v{t_+1}, v{t_+3}")
                    A(f"buffer_store_dwordx4 {v(t_,4)}, v{EA_}, s[8:11], s55 offen sc1")
    else:
        for nt in range(2):
            for s_ in range(2):
                for m in range(2):
                    r0 = ACC+16*(2*s_+nt)+8*m
                    t_ = T + 4*((2*s_+m) % 4)
                    for e in range(4): A(f"v_cvt_pk_bf16_f32 v{t_+e}, v{r0+2*e}, v{r0+2*e+1}")
                    A(f"buffer_store_dwordx4 {v(t_,4)}, v{EA_+nt}, s[8:11], s61 offen offset:{(2*s_+m)*640} sc1")
    A(f"""
    s_cmp_eq_u32 s63, 1
    s_cbranch_scc1 {tag}_fin
    s_mov_b32 s63, 1
    s_sub_u32 s61, s61, {BR:#x}
    s_mov_b32 s62, 1.0
    """)
    stamp(A, 5)
    for i in range(64): A(f"v_mov_b32 v{ACC+i}, 0")
    A(f"s_branch {tag}_epir")
    A(f"{tag}_fin:")
    import fused2
    fused2.kv_dma_setup(A)
    A(f"s_branch {name}_cdone")
    A(f"{tag}_vm:")
    A("s_waitcnt vmcnt(0)")
    A(f"s_branch {tag}_vmr")
    A(f"{tag}_fp:")
    A(f"""
    s_cmp_eq_u32 s32, 0
    s_cbranch_scc0 {tag}_fpr
    v_mov_b32 v160, {FPREP*4}
    global_load_dword v161, v160, s[4:5] sc1
    s_branch {tag}_fpr
    {tag}_sig:
    s_cmp_eq_u32 s32, 0
    s_cbranch_scc0 {tag}_sigr
    """)
    stamp(A, 7)
    L = A.new("cp")
    A(f"""
    v_readfirstlane_b32 s58, v161
    s_cmp_ge_u32 s58, 16
    s_cbranch_scc1 {L}
    """)
    check_prep(A, 160, 161)
    A(f"""
    {L}:
    s_lshl_b32 s54, s38, 7
    s_lshl_b32 s55, s37, 2
    s_add_u32 s54, s54, s55
    s_add_u32 s54, s54, {FBW}
    """)
    set_flag_ws(A, 54, 160, 161)
    A(f"s_branch {tag}_sigr")

def p1_prep(A, name):
    A.c("prep WGs")
    A(f"""
    s_lshl_b32 s69, s65, 2
    s_add_u32 s69, s69, s64
    s_sub_u32 s69, s69, 28
    s_cmp_ge_u32 s32, 3
    s_cbranch_scc1 {name}_prep_done
    """)
    srd(A, 12, 28, 29, 32*20*20*2)
    A(f"""
    s_cmp_eq_u32 s32, 2
    s_cbranch_scc1 {name}_sel
    s_lshl_b32 s44, s69, 1
    s_add_u32 s44, s44, s32
    v_subrev_u32 v4, 2, v3
    v_cmp_gt_u32 vcc, 18, v3
    v_cndmask_b32 v4, v4, v3, vcc
    v_and_b32 v5, 30, v3
    v_cmp_eq_u32 s[46:47], 20, v5
    s_or_b64 s[46:47], s[46:47], vcc
    v_lshlrev_b32 v4, 1, v4
    s_mul_i32 s45, s44, 800
    v_add_u32 v4, s45, v4
    s_and_b32 s45, s44, 1
    s_mul_i32 s48, s45, {4*40}
    v_mul_u32_u24 v5, {8*40}, v131
    v_add3_u32 v5, v4, v5, s48
    v_mov_b32 v6, 0x7fffffff
    v_cndmask_b32 v5, v6, v5, s[46:47]
    v_cmp_eq_u32 vcc, 0, v131
    s_and_b64 s[46:47], s[46:47], vcc
    s_cmp_eq_u32 s45, 1
    s_cselect_b32 s48, 0, {16*40}
    v_add_u32 v4, s48, v4
    v_cndmask_b32 v4, v6, v4, s[46:47]
    """)
    for j in range(8): A(f"buffer_load_ushort v{16+j}, v5, s[12:15], 0 offen offset:{40*j}")
    for j in range(4): A(f"buffer_load_ushort v{24+j}, v4, s[12:15], 0 offen offset:{40*j}")
    A("s_waitcnt vmcnt(0)")
    for j in range(12):
        A(f"v_lshlrev_b32 v{16+j}, 16, v{16+j}")
        A(f"v_mul_f32 v{16+j}, {LOG2E:#x}, v{16+j}")
    for j in range(6): A(f"v_cvt_pk_bf16_f32 v{32+j}, v{16+2*j}, v{17+2*j}")
    A(f"""
    s_mul_i32 s45, s44, 1536
    s_add_u32 s45, s45, {WPH}
    v_lshlrev_b32 v7, 3, v1
    buffer_store_dwordx4 v[32:35], v2, s[8:11], s45 offen sc1
    buffer_store_dwordx2 v[36:37], v7, s[8:11], s45 offen offset:1024 sc1
    s_branch {name}_prep_done
    {name}_sel:
    s_cmp_lg_u32 s69, 0
    s_cbranch_scc1 {name}_prep_done
    v_lshlrev_b32 v4, 2, v131
    v_sub_u32 v4, v3, v4
    """)
    for j in range(12):
        tgt = (8*(j//4) + (j%4)) if j < 8 else 16 + (j-8)
        A(f"""
        v_cmp_eq_u32 vcc, {tgt}, v4
        v_mov_b32 v5, 0x3f80
        v_cndmask_b32 v{16+j}, 0, v5, vcc
        """)
    for j in range(6): A(f"v_lshl_or_b32 v{32+j}, v{17+2*j}, 16, v{16+2*j}")
    A(f"""
    s_mov_b32 s45, {SEL}
    v_lshlrev_b32 v7, 3, v1
    buffer_store_dwordx4 v[32:35], v2, s[8:11], s45 offen sc1
    buffer_store_dwordx2 v[36:37], v7, s[8:11], s45 offen offset:1024 sc1
    v_mov_b32 v40, 0
    v_mov_b32 v41, 0
    v_mov_b32 v42, 0
    v_mov_b32 v43, 0
    """)
    for j in range(FZERO_BYTES // 1024):
        A(f"s_mov_b32 s45, {FZERO_LO + j*1024}")
        A(f"buffer_store_dwordx4 v[40:43], v2, s[8:11], s45 offen sc1")
    A(f"""
    {name}_prep_done:
    """)
    stamp(A, 1)
    A(f"""
    s_load_dwordx2 s[44:45], s[0:1], 24
    s_load_dwordx2 s[46:47], s[0:1], 48
    s_waitcnt lgkmcnt(0)
    """)
    srd(A, 12, 44, 45, WO_BYTES)
    srd(A, 16, 46, 47, WO_BYTES)
    for i in range(13):
        L = A.new("wr")
        tv = 64 + 4 * i
        A(f"""
        s_add_u32 s48, s32, {8*i}
        s_cmp_ge_u32 s48, 100
        s_cbranch_scc1 {L}
        s_mul_i32 s49, s48, 205
        s_lshr_b32 s49, s49, 11
        s_mul_i32 s50, s49, 10
        s_sub_u32 s50, s48, s50
        s_mul_i32 s51, s69, 10
        s_add_u32 s49, s49, s51
        s_lshl_b32 s50, s50, 6
        v_add_u32 v10, s50, v1
        v_lshrrev_b32 v11, 5, v10
        v_mul_u32_u24 v12, 205, v11
        v_lshrrev_b32 v12, 11, v12
        v_mul_u32_u24 v13, 10, v12
        v_sub_u32 v11, v11, v13
        v_mul_u32_u24 v13, 52, v11
        v_lshrrev_b32 v13, 8, v13
        v_mul_u32_u24 v14, 5, v13
        v_sub_u32 v11, v11, v14
        v_lshlrev_b32 v12, 5, v12
        v_lshlrev_b32 v13, 2, v13
        v_add_u32 v12, v12, v13
        v_lshrrev_b32 v13, 3, v10
        v_and_b32 v13, 3, v13
        v_lshlrev_b32 v13, 3, v13
        v_add_u32 v12, v12, v13
        v_lshrrev_b32 v13, 1, v10
        v_and_b32 v13, 3, v13
        v_add_u32 v12, v12, v13
        v_mul_u32_u24 v12, 1280, v12
        v_lshlrev_b32 v11, 5, v11
        v_and_b32 v13, 1, v10
        v_lshlrev_b32 v13, 4, v13
        v_add3_u32 v10, v12, v11, v13
        s_cmp_ge_u32 s49, 80
        s_cselect_b32 s51, 80, 0
        s_sub_u32 s51, s49, s51
        s_mul_i32 s52, s51, 205
        s_lshr_b32 s52, s52, 11
        s_mul_i32 s54, s52, 10
        s_sub_u32 s54, s51, s54
        s_mul_i32 s54, s54, {64*1280}
        s_mul_i32 s52, s52, 160
        s_add_u32 s54, s54, s52
        s_cmp_ge_u32 s49, 80
        s_cbranch_scc1 {L}_b
        buffer_load_dwordx4 {v(tv,4)}, v10, s[12:15], s54 offen
        s_branch {L}
        {L}_b:
        buffer_load_dwordx4 {v(tv,4)}, v10, s[16:19], s54 offen
        {L}:
        """)
    stamp(A, 2)
    A("s_waitcnt vmcnt(0)")
    stamp(A, 3)
    for i in range(13):
        L = A.new("ws")
        tv = 64 + 4 * i
        A(f"""
        s_add_u32 s48, s32, {8*i}
        s_cmp_ge_u32 s48, 100
        s_cbranch_scc1 {L}
        s_mul_i32 s49, s69, 100
        s_add_u32 s49, s49, s48
        s_lshl_b32 s49, s49, 10
        s_add_u32 s49, s49, {WOP}
        buffer_store_dwordx4 {v(tv,4)}, v2, s[8:11], s49 offen sc1
        {L}:
        """)
    A("s_waitcnt vmcnt(0)")
    stamp(A, 7)
    A(f"""
    s_cmp_eq_u32 s36, 0
    s_cbranch_scc0 {name}_prep_npf
    """)
    prefetch_share(A, 20, 21, 22, 23, 4, 35)
    A(f"""
    {name}_prep_npf:
    s_barrier
    s_cmp_eq_u32 s32, 4
    s_cbranch_scc0 {name}_prep_w
    s_mov_b32 s50, {FPREP}
    """)
    signal_dbg(A, 50, 48, 49)
    check_prep(A, 48, 49)
    A(f"s_mov_b32 s50, {FBW}")
    tile_flags_voff(A, 7)
    A("s_mov_b32 exec_lo, 0xffffff\ns_mov_b32 exec_hi, 0")
    poll_ws(A, 7, 50, 16, NTF, sleep=32)
    A("s_mov_b64 exec, -1")
    stage0_all(A)
    A(f"""
    s_waitcnt vmcnt(0)
    {name}_prep_w:
    """)
    import fused2
    fused2.kv_dma_setup(A)
    A(f"""
    s_barrier
    s_branch {name}_p2entry
    """)

def code_prefetch(A, name, nblk=6):
    if os.environ.get("CODEPF", "1") != "1": return
    L = A.new("cpf")
    A(f"""
    s_cmp_eq_u32 s32, 7
    s_cbranch_scc0 {L}
    s_and_b32 s54, s64, {int(os.environ.get("CPFMASK", "15"))}
    s_cmp_eq_u32 s54, 0
    s_cbranch_scc0 {L}
    s_getpc_b64 s[54:55]
    {L}_pc:
    s_sub_u32 s54, s54, {L}_pc-{name}
    s_subb_u32 s55, s55, 0
    s_mov_b32 s56, {name}_end-{name}
    v_lshlrev_b32 v228, 7, v1
    """)
    for i in range(nblk):
        A(f"""
        v_cmp_gt_u32 vcc, s56, v228
        s_and_b64 exec, vcc, vcc
        s_cbranch_execz {L}_x
        global_load_dword v229, v228, s[54:55]
        v_add_u32 v228, 8192, v228
        """)
    A(f"""
    {L}_x:
    s_mov_b64 exec, -1
    {L}:
    """)

def tlb_warm(A, name):
    mode = os.environ.get("TLBW", "0")
    if mode == "0": return
    L = A.new("tw")
    A(f"""
    s_cmp_eq_u32 s32, 6
    s_cbranch_scc0 {L}
    s_cmp_ge_u32 s64, {32 - int(os.environ.get("TLBN", "1"))}
    s_cbranch_scc0 {L}
    s_load_dwordx2 s[44:45], s[0:1], 24
    s_load_dwordx2 s[46:47], s[0:1], 48
    s_load_dwordx2 s[48:49], s[0:1], 56
    v_lshlrev_b32 v230, 16, v1
    s_waitcnt lgkmcnt(0)
    """)
    for (lo, hi, sz) in ((20, 21, X_BYTES), (22, 23, W_BYTES), (24, 25, X_BYTES), (26, 27, W_BYTES), (44, 45, WO_BYTES), (46, 47, WO_BYTES)):
        srd(A, 12, lo, hi, sz)
        A("buffer_load_dword v231, v230, s[12:15], 0 offen")
    srd(A, 12, 48, 49, OUT_BYTES)
    A("buffer_load_dword v231, v230, s[12:15], 0 offen")
    A("s_mov_b32 s50, 0x400000")
    A("buffer_load_dword v231, v230, s[12:15], s50 offen")
    for i in range(8):
        A(f"s_mov_b32 s50, {i*0x400000:#x}")
        A("buffer_load_dword v231, v230, s[8:11], s50 offen")
    A(f"{L}:")

def gen_fused(A, name):
    kernel_begin(A, name)
    stamp(A, 10, real=True)
    gen_common(A, name)
    stamp(A, 0)
    tlb_warm(A, name)
    code_prefetch(A, name)
    prefetch_share(A, 24, 25, 26, 27, 8, 32)
    A(f"""
    s_cmp_eq_u32 s31, 1
    s_cbranch_scc1 {name}_prep
    s_cmp_eq_u32 s36, 1
    s_cbranch_scc1 {name}_loader
    """)
    if os.environ.get("XP") == "nobar": A("s_endpgm")
    K32 = os.environ.get("P1K", "32") == "32"
    if not K32: p1_compute_setup(A)
    A(f"""
    s_cmp_ge_u32 s38, 10
    s_cbranch_scc1 {name}_compN
    """)
    (p1k_compute if K32 else p1_compute)(A, name, "T")
    A(f"{name}_compN:")
    (p1k_compute if K32 else p1_compute)(A, name, "N")
    A(f"{name}_cdone:")
    A("s_barrier")
    A(f"s_branch {name}_p2entry")
    A(f"{name}_prep:")
    p1_prep(A, name)
    A(f"{name}_loader:")
    (p1k_loader if os.environ.get("P1K", "32") == "32" else p1_loader)(A, name)
    A(f"{name}_p2entry:")
    stamp(A, 4)
    if STOP_AFTER == "P1":
        A("s_waitcnt vmcnt(0)")
        stamp(A, 9)
        stamp(A, 11, real=True)
        stamp_flush(A, 12, 0, 32, base=70)
        A("s_endpgm")
    else:
        import fused2
        fused2.gen_p2(A, name)
    A(f"{name}_done:")
    A("s_endpgm")
    A(f"{name}_end:")
    return kernel_desc(name, 256)
```

```python
import os
from asmlib import *
from layout2 import *
import fused
from fused import (flag_issue, flag_check, poll_ws, set_flag_ws, check_prep, tile_flags_voff, p2_stage_dma, frag_addr, QA_M, QB_M, QA_R, QB_R, SPIN_MAX, STOP_AFTER)

S0, S1, P0, P1, OA, OB = 16, 32, 48, 56, 64, 80
SETS = [dict(km=96, kr=100, v0=104, v1=108), dict(km=112, kr=116, v0=120, v1=124)]
AKM, AKR, AV = 128, 129, 130
NKM, NKR, NV = 133, 134, 135
PHQ = 136
KXM, KXR, QXR, VX0, VX1, WM, WR, SL16, SL8, QXM = 148, 152, 154, 156, 160, 164, 168, 172, 176, 180
KVL = 148
T0, T1, T2, T3 = 184, 185, 186, 187
DD, TT, PK, TB = 192, 208, 232, 244
FV, FT = 188, 248
KVF = 4 * SLOT
KVX = 98304
XO = 0

def mf16(A, D, a_, b_, C=None):
    A(f"v_mfma_f32_32x32x16_bf16 {v(D,16)}, {v(a_,4)}, {v(b_,4)}, {v(D,16) if C is None else C}")
def mf8(A, D, a_, b_, C=None):
    A(f"v_mfma_f32_32x32x8_bf16 {v(D,16)}, {v(a_,2)}, {v(b_,2)}, {v(D,16) if C is None else C}")

def phi(A, xm, xr, wm, wr, D, T, out):
    mf16(A, D, wm, xm, "0")
    mf8(A, D, wr, xr)
    mx, mn, t = T, T+1, T+2
    A(f"v_max3_f32 v{mx}, v{D}, v{D+1}, v{D+2}")
    A(f"v_min3_f32 v{mn}, v{D}, v{D+1}, v{D+2}")
    for r in (3, 5, 7):
        A(f"v_max3_f32 v{mx}, v{mx}, v{D+r}, v{D+r+1}")
        A(f"v_min3_f32 v{mn}, v{mn}, v{D+r}, v{D+r+1}")
    A(f"v_max_f32 v{mx}, v{mx}, v{D+9}")
    A(f"v_min_f32 v{mn}, v{mn}, v{D+9}")
    A(f"v_mov_b32 v{t}, v{mx}")
    A(f"v_mov_b32 v{t+1}, v{mn}")
    A(f"v_permlane32_swap_b32 v{mx}, v{t}")
    A(f"v_permlane32_swap_b32 v{mn}, v{t+1}")
    A(f"v_max_f32 v{mx}, v{mx}, v{t}")
    A(f"v_min_f32 v{mn}, v{mn}, v{t+1}")
    A(f"v_mul_f32 v{mx}, s41, v{mx}")
    A(f"v_mul_f32 v{mn}, s40, v{mn}")
    EP, EN = T+4, T+14
    for r in range(10):
        A(f"v_fma_f32 v{EP+r}, v{D+r}, s40, v{mx}")
        A(f"v_fma_f32 v{EN+r}, v{D+r}, s41, v{mn}")
    for r in range(10):
        A(f"v_exp_f32 v{EP+r}, v{EP+r}")
        A(f"v_exp_f32 v{EN+r}, v{EN+r}")
    sp, sn = T, T+1
    A(f"v_add_f32 v{sp}, v{EP}, v{EP+1}")
    A(f"v_add_f32 v{sn}, v{EN}, v{EN+1}")
    for r in range(2, 10):
        A(f"v_add_f32 v{sp}, v{sp}, v{EP+r}")
        A(f"v_add_f32 v{sn}, v{sn}, v{EN+r}")
    A(f"v_mov_b32 v{t}, v{sp}")
    A(f"v_mov_b32 v{t+1}, v{sn}")
    A(f"v_permlane32_swap_b32 v{sp}, v{t}")
    A(f"v_permlane32_swap_b32 v{sn}, v{t+1}")
    A(f"v_add_f32 v{sp}, v{sp}, v{t}")
    A(f"v_add_f32 v{sn}, v{sn}, v{t+1}")
    A(f"v_rcp_f32 v{sp}, v{sp}")
    A(f"v_rcp_f32 v{sn}, v{sn}")
    for r in range(10):
        A(f"v_mul_f32 v{EP+r}, v{EP+r}, v{sp}")
        A(f"v_mul_f32 v{EN+r}, v{EN+r}, v{sn}")
    for i in range(4):
        A(f"v_cvt_pk_bf16_f32 v{out+i}, v{EP+2*i}, v{EP+2*i+1}")
        A(f"v_cvt_pk_bf16_f32 v{out+6+i}, v{EN+2*i}, v{EN+2*i+1}")
    A(f"v_cvt_pk_bf16_f32 v{out+4}, v{EP+8}, v{EP+9}")
    A(f"v_cvt_pk_bf16_f32 v{out+10}, v{EN+8}, v{EN+9}")
    A(f"v_mov_b32 v{out+5}, 0")
    A(f"v_mov_b32 v{out+11}, 0")

def phase(A, Sc, Pc, Sn, qm, qr, kset, Oprev, Pprev, vset, do_qk=True, do_pv=True, do_exp=True, pre=None):
    pre = list(pre or [])
    def ex(i):
        if do_exp: A(f"v_exp_f32 v{Sc+i}, v{Sc+i}")
    def cv(i):
        if do_exp: A(f"v_cvt_pk_bf16_f32 v{Pc+i}, v{Sc+2*i}, v{Sc+2*i+1}")
    def sprinkle(n):
        for _ in range(n):
            if pre:
                for l in pre.pop(0): A(l)
    if do_qk: mf16(A, Sn, kset['km'], qm, "0")
    sprinkle(1)
    for i in range(0, 4): ex(i)
    if do_qk: mf8(A, Sn, kset['kr'], qr)
    sprinkle(1)
    for i in range(4, 8): ex(i)
    cv(0); cv(1)
    if do_pv: mf16(A, Oprev, vset['v0'], Pprev)
    for i in range(8, 12): ex(i)
    cv(2); cv(3)
    if do_pv: mf16(A, Oprev, vset['v1'], Pprev + 4)
    for i in range(12, 16): ex(i)
    cv(4); cv(5)
    sprinkle(8)
    cv(6); cv(7)

def o_addr(A, vd):
    A(f"""
    s_mul_i32 s55, s33, 20
    v_lshlrev_b32 v{vd}, 2, v131
    v_add_u32 v{vd}, s55, v{vd}
    v_and_b32 v{vd+1}, 7, v{vd}
    v_lshlrev_b32 v{vd+1}, 1, v{vd+1}
    v_lshrrev_b32 v{vd}, 3, v{vd}
    v_lshlrev_b32 v{vd}, 10, v{vd}
    v_add_u32 v{vd}, v{vd}, v{vd+1}
    s_lshl_b32 s55, s36, 5
    v_add_u32 v{vd+1}, s55, v3
    v_lshlrev_b32 v{vd+1}, 4, v{vd+1}
    v_add_u32 v{vd}, v{vd}, v{vd+1}
    s_lshl_b32 s55, s34, 2
    s_add_u32 s55, s55, s35
    s_mul_i32 s55, s55, {ORB}
    s_add_u32 s55, s55, {OOFF}
    """)
def store_o(A, R, tmp, vaddr, soff):
    for i in range(3):
        A(f"v_cvt_pk_bf16_f32 v{tmp+2*i}, v{R+4*i}, v{R+4*i+1}")
        A(f"v_cvt_pk_bf16_f32 v{tmp+1+2*i}, v{R+4*i+2}, v{R+4*i+3}")
    A(f"buffer_store_dwordx2 {v(tmp,2)}, v{vaddr}, s[8:11], s{soff} offen sc1")
    A(f"buffer_store_dwordx2 {v(tmp+2,2)}, v{vaddr}, s[8:11], s{soff} offen offset:1024 sc1")
    A("s_mov_b32 exec_hi, 0")
    A(f"buffer_store_dwordx2 {v(tmp+4,2)}, v{vaddr}, s[8:11], s{soff} offen offset:2048 sc1")
    A("s_mov_b64 exec, -1")
def fo_flag(A, br):
    A(f"""
    s_lshl_b32 s56, s34, 2
    s_add_u32 s56, s56, s35
    s_lshl_b32 s56, s56, 8
    s_lshl_b32 s57, s33, 3
    s_add_u32 s56, s56, s57
    s_lshl_b32 s57, s36, 2
    s_add_u32 s56, s56, s57
    s_add_u32 s56, s56, {FO + br*8192}
    """)
    set_flag_ws(A, 56, T0, T1)

def a_loads(A):
    frag_addr(A, T0, T1)
    A(f"""
    s_lshl_b32 s56, s34, 8
    s_lshl_b32 s57, s32, 5
    s_add_u32 s57, s57, s56
    s_lshl_b32 s57, s57, 4
    s_add_u32 s57, s57, {QKOFF}
    s_add_u32 s58, s66, 80
    s_lshl_b32 s58, s58, 15
    s_add_u32 s58, s58, s57
    buffer_load_dwordx4 {v(KXM,4)}, v{T0}, s[8:11], s58 offen sc1
    s_add_u32 s58, s67, 80
    s_lshl_b32 s58, s58, 15
    s_add_u32 s58, s58, s57
    buffer_load_dwordx2 {v(KXR,2)}, v{T1}, s[8:11], s58 offen sc1
    s_lshl_b32 s57, s35, 1
    s_add_u32 s57, s57, s36
    s_lshl_b32 s57, s57, 5
    s_add_u32 s57, s57, s56
    s_lshl_b32 s57, s57, 4
    s_add_u32 s57, s57, {QKOFF}
    s_lshl_b32 s58, s66, 15
    s_add_u32 s58, s58, s57
    buffer_load_dwordx4 {v(QXM,4)}, v{T0}, s[8:11], s58 offen sc1
    s_lshl_b32 s58, s67, 15
    s_add_u32 s58, s58, s57
    buffer_load_dwordx2 {v(QXR,2)}, v{T1}, s[8:11], s58 offen sc1
    v_mov_b32 v{T2}, 0x3f803f80
    v_cmp_eq_u32 vcc, 20, v3
    v_cndmask_b32 v{T2}, 0, v{T2}, vcc
    """)
    for r in range(VX0, VX0+8): A(f"v_mov_b32 v{r}, v{T2}")
    A(f"""
    v_mul_u32_u24 v{T2}, 320, v131
    v_lshlrev_b32 v{T3}, 4, v3
    v_add_u32 v{T2}, v{T2}, v{T3}
    s_lshl_b32 s56, s34, 1
    s_lshr_b32 s57, s32, 2
    s_add_u32 s56, s56, s57
    s_mul_i32 s56, s56, {VC}
    s_and_b32 s57, s32, 3
    s_mul_i32 s57, s57, 1280
    s_add_u32 s56, s56, s57
    s_mul_i32 s57, s33, {VH}
    s_add_u32 s56, s56, s57
    s_add_u32 s56, s56, {VOFF}
    s_mov_b64 exec, s[42:43]
    buffer_load_dwordx4 {v(VX0,4)}, v{T2}, s[8:11], s56 offen sc1
    buffer_load_dwordx4 {v(VX1,4)}, v{T2}, s[8:11], s56 offen offset:640 sc1
    s_mov_b64 exec, -1
    v_lshlrev_b32 v{T3}, 3, v1
    s_mul_i32 s56, s33, 1536
    s_add_u32 s56, s56, {WPH}
    buffer_load_dwordx4 {v(WM,4)}, v2, s[8:11], s56 offen sc1
    buffer_load_dwordx2 {v(WR,2)}, v{T3}, s[8:11], s56 offen offset:1024 sc1
    s_mov_b32 s56, {SEL}
    buffer_load_dwordx4 {v(SL16,4)}, v2, s[8:11], s56 offen sc1
    buffer_load_dwordx2 {v(SL8,2)}, v{T3}, s[8:11], s56 offen offset:1024 sc1
    """)

def phi_list(xm, xr, wm, wr, D, EN, out):
    L = []
    mx, mn, t, u = D+10, D+11, D+12, D+13
    L.append(f"v_mfma_f32_32x32x16_bf16 {v(D,16)}, {v(wm,4)}, {v(xm,4)}, 0")
    L.append(f"v_mfma_f32_32x32x8_bf16 {v(D,16)}, {v(wr,2)}, {v(xr,2)}, {v(D,16)}")
    L.append(f"v_max3_f32 v{mx}, v{D}, v{D+1}, v{D+2}")
    L.append(f"v_min3_f32 v{mn}, v{D}, v{D+1}, v{D+2}")
    for r in (3, 5, 7):
        L.append(f"v_max3_f32 v{mx}, v{mx}, v{D+r}, v{D+r+1}")
        L.append(f"v_min3_f32 v{mn}, v{mn}, v{D+r}, v{D+r+1}")
    L.append(f"v_max_f32 v{mx}, v{mx}, v{D+9}")
    L.append(f"v_min_f32 v{mn}, v{mn}, v{D+9}")
    L.append(f"v_mov_b32 v{t}, v{mx}")
    L.append(f"v_mov_b32 v{u}, v{mn}")
    L.append(f"v_permlane32_swap_b32 v{mx}, v{t}")
    L.append(f"v_permlane32_swap_b32 v{mn}, v{u}")
    L.append(f"v_max_f32 v{mx}, v{mx}, v{t}")
    L.append(f"v_min_f32 v{mn}, v{mn}, v{u}")
    L.append(f"v_mul_f32 v{mx}, s41, v{mx}")
    L.append(f"v_mul_f32 v{mn}, s40, v{mn}")
    for r in range(10):
        L.append(f"v_fma_f32 v{EN+r}, v{D+r}, s41, v{mn}")
        L.append(f"v_fma_f32 v{D+r}, v{D+r}, s40, v{mx}")
    for r in range(10):
        L.append(f"v_exp_f32 v{EN+r}, v{EN+r}")
        L.append(f"v_exp_f32 v{D+r}, v{D+r}")
    sp, sn = mx, mn
    L.append(f"v_add_f32 v{sp}, v{D}, v{D+1}")
    L.append(f"v_add_f32 v{sn}, v{EN}, v{EN+1}")
    for r in range(2, 10):
        L.append(f"v_add_f32 v{sp}, v{sp}, v{D+r}")
        L.append(f"v_add_f32 v{sn}, v{sn}, v{EN+r}")
    L.append(f"v_mov_b32 v{t}, v{sp}")
    L.append(f"v_mov_b32 v{u}, v{sn}")
    L.append(f"v_permlane32_swap_b32 v{sp}, v{t}")
    L.append(f"v_permlane32_swap_b32 v{sn}, v{u}")
    L.append(f"v_add_f32 v{sp}, v{sp}, v{t}")
    L.append(f"v_add_f32 v{sn}, v{sn}, v{u}")
    L.append(f"v_rcp_f32 v{sp}, v{sp}")
    L.append(f"v_rcp_f32 v{sn}, v{sn}")
    for r in range(10):
        L.append(f"v_mul_f32 v{D+r}, v{D+r}, v{sp}")
        L.append(f"v_mul_f32 v{EN+r}, v{EN+r}, v{sn}")
    for i in range(4):
        L.append(f"v_cvt_pk_bf16_f32 v{out+i}, v{D+2*i}, v{D+2*i+1}")
        L.append(f"v_cvt_pk_bf16_f32 v{out+6+i}, v{EN+2*i}, v{EN+2*i+1}")
    L.append(f"v_cvt_pk_bf16_f32 v{out+4}, v{D+8}, v{D+9}")
    L.append(f"v_cvt_pk_bf16_f32 v{out+10}, v{EN+8}, v{EN+9}")
    L.append(f"v_mov_b32 v{out+5}, 0")
    L.append(f"v_mov_b32 v{out+11}, 0")
    return L

def phi_fast(xm, xr, wm, wr, D, EN, out):
    L = []
    sp, sn, t, u = D+10, D+11, D+12, D+13
    L.append(f"v_mfma_f32_32x32x16_bf16 {v(D,16)}, {v(wm,4)}, {v(xm,4)}, 0")
    L.append(f"v_mfma_f32_32x32x8_bf16 {v(D,16)}, {v(wr,2)}, {v(xr,2)}, {v(D,16)}")
    for r in range(10):
        L.append(f"v_exp_f32 v{EN+r}, -v{D+r}")
        L.append(f"v_exp_f32 v{D+r}, v{D+r}")
    L.append(f"v_add_f32 v{sp}, v{D}, v{D+1}")
    L.append(f"v_add_f32 v{sn}, v{EN}, v{EN+1}")
    for r in range(2, 10):
        L.append(f"v_add_f32 v{sp}, v{sp}, v{D+r}")
        L.append(f"v_add_f32 v{sn}, v{sn}, v{EN+r}")
    L.append(f"v_mov_b32 v{t}, v{sp}")
    L.append(f"v_mov_b32 v{u}, v{sn}")
    L.append(f"v_permlane32_swap_b32 v{sp}, v{t}")
    L.append(f"v_permlane32_swap_b32 v{sn}, v{u}")
    L.append(f"v_add_f32 v{sp}, v{sp}, v{t}")
    L.append(f"v_add_f32 v{sn}, v{sn}, v{u}")
    L.append(f"v_max_f32 v{t}, v{sp}, v{sn}")
    L.append(f"v_min_f32 v{u}, v{sp}, v{sn}")
    L.append(f"v_rcp_f32 v{sp}, v{sp}")
    L.append(f"v_rcp_f32 v{sn}, v{sn}")
    for r in range(10):
        L.append(f"v_mul_f32 v{D+r}, v{D+r}, v{sp}")
        L.append(f"v_mul_f32 v{EN+r}, v{EN+r}, v{sn}")
    for i in range(4):
        L.append(f"v_cvt_pk_bf16_f32 v{out+i}, v{D+2*i}, v{D+2*i+1}")
        L.append(f"v_cvt_pk_bf16_f32 v{out+6+i}, v{EN+2*i}, v{EN+2*i+1}")
    L.append(f"v_cvt_pk_bf16_f32 v{out+4}, v{D+8}, v{D+9}")
    L.append(f"v_cvt_pk_bf16_f32 v{out+10}, v{EN+8}, v{EN+9}")
    L.append(f"v_mov_b32 v{out+5}, 0")
    L.append(f"v_mov_b32 v{out+11}, 0")
    return L

def a_compute(A):
    DK, ENK, DQ, ENQ, PKK = 192, 208, 218, 234, 244
    Lf = A.new("pf")
    if os.environ.get("PHIFAST", "1") == "1":
        Lk = phi_fast(KXM, KXR, WM, WR, DK, ENK, PKK)
        Lq = phi_fast(QXM, QXR, WM, WR, DQ, ENQ, PHQ)
        for a_, b_ in zip(Lk, Lq):
            A(a_); A(b_)
        A(f"""
        v_max_f32 v{DK+12}, v{DK+12}, v{DQ+12}
        v_min_f32 v{DK+13}, v{DK+13}, v{DQ+13}
        v_mov_b32 v{T1}, 0x5d800000
        v_mov_b32 v{T2}, 0x21800000
        v_cmp_le_f32 vcc, v{DK+12}, v{T1}
        v_cmp_ge_f32 s[58:59], v{DK+13}, v{T2}
        s_and_b64 vcc, vcc, s[58:59]
        s_cmp_eq_u64 vcc, -1
        s_cbranch_scc1 {Lf}
        """)
    Lk = phi_list(KXM, KXR, WM, WR, DK, ENK, PKK)
    Lq = phi_list(QXM, QXR, WM, WR, DQ, ENQ, PHQ)
    for a_, b_ in zip(Lk, Lq):
        A(a_); A(b_)
    A(f"{Lf}:")
    TP0, TP1 = 192, 208
    TB0, TB1 = 224, 232
    A(f"s_mul_i32 s55, s32, 5120")
    A(f"s_add_u32 s55, s55, {KVX}")
    A(f"v_add_u32 v{T0}, s55, v2")
    mf16(A, TP0, PKK, SL16, "0"); mf16(A, TP1, PKK+6, SL16, "0")
    mf8(A, TP0, PKK+4, SL8); mf8(A, TP1, PKK+10, SL8)
    for i in range(8): A(f"v_cvt_pk_bf16_f32 v{TB0+i}, v{TP0+2*i}, v{TP0+2*i+1}")
    for i in range(8): A(f"v_cvt_pk_bf16_f32 v{TB1+i}, v{TP1+2*i}, v{TP1+2*i+1}")
    KA0, KA1 = 192, 208
    mf16(A, KA0, TB0, VX0, "0"); mf16(A, KA1, TB1, VX0, "0")
    mf16(A, KA0, TB0+4, VX1); mf16(A, KA1, TB1+4, VX1)
    A(f"ds_write_b128 v{T0}, {v(KA0,4)}")
    A(f"ds_write_b128 v{T0}, {v(KA0+4,4)} offset:1024")
    A(f"v_mov_b32 v{KA0+10}, v{KA1+8}")
    A(f"v_mov_b32 v{KA0+11}, v{KA1+9}")
    A(f"ds_write_b128 v{T0}, {v(KA1,4)} offset:3072")
    A(f"ds_write_b128 v{T0}, {v(KA1+4,4)} offset:4096")
    A(f"ds_write_b128 v{T0}, {v(KA0+8,4)} offset:2048")

def kv_dma_setup(A):
    for e in range(3):
        L = A.new("kd")
        A(f"""
        s_mul_i32 s55, s32, 3
        s_add_u32 s55, s55, {e}
        s_min_u32 s55, s55, 21
        s_cmp_ge_u32 s55, 11
        s_cselect_b32 s56, 1, 0
        s_mul_i32 s57, s56, 11
        s_sub_u32 s55, s55, s57
        s_mul_i32 s57, s56, {PART}
        s_lshl_b32 s58, s55, 10
        s_add_u32 s{50+e}, s57, s58
        s_lshl_b32 s56, s56, 3
        s_cmp_ge_u32 s55, 6
        s_cbranch_scc1 {L}_v
        s_lshr_b32 s57, s55, 1
        s_add_u32 s58, s66, s57
        s_cmp_eq_u32 s57, 2
        s_cselect_b32 s58, s67, s58
        s_add_u32 s58, s58, 80
        s_lshl_b32 s58, s58, 15
        s_lshl_b32 s56, s56, 11
        s_add_u32 s58, s58, s56
        s_and_b32 s57, s55, 1
        s_lshl_b32 s57, s57, 10
        s_add_u32 s58, s58, s57
        s_add_u32 s{44+e}, s58, {BR + QKOFF}
        s_mov_b32 s{47+e}, 2048
        s_branch {L}_e
        {L}_v:
        s_mul_i32 s56, s56, {VC}
        s_sub_u32 s57, s55, 6
        s_lshl_b32 s57, s57, 10
        s_add_u32 s56, s56, s57
        s_add_u32 s{44+e}, s56, s53
        s_mov_b32 s{47+e}, {VC}
        {L}_e:
        s_add_u32 s{44+e}, s{44+e}, s{47+e}
        """)
def kv_dma_issue(A, SB):
    for e in range(3):
        A(f"s_add_u32 m0, s{SB}, s{50+e}")
        A(f"s_nop 0")
        A(f"buffer_load_dwordx4 v2, s[8:11], s{44+e} offen sc1 lds")
        A(f"s_add_u32 s{44+e}, s{44+e}, s{47+e}")

def wo_prefetch(A, level):
    A(f"""
    s_mul_i32 s55, s64, 51200
    s_lshl_b32 s56, s32, 10
    s_add_u32 s55, s55, s56
    s_add_u32 s55, s55, {WOP}
    """)
    for r in range(7):
        if r == 6:
            A("s_cmp_ge_u32 s32, 2")
            A("s_cbranch_scc1 WOPFC")
        A(f"s_add_u32 s56, s55, {r*8192}")
        A(f"buffer_load_dwordx4 v[252:255], v2, s[8:11], s56 offen")
    A("WOPFC:")

def gen_p2(A, name):
    SI, SB, MK1, MK3 = 60, 61, 62, 63
    fused.p2_q_reads(A)
    A(f"s_mov_b32 s{SB}, {SLOT}")
    kv_dma_issue(A, SB)
    A(f"""
    v_mov_b32 v{T0}, 0x3f803f80
    v_cmp_eq_u32 vcc, 20, v3
    v_cndmask_b32 v{T0}, 0, v{T0}, vcc
    """)
    for r in [SETS[0]['v0']+i for i in range(8)] + [SETS[1]['v0']+i for i in range(8)]: A(f"v_mov_b32 v{r}, v{T0}")
    A(f"""
    s_mul_i32 s55, s36, {PART}
    v_lshlrev_b32 v{T0}, 11, v131
    v_lshlrev_b32 v{T1}, 4, v3
    v_add3_u32 v{AKM}, v{T0}, v{T1}, s55
    s_add_u32 s56, s55, 4096
    s_add_u32 s56, s56, s68
    v_add_u32 v{AKR}, s56, v{T1}
    v_mul_u32_u24 v{T0}, 320, v131
    s_add_u32 s56, s55, 6144
    v_add3_u32 v{AV}, v{T0}, v{T1}, s56
    v_add_u32 v{NKM}, {SLOT}, v{AKM}
    v_add_u32 v{NKR}, {SLOT}, v{AKR}
    v_add_u32 v{NV}, {SLOT}, v{AV}
    """)
    for r in range(OA, OA+32): A(f"v_mov_b32 v{r}, 0")
    for r in range(P1, P1+8): A(f"v_mov_b32 v{r}, 0")
    A(f"""
    s_mov_b32 s{MK1}, {(1<<2)|(1<<6):#x}
    s_mov_b32 s{MK3}, {((1<<1) if os.environ.get('WOPF', '0') == '1' else 0)|(1<<2)|(1<<6):#x}
    s_cmp_eq_u32 s36, 1
    s_cselect_b32 s56, {(1<<5)|(1<<7):#x}, 0
    s_cselect_b32 s55, {1<<7:#x}, 0
    s_or_b32 s{MK3}, s{MK3}, s56
    s_or_b32 s{MK1}, s{MK1}, s55
    s_cmp_eq_u32 s32, 0
    s_cselect_b32 s56, {1<<1:#x}, 0
    s_or_b32 s{MK1}, s{MK1}, s56
    s_or_b32 s{MK3}, s{MK3}, s56
    s_cmp_lt_u32 s32, 5
    s_cselect_b32 s55, {(1<<3)|(1<<4)|(1<<5):#x}, 0
    s_cselect_b32 s56, {(1<<3)|(1<<4):#x}, 0
    s_or_b32 s{MK1}, s{MK1}, s55
    s_or_b32 s{MK3}, s{MK3}, s56
    s_cmp_eq_u32 s32, 0
    s_cselect_b32 s55, 1, 0
    s_andn2_b32 s55, s55, s31
    s_or_b32 s{MK1}, s{MK1}, s55
    """)
    if os.environ.get("STAG", "0") == "1":
        A(f"""
        s_cmp_eq_u32 s36, 0
        s_cselect_b32 s69, {1<<3:#x}, 0
        s_cselect_b32 s55, {1<<2:#x}, 0
        s_andn2_b32 s{MK3}, s{MK3}, s55
        """)
    if os.environ.get("NOHOOK") == "1":
        A(f"s_mov_b32 s{MK1}, 0"); A(f"s_mov_b32 s{MK3}, 0")
    if os.environ.get("HM1"):
        A(f"s_and_b32 s{MK1}, s{MK1}, {os.environ['HM1']}"); A(f"s_and_b32 s{MK3}, s{MK3}, {os.environ['HM3']}")
    def loads(kset, ktile, vset, vtile, nxtK, nxtV):
        L = []
        ak, akr = (NKM, NKR) if nxtK else (AKM, AKR)
        av = NV if nxtV else AV
        L.append([f"ds_read_b128 {v(kset['km'],4)}, v{ak} offset:{ktile*512}",
                  f"ds_read_b64 {v(kset['kr'],2)}, v{akr} offset:{ktile*512}"])
        if vset is not None:
            L.append(["s_mov_b64 exec, s[42:43]",
                      f"ds_read_b128 {v(vset['v0'],4)}, v{av} offset:{vtile*1280}",
                      f"ds_read_b128 {v(vset['v1'],4)}, v{av} offset:{vtile*1280+640}",
                      "s_mov_b64 exec, -1"])
        return L
    for g in loads(SETS[1], 0, None, 0, False, False) + loads(SETS[0], 1, SETS[0], 0, False, False):
        for l in g: A(l)
    A("s_waitcnt lgkmcnt(0)")
    mf16(A, S0, SETS[1]['km'], QA_M, "0"); mf8(A, S0, SETS[1]['kr'], QA_R)
    A("s_nop 7")
    phase(A, S0, P0, S1, QB_M, QB_R, SETS[1], OB, P1, SETS[1], do_pv=False)
    if os.environ.get("DIAG") != "stage": stamp(A, 5)
    if os.environ.get("PRIO", "1") == "2":
        L_ = A.new("pr")
        A(f"s_cmp_eq_u32 s36, 1\ns_cbranch_scc0 {L_}\ns_setprio 1\n{L_}:")
    A(f"s_mov_b32 s{SI}, 0")
    A(f"s_mov_b32 s{SB}, {SLOT}")
    A(f"{name}_stage:")
    for i in range(4):
        cur = SETS[i % 2]; nxt = SETS[(i + 1) % 2]
        kt, vt = i + 2, i + 1
        L = loads(nxt, kt % 4, nxt, vt % 4, kt >= 4, vt >= 4)
        A("s_waitcnt lgkmcnt(0)")
        if i == 0 and os.environ.get("STAG", "0") == "1":
            A(f"""
            s_bitcmp1_b32 s69, s{SI}
            s_cbranch_scc1 {name}_h30
            {name}_rt0:
            """)
        if i == 1:
            if os.environ.get("XB") != "nobar":
                A(f"""
                s_waitcnt vmcnt(0)
                s_barrier
                """)
            if STAMPS and os.environ.get("DIAG") == "stage":
                for s_ in range(8):
                    L_ = A.new("dg")
                    A(f"s_cmp_eq_u32 s{SI}, {s_}")
                    A(f"s_cbranch_scc0 {L_}")
                    stamp(A, 1 + s_)
                    A(f"{L_}:")
            A(f"""
            s_bitcmp1_b32 s{MK1}, s{SI}
            s_cbranch_scc1 {name}_hk1
            {name}_rt1:
            """)
        if i == 2 and os.environ.get("XD") != "nodma":
            A(f"""
            s_cmp_lt_u32 s{SI}, 6
            s_cbranch_scc0 {name}_nodma
            s_add_u32 s{SB}, s{SB}, {SLOT}
            s_cmp_eq_u32 s{SB}, {4*SLOT}
            s_cselect_b32 s{SB}, 0, s{SB}
            """)
            kv_dma_issue(A, SB)
            A(f"{name}_nodma:")
        if i == 3:
            A(f"""
            s_bitcmp1_b32 s{MK3}, s{SI}
            s_cbranch_scc1 {name}_hk3
            {name}_rt3:
            """)
        PR = os.environ.get("PRIO", "1")
        if PR == "1": A("s_setprio 1")
        phase(A, S1, P1, S0, QA_M, QA_R, cur, OA, P0, cur, pre=L)
        if PR == "1": A("s_setprio 0")
        if i == 3:
            A(f"""
            s_cmp_eq_u32 s{SI}, 7
            s_cbranch_scc1 {name}_tail
            """)
        phase(A, S0, P0, S1, QB_M, QB_R, cur, OB, P1, cur)
    A(f"""
    v_mov_b32 v{AKM}, v{NKM}
    v_mov_b32 v{AKR}, v{NKR}
    v_mov_b32 v{AV}, v{NV}
    s_add_u32 s{SI}, s{SI}, 1
    s_and_b32 s55, s{SI}, 3
    s_cmp_eq_u32 s55, 3
    s_mov_b32 s55, {SLOT}
    s_cselect_b32 s55, {(-3*SLOT) & 0xffffffff:#x}, s55
    v_add_u32 v{NKM}, s55, v{NKM}
    v_add_u32 v{NKR}, s55, v{NKR}
    v_add_u32 v{NV}, s55, v{NV}
    s_branch {name}_stage
    """)
    A(f"{name}_hk1:")
    A(f"""
    s_cmp_eq_u32 s{SI}, 0
    s_cbranch_scc1 {name}_h10
    s_cmp_eq_u32 s{SI}, 1
    s_cbranch_scc1 {name}_h11
    s_cmp_eq_u32 s{SI}, 2
    s_cbranch_scc1 {name}_h21
    s_cmp_eq_u32 s{SI}, 3
    s_cbranch_scc1 {name}_h31
    s_cmp_eq_u32 s{SI}, 4
    s_cbranch_scc1 {name}_h41
    s_cmp_eq_u32 s{SI}, 5
    s_cbranch_scc1 {name}_h51
    s_cmp_eq_u32 s{SI}, 6
    s_cbranch_scc1 {name}_h61
    s_cmp_eq_u32 s{SI}, 7
    s_cbranch_scc1 {name}_h71
    s_branch {name}_rt1
    """)
    A(f"""
    {name}_h10:
    s_lshl_b32 s55, s38, 7
    s_lshl_b32 s56, s37, 2
    s_add_u32 s55, s55, s56
    s_add_u32 s55, s55, {FAW}
    """)
    set_flag_ws(A, 55, T0, T1)
    A(f"s_branch {name}_rt1")
    A(f"{name}_h11:")
    A(f"s_mov_b32 s55, {FAW}")
    tile_flags_voff(A, FV)
    A("s_mov_b32 exec_lo, 0xffffff\ns_mov_b32 exec_hi, 0")
    flag_issue(A, FV, 55, FT)
    A("s_mov_b64 exec, -1")
    A(f"s_branch {name}_rt1")
    A(f"{name}_h21:")
    a_loads(A)
    A(f"s_branch {name}_rt1")
    A(f"""
    {name}_h31:
    s_lshl_b32 s55, s32, 10
    s_add_u32 s55, s55, {KVX}
    v_add_u32 v{T0}, s55, v2
    """)
    for j in range(8): A(f"ds_read_b128 {v(DD+4*j,4)}, v{T0} offset:{j*5120}")
    A(f"""
    s_mul_i32 s55, s33, {8*5120}
    s_mul_i32 s56, s34, 5120
    s_add_u32 s55, s55, s56
    s_lshl_b32 s56, s32, 10
    s_add_u32 s55, s55, s56
    s_add_u32 s55, s55, {KVP}
    s_waitcnt lgkmcnt(0)
    """)
    for j in range(1, 8):
        for e in range(4): A(f"v_add_f32 v{DD+e}, v{DD+e}, v{DD+4*j+e}")
    A(f"""
    buffer_store_dwordx4 {v(DD,4)}, v2, s[8:11], s55 offen sc1
    s_branch {name}_rt1
    """)
    A(f"""
    {name}_h41:
    s_cmp_ge_u32 s32, 5
    s_cbranch_scc1 {name}_h41b
    s_lshl_b32 s55, s33, 8
    s_lshl_b32 s56, s32, 5
    s_add_u32 s55, s55, s56
    s_add_u32 s55, s55, {FKVW}
    v_lshlrev_b32 v{FV}, 2, v1
    """)
    flag_issue(A, FV, 55, FT, width=1)
    A(f"{name}_h41b:")
    A(f"s_branch {name}_rt1")
    A(f"""
    {name}_h51:
    s_cmp_ge_u32 s32, 5
    s_cbranch_scc1 {name}_rt1
    """)
    for j in range(1, 8):
        for e in range(4): A(f"v_add_f32 v{KVL+e}, v{KVL+e}, v{KVL+4*j+e}")
    A(f"""
    v_cvt_pk_bf16_f32 v{DD}, v{KVL}, v{KVL+1}
    v_cvt_pk_bf16_f32 v{DD+1}, v{KVL+2}, v{KVL+3}
    s_cmp_eq_u32 s32, 2
    s_cbranch_scc1 {name}_kv2
    s_cmp_ge_u32 s32, 3
    s_cselect_b32 s55, 1024, 0
    s_cmp_eq_u32 s32, 1
    s_cselect_b32 s56, 8, 0
    s_cmp_eq_u32 s32, 4
    s_cselect_b32 s56, 8, s56
    s_add_u32 s55, s55, s56
    s_add_u32 s55, s55, {KVF}
    v_add_u32 v{T1}, s55, v2
    ds_write_b64 v{T1}, {v(DD,2)}
    s_branch {name}_rt1
    {name}_kv2:
    v_mov_b32 v{DD+2}, v{DD+1}
    v_mov_b32 v{DD+1}, 0
    v_mov_b32 v{DD+3}, 0
    v_lshlrev_b32 v{T1}, 3, v1
    v_add_u32 v{T1}, {KVF+2048}, v{T1}
    ds_write_b64 v{T1}, {v(DD,2)}
    ds_write_b64 v{T1}, {v(DD+2,2)} offset:512
    s_branch {name}_rt1
    """)
    A(f"""
    {name}_h61:
    v_add_u32 v{T1}, {KVF}, v2
    v_lshlrev_b32 v{T2}, 3, v1
    v_add_u32 v{T2}, {KVF+2048}, v{T2}
    ds_read_b128 {v(TT,4)}, v{T1}
    ds_read_b128 {v(TT+4,4)}, v{T1} offset:1024
    ds_read_b64 {v(TT+8,2)}, v{T2}
    ds_read_b64 {v(TT+10,2)}, v{T2} offset:512
    s_waitcnt lgkmcnt(0)
    """)
    mf16(A, DD, TT, PHQ, "0"); mf8(A, DD, TT+8, PHQ+4); mf16(A, DD, TT+4, PHQ+6); mf8(A, DD, TT+10, PHQ+10)
    o_addr(A, T2)
    A(f"""
    v_mov_b32 v{TT}, v{DD+8}
    v_mov_b32 v{TT+1}, v{DD+8}
    v_permlane32_swap_b32 v{TT}, v{TT+1}
    v_add_f32 v{TT+1}, 0x358637bd, v{TT+1}
    v_rcp_f32 v{TT+1}, v{TT+1}
    s_nop 0
    """)
    for r in range(12): A(f"v_mul_f32 v{DD+r}, v{DD+r}, v{TT+1}")
    store_o(A, DD, TT+2, T2, 55)
    A(f"s_branch {name}_rt1")
    A(f"""
    {name}_hk3:
    s_cmp_eq_u32 s{SI}, 1
    s_cbranch_scc1 {name}_h13
    s_cmp_eq_u32 s{SI}, 2
    s_cbranch_scc1 {name}_h23
    s_cmp_eq_u32 s{SI}, 3
    s_cbranch_scc1 {name}_h33
    s_cmp_eq_u32 s{SI}, 4
    s_cbranch_scc1 {name}_h43
    s_cmp_eq_u32 s{SI}, 5
    s_cbranch_scc1 {name}_h53
    s_cmp_eq_u32 s{SI}, 6
    s_cbranch_scc1 {name}_h63
    s_cmp_eq_u32 s{SI}, 7
    s_cbranch_scc1 {name}_h73
    s_branch {name}_rt3
    """)
    if STOP_AFTER != "P2":
        import fused3
        A(f"{name}_h53:")
        fused3.p3_loader_setup(A)
        for c in range(3): fused3.p3_issue(A, name, c, do_o=False)
        A(f"s_branch {name}_rt3")
        A(f"{name}_h71:")
        A(f"""
        s_lshl_b32 s55, s33, 8
        s_add_u32 s55, s55, {FO}
        """)
        flag_issue(A, 191, 55, FT, width=1)
        A(f"s_branch {name}_rt1")
        A(f"{name}_h73:")
        A(f"""
        s_waitcnt vmcnt(0)
        s_lshl_b32 s55, s33, 8
        s_add_u32 s55, s55, {FO}
        """)
        flag_check(A, 191, 55, FT, 64, width=1)
        for c in range(3): fused3.p3_issue(A, name, c, do_w=False)
        A(f"s_branch {name}_rt3")
    else:
        for l_ in ("h53", "h73"):
            A(f"{name}_{l_}:")
            A(f"s_branch {name}_rt3")
        A(f"{name}_h71:")
        A(f"s_branch {name}_rt1")
    A(f"{name}_h23:")
    A("s_waitcnt vmcnt(0)")
    a_compute(A)
    A(f"s_branch {name}_rt3")
    if os.environ.get("STAG", "0") == "1":
        A(f"{name}_h30:")
        A("s_waitcnt vmcnt(0)")
        a_compute(A)
        A(f"s_branch {name}_rt0")
    A(f"{name}_h13:")
    WOPF = os.environ.get("WOPF", "0") == "1"
    if WOPF: wo_prefetch(A, 1)
    A(f"s_cmp_eq_u32 s32, 0")
    A(f"s_cbranch_scc0 {name}_rt3")
    A(f"s_waitcnt vmcnt({10 if WOPF else 3})")
    A(f"s_mov_b32 s55, {FAW}")
    flag_check(A, FV, 55, FT, fused.NTF, masked=True)
    A(f"s_branch {name}_rt3")
    A(f"""
    {name}_h33:
    s_cmp_ge_u32 s32, 5
    s_cbranch_scc1 {name}_rt3
    s_waitcnt vmcnt(0)
    s_lshl_b32 s55, s33, 8
    s_lshl_b32 s56, s32, 5
    s_add_u32 s55, s55, s56
    s_lshl_b32 s56, s34, 2
    s_add_u32 s55, s55, s56
    s_add_u32 s55, s55, {FKVW}
    """)
    set_flag_ws(A, 55, T0, T1)
    A(f"s_branch {name}_rt3")
    A(f"""
    {name}_h43:
    s_cmp_ge_u32 s32, 5
    s_cbranch_scc1 {name}_rt3
    s_lshl_b32 s55, s33, 8
    s_lshl_b32 s56, s32, 5
    s_add_u32 s55, s55, s56
    s_add_u32 s55, s55, {FKVW}
    """)
    A("s_waitcnt vmcnt(3)")
    flag_check(A, FV, 55, FT, 8, width=1)
    A(f"""
    s_mul_i32 s55, s33, {8*5120}
    s_lshl_b32 s56, s32, 10
    s_add_u32 s55, s55, s56
    s_add_u32 s55, s55, {KVP}
    """)
    for j in range(8):
        A(f"s_add_u32 s56, s55, {j*5120}")
        A(f"buffer_load_dwordx4 {v(KVL+4*j,4)}, v2, s[8:11], s56 offen sc1")
    A(f"s_branch {name}_rt3")
    A(f"""
    {name}_h63:
    s_waitcnt vmcnt(0)
    """)
    fo_flag(A, 0)
    A(f"s_branch {name}_rt3")
    A(f"{name}_tail:")
    cur = SETS[1]
    mf16(A, OB, cur['v0'], P1); mf16(A, OB, cur['v1'], P1 + 4)
    if os.environ.get("DIAG") != "stage": stamp(A, 6)
    A(f"""
    s_mul_i32 s55, s32, 3072
    s_add_u32 s55, s55, {XO}
    v_add_u32 v{T0}, s55, v2
    s_cmp_eq_u32 s36, 0
    s_cbranch_scc1 {name}_x0
    ds_write_b128 v{T0}, {v(OA,4)}
    ds_write_b128 v{T0}, {v(OA+4,4)} offset:1024
    ds_write_b128 v{T0}, {v(OA+8,4)} offset:2048
    """)
    for r in range(12): A(f"v_mov_b32 v{OA+r}, v{OB+r}")
    A(f"""
    s_branch {name}_x1
    {name}_x0:
    ds_write_b128 v{T0}, {v(OB,4)}
    ds_write_b128 v{T0}, {v(OB+4,4)} offset:1024
    ds_write_b128 v{T0}, {v(OB+8,4)} offset:2048
    {name}_x1:
    s_waitcnt lgkmcnt(0)
    s_barrier
    s_xor_b32 s55, s32, 4
    s_mul_i32 s55, s55, 3072
    s_add_u32 s55, s55, {XO}
    v_add_u32 v{T0}, s55, v2
    ds_read_b128 v[16:19], v{T0}
    ds_read_b128 v[20:23], v{T0} offset:1024
    ds_read_b128 v[24:27], v{T0} offset:2048
    """)
    o_addr(A, T2)
    A(f"s_add_u32 s55, s55, {BR}")
    A("s_waitcnt lgkmcnt(0)")
    for r in range(12): A(f"v_add_f32 v{OA+r}, v{OA+r}, v{16+r}")
    A(f"""
    v_mov_b32 v16, v{OA+8}
    v_mov_b32 v17, v{OA+8}
    v_permlane32_swap_b32 v16, v17
    v_max3_f32 v18, |v{OA}|, |v{OA+1}|, |v{OA+2}|
    v_max3_f32 v18, v18, |v{OA+3}|, |v{OA+4}|
    v_max3_f32 v18, v18, |v{OA+5}|, |v{OA+6}|
    v_max3_f32 v18, v18, |v{OA+7}|, |v{OA+8}|
    v_max3_f32 v18, v18, |v{OA+9}|, |v{OA+10}|
    v_max_f32 v18, v18, |v{OA+11}|
    v_mov_b32 v19, 0x21800000
    v_mov_b32 v20, 0x5d800000
    v_mov_b32 v21, 0x7f000000
    v_cmp_ge_f32 vcc, v17, v19
    v_cmp_le_f32 s[58:59], v17, v20
    s_and_b64 vcc, vcc, s[58:59]
    v_cmp_lt_f32 s[58:59], v18, v21
    s_and_b64 vcc, vcc, s[58:59]
    s_cmp_eq_u64 vcc, -1
    s_cbranch_scc0 {name}_slow
    {name}_fin:
    v_rcp_f32 v17, v17
    s_nop 0
    """)
    for r in range(12): A(f"v_mul_f32 v{OA+r}, v{OA+r}, v17")
    store_o(A, OA, 20, T2, 55)
    if os.environ.get("DIAG") != "stage": stamp(A, 8)
    if STOP_AFTER == "P2":
        A("s_waitcnt vmcnt(0)")
        fo_flag(A, 1)
        stamp(A, 9); stamp(A, 11, real=True)
        stamp_flush(A, 12, 0, 32, base=70)
        A("s_endpgm")
    else:
        A(f"s_branch {name}_p3")
    A(f"{name}_slow:")
    A(f"s_cmp_eq_u32 s36, 0")
    A(f"s_cbranch_scc1 {name}_sl0")
    for i in range(4): A(f"v_mov_b32 v{QA_M+i}, v{QB_M+i}")
    for i in range(2): A(f"v_mov_b32 v{QA_R+i}, v{QB_R+i}")
    A(f"{name}_sl0:")
    for r in range(16): A(f"v_mov_b32 v{OA+r}, 0")
    MX = 44
    frag_addr(A, 42, 43)
    A(f"""
    v_mov_b32 v{MX}, 0xff7fffff
    v_mul_u32_u24 v{T0}, 320, v131
    v_lshlrev_b32 v{T1}, 4, v3
    v_add_u32 v{T0}, v{T0}, v{T1}
    s_mov_b32 s57, 0
    {name}_sloop:
    s_lshl_b32 s56, s57, 9
    s_add_u32 s56, s56, {BR + QKOFF}
    s_add_u32 s58, s66, 80
    s_lshl_b32 s58, s58, 15
    s_add_u32 s58, s58, s56
    buffer_load_dwordx4 {v(SETS[0]['km'],4)}, v42, s[8:11], s58 offen sc1
    s_add_u32 s58, s67, 80
    s_lshl_b32 s58, s58, 15
    s_add_u32 s58, s58, s56
    buffer_load_dwordx2 {v(SETS[0]['kr'],2)}, v43, s[8:11], s58 offen sc1
    s_lshr_b32 s56, s57, 2
    s_mul_i32 s56, s56, {VC}
    s_and_b32 s58, s57, 3
    s_mul_i32 s58, s58, 1280
    s_add_u32 s58, s58, s56
    s_add_u32 s58, s58, s53
    s_mov_b64 exec, s[42:43]
    buffer_load_dwordx4 {v(SETS[0]['v0'],4)}, v{T0}, s[8:11], s58 offen sc1
    buffer_load_dwordx4 {v(SETS[0]['v1'],4)}, v{T0}, s[8:11], s58 offen offset:640 sc1
    s_mov_b64 exec, -1
    s_waitcnt vmcnt(0)
    """)
    mf16(A, S0, SETS[0]['km'], QA_M, "0"); mf8(A, S0, SETS[0]['kr'], QA_R)
    A(f"v_max3_f32 v45, v{S0}, v{S0+1}, v{S0+2}")
    for r in range(3, 15, 2): A(f"v_max3_f32 v45, v45, v{S0+r}, v{S0+r+1}")
    A(f"""
    v_max_f32 v45, v45, v{S0+15}
    v_mov_b32 v46, v45
    v_permlane32_swap_b32 v45, v46
    v_max3_f32 v45, v45, v46, v{MX}
    v_sub_f32 v46, v{MX}, v45
    v_exp_f32 v46, v46
    v_mov_b32 v{MX}, v45
    """)
    for r in range(16): A(f"v_sub_f32 v{S0+r}, v{S0+r}, v45")
    for r in range(16): A(f"v_exp_f32 v{S0+r}, v{S0+r}")
    for r in range(16): A(f"v_mul_f32 v{OA+r}, v{OA+r}, v46")
    for i in range(8): A(f"v_cvt_pk_bf16_f32 v{P0+i}, v{S0+2*i}, v{S0+2*i+1}")
    mf16(A, OA, SETS[0]['v0'], P0); mf16(A, OA, SETS[0]['v1'], P0 + 4)
    A(f"""
    s_add_u32 s57, s57, 1
    s_cmp_lt_u32 s57, 64
    s_cbranch_scc1 {name}_sloop
    s_nop 15
    v_mov_b32 v16, v{OA+8}
    v_mov_b32 v17, v{OA+8}
    v_permlane32_swap_b32 v16, v17
    s_branch {name}_fin
    """)
    if STOP_AFTER != "P2":
        import fused3
        A(f"{name}_p3:")
        fused3.gen_p3(A, name, fo_flag)
```

```python
import os
from asmlib import *
from layout2 import *

LDS = 163840
SIGC = int(os.environ.get('SIGC', '13'))
SPIN_MAX = 50000
R1 = 32768; ST1 = 32768; NS1 = 4
LOG2E = 0x3fb8aa3b
QSCALE = 0x3ea52b5c
LSTAMP = os.environ.get('LSTAMP', '0') == '1'
NTX = ' nt' if os.environ.get('NTX', '0') == '1' else ''
NTW = ' nt' if os.environ.get('NTW', '0') == '1' else ''
STOP_AFTER = os.environ.get("STOP_AFTER", "")

def poll_dbg(A, lane_off_v, tmp_v, mask_lo, target, sleep=4):
    L = A.new("poll")
    A(f"""
    s_mov_b32 s59, 0
    {L}:
    global_load_dword v{tmp_v}, v{lane_off_v}, s[4:5] sc1
    s_waitcnt vmcnt(0)
    v_cmp_le_u32 vcc, {target}, v{tmp_v}
    s_and_b32 s58, vcc_lo, {mask_lo:#x}
    s_cmp_eq_u32 s58, {mask_lo:#x}
    s_cbranch_scc1 {L}_ok
    s_sleep {sleep}
    s_add_u32 s59, s59, 1
    s_cmp_lt_u32 s59, {SPIN_MAX}
    s_cbranch_scc1 {L}
    {L}_ok:
    """)

def poll_ws(A, voff, soff, T, nlanes, width=4, target=1, sleep=8):
    L = A.new("pw")
    mask = (1 << nlanes) - 1
    ld = {4: "buffer_load_dwordx4 " + v(T,4), 1: f"buffer_load_dword v{T}"}[width]
    def check():
        A("s_waitcnt vmcnt(0)")
        if width == 4:
            A(f"v_and_b32 v{T}, v{T}, v{T+1}")
            A(f"v_and_b32 v{T+2}, v{T+2}, v{T+3}")
            A(f"v_and_b32 v{T}, v{T}, v{T+2}")
        A(f"v_cmp_eq_u32 vcc, {target}, v{T}")
        if nlanes >= 64:
            A(f"s_cmp_eq_u64 vcc, -1")
        else:
            A(f"s_and_b32 s58, vcc_hi, {(mask >> 32):#x}") if nlanes > 32 else None
            if nlanes > 32:
                A(f"s_cmp_eq_u32 s58, {(mask >> 32):#x}")
                A(f"s_cselect_b32 s58, vcc_lo, 0")
                A(f"s_cmp_eq_u32 s58, -1")
            else:
                A(f"s_and_b32 s58, vcc_lo, {mask:#x}")
                A(f"s_cmp_eq_u32 s58, {mask:#x}")
    A(f"{ld}, v{voff}, s[8:11], s{soff} offen sc1")
    check()
    A(f"s_cbranch_scc1 {L}_ok")
    A(f"s_mov_b32 s59, 0")
    A(f"{L}:")
    A(f"s_sleep {sleep}")
    A(f"{ld}, v{voff}, s[8:11], s{soff} offen sc1")
    check()
    A(f"""
    s_cbranch_scc1 {L}_ok
    s_add_u32 s59, s59, 1
    s_cmp_lt_u32 s59, {SPIN_MAX}
    s_cbranch_scc1 {L}
    {L}_ok:
    """)

def flag_issue(A, voff, soff, T, width=4):
    ld = {4: "buffer_load_dwordx4 " + v(T,4), 1: f"buffer_load_dword v{T}"}[width]
    A(f"{ld}, v{voff}, s[8:11], s{soff} offen sc1")
def flag_check(A, voff, soff, T, nlanes, width=4, target=1, sleep=8, masked=False):
    L = A.new("fc")
    mask = (1 << nlanes) - 1
    if width == 4:
        A(f"v_and_b32 v{T}, v{T}, v{T+1}")
        A(f"v_and_b32 v{T+2}, v{T+2}, v{T+3}")
        A(f"v_and_b32 v{T}, v{T}, v{T+2}")
    A(f"v_cmp_eq_u32 vcc, {target}, v{T}")
    if nlanes >= 64:
        A(f"s_cmp_eq_u64 vcc, -1")
    elif nlanes > 32:
        A(f"s_and_b32 s58, vcc_hi, {(mask >> 32):#x}")
        A(f"s_cmp_eq_u32 s58, {(mask >> 32):#x}")
        A(f"s_cselect_b32 s58, vcc_lo, 0")
        A(f"s_cmp_eq_u32 s58, -1")
    else:
        A(f"s_and_b32 s58, vcc_lo, {mask:#x}")
        A(f"s_cmp_eq_u32 s58, {mask:#x}")
    A(f"s_cbranch_scc1 {L}")
    if masked: A(f"s_mov_b32 exec_lo, {(1 << nlanes) - 1:#x}\ns_mov_b32 exec_hi, 0")
    poll_ws(A, voff, soff, T, nlanes, width, target, sleep)
    if masked: A("s_mov_b64 exec, -1")
    A(f"{L}:")

def set_flag_ws(A, soff, tv0, tv1):
    A(f"""
    v_mov_b32 v{tv0}, 0
    v_mov_b32 v{tv1}, 1
    s_mov_b64 exec, 1
    buffer_store_dword v{tv1}, v{tv0}, s[8:11], s{soff} offen sc1
    s_mov_b64 exec, -1
    """)

def check_prep(A, tv0, tv1):
    L = A.new("cp")
    A(f"""
    v_mov_b32 v{tv0}, {FPREP*4}
    global_load_dword v{tv1}, v{tv0}, s[4:5] sc1
    s_mov_b32 s59, 0
    {L}:
    s_waitcnt vmcnt(0)
    v_readfirstlane_b32 s58, v{tv1}
    s_cmp_ge_u32 s58, 16
    s_cbranch_scc1 {L}_ok
    s_sleep 16
    global_load_dword v{tv1}, v{tv0}, s[4:5] sc1
    s_add_u32 s59, s59, 1
    s_cmp_lt_u32 s59, {SPIN_MAX}
    s_cbranch_scc1 {L}
    {L}_ok:
    """)

NTF = 24
def tile_flags_voff(A, vd):
    A(f"""
    s_mul_i32 s56, s33, 20
    s_add_u32 s57, s56, 19
    s_lshr_b32 s56, s56, 7
    s_lshr_b32 s57, s57, 7
    v_lshrrev_b32 v{vd}, 3, v1
    v_min_u32 v{vd}, 2, v{vd}
    v_mul_u32_u24 v{vd}, 5, v{vd}
    v_bfe_u32 v{vd+1}, v1, 2, 1
    v_cmp_eq_u32 vcc, 1, v{vd+1}
    v_mov_b32 v{vd+1}, s56
    v_mov_b32 v{vd+2}, s57
    v_cndmask_b32 v{vd+1}, v{vd+1}, v{vd+2}, vcc
    v_add_u32 v{vd}, v{vd}, v{vd+1}
    v_lshlrev_b32 v{vd}, 7, v{vd}
    v_and_b32 v{vd+1}, 3, v1
    v_lshlrev_b32 v{vd+1}, 4, v{vd+1}
    v_add_u32 v{vd}, v{vd}, v{vd+1}
    """)

def signal_dbg(A, idx_s, tv0, tv1):
    A(f"""
    s_lshl_b32 s58, s{idx_s}, 2
    v_mov_b32 v{tv0}, s58
    v_mov_b32 v{tv1}, 1
    s_mov_b64 exec, 1
    global_atomic_add v{tv0}, v{tv1}, s[4:5] sc1
    s_mov_b64 exec, -1
    """)

def gen_common(A, name):
    A(f"""
    s_cmp_ge_u32 s2, 256
    s_cbranch_scc1 {name}_done
    s_load_dwordx4 s[20:23], s[0:1], 0
    s_load_dwordx4 s[24:27], s[0:1], 32
    s_load_dwordx4 s[4:7], s[0:1], 64
    s_load_dwordx2 s[28:29], s[0:1], 16
    v_and_b32 v1, 63, v0
    v_lshrrev_b32 v2, 6, v0
    v_and_b32 v3, 31, v1
    v_readfirstlane_b32 s32, v2
    v_lshrrev_b32 v131, 5, v1
    v_lshlrev_b32 v2, 4, v1
    v_lshlrev_b32 v132, 3, v3
    s_and_b32 s39, s2, 7
    s_lshr_b32 s64, s2, 3
    s_lshl_b32 s33, s39, 2
    s_lshr_b32 s45, s64, 3
    s_add_u32 s33, s33, s45
    s_and_b32 s34, s64, 7
    s_and_b32 s35, s32, 3
    s_lshr_b32 s36, s32, 2
    s_lshr_b32 s65, s39, 1
    s_lshl_b32 s37, s65, 2
    s_and_b32 s30, s39, 1
    s_cmp_eq_u32 s30, 0
    s_cbranch_scc0 {name}_map1
    s_lshr_b32 s46, s64, 3
    s_add_u32 s37, s37, s46
    s_and_b32 s38, s64, 7
    s_mov_b32 s31, 0
    s_branch {name}_map2
    {name}_map1:
    s_mul_i32 s46, s64, 37
    s_lshr_b32 s46, s46, 8
    s_add_u32 s37, s37, s46
    s_mul_i32 s46, s46, 7
    s_sub_u32 s38, s64, s46
    s_add_u32 s38, s38, 8
    s_cmp_ge_u32 s64, 28
    s_cselect_b32 s31, 1, 0
    {name}_map2:
    s_mov_b32 s40, 1.0
    s_mov_b32 s41, -1.0
    s_mov_b32 s42, 0x000fffff
    s_mov_b32 s43, 0x000fffff
    s_and_b32 s45, s33, 1
    s_mul_i32 s66, s33, 5
    s_add_u32 s66, s66, s45
    s_lshr_b32 s66, s66, 1
    s_add_u32 s67, s66, 2
    s_cmp_eq_u32 s45, 1
    s_cselect_b32 s46, 3, 0
    s_sub_u32 s67, s67, s46
    s_lshl_b32 s68, s45, 3
    s_mul_i32 s53, s33, {VH}
    s_add_u32 s53, s53, {BR + VOFF}
    s_waitcnt lgkmcnt(0)
    """)
    srd(A, 8, 6, 7, WS_BYTES)
    for r in (188, 189, 190, 191): A(f"v_mov_b32 v{r}, 0")

def p2_stage_dma(A, st, dyn=None):
    L = A.new("sd")
    if dyn is None:
        A(f"""
        s_lshr_b32 s56, s35, 1
        s_mul_i32 s57, s56, {PART}
        s_add_u32 s57, s57, {(st % 4) * SLOT}
        s_lshl_b32 s56, s56, 3
        s_add_u32 s56, s56, {st}
        """)
    else:
        A(f"""
        s_lshr_b32 s56, s35, 1
        s_mul_i32 s57, s56, {PART}
        s_add_u32 s57, s57, s{dyn[0]}
        s_lshl_b32 s56, s56, 3
        s_add_u32 s56, s56, s{dyn[1]}
        """)
    A(f"""
    s_bitcmp1_b32 s35, 0
    s_cbranch_scc1 {L}_v
    s_lshl_b32 s56, s56, 11
    s_add_u32 s58, s66, 80
    s_lshl_b32 s58, s58, 15
    s_add_u32 s58, s58, s56
    s_add_u32 s58, s58, {BR + QKOFF}
    s_add_u32 s59, s67, 80
    s_lshl_b32 s59, s59, 15
    s_add_u32 s59, s59, s56
    s_add_u32 s59, s59, {BR + QKOFF}
    """)
    for e, (src, off) in enumerate(((58, 0), (58, 1024), (58, QKG), (58, QKG + 1024), (59, 0), (59, 1024))):
        A(f"s_add_u32 m0, s57, {e*1024}")
        A(f"s_add_u32 s56, s{src}, {off}")
        A(f"buffer_load_dwordx4 v2, s[8:11], s56 offen sc1 lds")
    A(f"""
    s_branch {L}_e
    {L}_v:
    s_mul_i32 s56, s56, {VC}
    s_add_u32 s56, s56, s53
    """)
    for e in range(5):
        A(f"s_add_u32 m0, s57, {6144 + e*1024}")
        A(f"s_add_u32 s58, s56, {e*1024}")
        A(f"buffer_load_dwordx4 v2, s[8:11], s58 offen sc1 lds")
    A(f"{L}_e:")

QA_M, QB_M, QA_R, QB_R = 4, 8, 12, 14
def frag_addr(A, vm, vr):
    A(f"""
    v_lshlrev_b32 v{vm}, 15, v131
    v_lshlrev_b32 v{vr}, 4, v3
    v_add_u32 v{vm}, v{vm}, v{vr}
    v_add_u32 v{vr}, s68, v{vr}
    """)
QL = 22528
def p2_q_dma(A):
    A(f"""
    s_lshl_b32 s56, s34, 8
    s_lshl_b32 s57, s35, 6
    s_add_u32 s56, s56, s57
    s_lshl_b32 s56, s56, 4
    s_add_u32 s56, s56, {BR + QKOFF}
    s_lshl_b32 s57, s35, 10
    s_add_u32 s57, s57, {QL}
    s_lshl_b32 s58, s66, 15
    s_add_u32 s58, s58, s56
    s_mov_b32 m0, s57
    s_add_u32 s59, s58, {QKG}
    buffer_load_dwordx4 v2, s[8:11], s58 offen sc1 lds
    s_add_u32 m0, s57, 4096
    s_lshl_b32 s58, s67, 15
    buffer_load_dwordx4 v2, s[8:11], s59 offen sc1 lds
    s_add_u32 s58, s58, s56
    s_add_u32 s58, s58, s68
    v_lshrrev_b32 v12, 1, v1
    v_lshlrev_b32 v12, 4, v12
    v_and_b32 v13, 1, v1
    v_lshlrev_b32 v13, 2, v13
    v_add_u32 v12, v12, v13
    s_lshl_b32 s57, s35, 9
    s_add_u32 s57, s57, {QL + 8192}
    s_mov_b32 m0, s57
    s_add_u32 s59, s58, 512
    buffer_load_dword v12, s[8:11], s58 offen sc1 lds
    s_add_u32 m0, s57, 256
    s_nop 0
    buffer_load_dword v12, s[8:11], s59 offen sc1 lds
    """)
def p2_q_reads(A, tm=133, tr=134):
    A(f"""
    s_lshl_b32 s56, s35, 10
    s_add_u32 s56, s56, {QL}
    v_lshlrev_b32 v{tm}, 12, v131
    v_lshlrev_b32 v{tr}, 4, v3
    v_add3_u32 v{tm}, v{tm}, v{tr}, s56
    s_lshl_b32 s56, s35, 9
    s_add_u32 s56, s56, {QL + 8192}
    v_add_u32 v{tr}, s56, v132
    v_mov_b32 v{QA_R}, 0
    v_mov_b32 v{QA_R+1}, 0
    v_mov_b32 v{QA_R+2}, 0
    v_mov_b32 v{QA_R+3}, 0
    ds_read_b128 {v(QA_M,4)}, v{tm}
    ds_read_b128 {v(QB_M,4)}, v{tm} offset:512
    s_mov_b32 exec_hi, 0
    ds_read_b64 {v(QA_R,2)}, v{tr}
    ds_read_b64 {v(QB_R,2)}, v{tr} offset:256
    s_mov_b64 exec, -1
    s_waitcnt lgkmcnt(0)
    s_barrier
    """)

XV, WV = 192, 196
CXA, CWA, CXA2, CWA2, CEA = 4, 8, 10, 14, 128
EA = 200
ACC = 64
def p1_loader(A, name):
    A.c("P1 loader")
    A(f"""
    v_lshrrev_b32 v7, 3, v1
    s_lshl_b32 s44, s35, 5
    v_add_u32 v7, s44, v7
    v_mul_u32_u24 v7, 1280, v7
    v_lshrrev_b32 v8, 4, v1
    v_and_b32 v9, 7, v1
    """)
    for i in range(4):
        A(f"""
        v_add_u32 v10, {4*i}, v8
        v_and_b32 v10, 7, v10
        v_xor_b32 v10, v10, v9
        v_lshlrev_b32 v10, 4, v10
        v_add_u32 v10, v10, v7
        v_add_u32 v{XV+i}, {8*i*1280}, v10
        """)
    A(f"""
    s_lshl_b32 s44, s35, 4
    v_add_u32 v7, s44, v8
    v_mul_u32_u24 v7, 3840, v7
    v_lshrrev_b32 v9, 2, v1
    v_xor_b32 v9, v9, v8
    v_and_b32 v9, 3, v9
    v_lshlrev_b32 v9, 6, v9
    v_and_b32 v10, 3, v1
    v_lshlrev_b32 v10, 4, v10
    v_add3_u32 v{WV}, v7, v9, v10
    s_lshl_b32 s44, s35, 12
    s_add_u32 s45, s44, 16384
    s_and_b32 s52, s37, 3
    s_mul_i32 s52, s52, 3
    s_add_u32 s52, s52, s38
    s_lshl_b32 s54, s65, 1
    s_add_u32 s52, s52, s54
    s_cmp_ge_u32 s52, 20
    s_cselect_b32 s54, 20, 0
    s_sub_u32 s52, s52, s54
    s_cmp_ge_u32 s52, 10
    s_cselect_b32 s54, 10, 0
    s_sub_u32 s52, s52, s54
    """)
    if os.environ.get("ROT", "1") != "1": A("s_mov_b32 s52, 0")
    A(f"""
    s_mov_b32 s55, s52
    s_mul_i32 s46, s37, {128*1280}
    s_lshl_b32 s54, s55, 7
    s_add_u32 s46, s46, s54
    s_lshl_b32 s47, s38, 8
    s_mul_i32 s54, s55, {64*3840}
    s_add_u32 s47, s47, s54
    s_mov_b32 s56, s55
    s_mov_b32 s48, {R1}
    s_mov_b32 s49, 0
    """)
    srd(A, 12, 24, 25, X_BYTES)
    srd(A, 16, 26, 27, W_BYTES)
    def issue(tag):
        for i in range(4 if not (os.environ.get("XP") == "nodma" and tag == "lp") else 0):
            A(f"s_add_u32 s50, s48, s44")
            A(f"s_add_u32 m0, s50, {i*1024}")
            A(f"s_add_u32 s51, s47, {i*4*3840}")
            A(f"buffer_load_dwordx4 v{XV+i}, s[12:15], s46 offen{NTX} lds")
            A(f"s_add_u32 s50, s48, s45")
            A(f"s_add_u32 m0, s50, {i*1024}")
            A(f"s_nop 0")
            A(f"buffer_load_dwordx4 v{WV}, s[16:19], s51 offen{NTW} lds")
        A(f"""
        s_add_u32 s46, s46, 128
        s_add_u32 s47, s47, {64*3840}
        s_add_u32 s48, s48, {ST1}
        s_cmp_eq_u32 s48, {R1+NS1*ST1}
        s_cselect_b32 s48, {R1}, s48
        s_add_u32 s56, s56, 1
        s_cmp_eq_u32 s56, 10
        s_cselect_b32 s54, {10*128}, 0
        s_sub_u32 s46, s46, s54
        s_cmp_eq_u32 s56, 10
        s_cselect_b32 s54, {10*64*3840}, 0
        s_sub_u32 s47, s47, s54
        s_cmp_eq_u32 s56, 10
        s_cselect_b32 s56, 0, s56
        s_add_u32 s49, s49, 1
        s_cmp_eq_u32 s49, 10
        s_cbranch_scc0 {name}_ld_{tag}
        """)
        srd(A, 12, 20, 21, X_BYTES)
        srd(A, 16, 22, 23, W_BYTES)
        A(f"""
        {name}_ld_{tag}:
        """)
    SPD = int(os.environ.get("SPD", "0"))
    def spf_bases(xl, xh, wl, wh):
        A(f"""
        s_lshl_b32 s54, s64, 2
        s_add_u32 s54, s54, s35
        s_lshl_b32 s55, s65, 9
        s_lshl_b32 s57, s54, 2
        s_add_u32 s55, s55, s57
        s_mul_i32 s55, s55, 1280
        s_add_u32 s60, s{xl}, s55
        s_addc_u32 s61, s{xh}, 0
        s_lshr_b32 s55, s54, 1
        s_mul_i32 s55, s55, 3840
        s_and_b32 s57, s54, 1
        s_lshl_b32 s57, s57, 10
        s_add_u32 s55, s55, s57
        s_lshl_b32 s57, s30, 11
        s_add_u32 s55, s55, s57
        s_add_u32 s62, s{wl}, s55
        s_addc_u32 s63, s{wh}, 0
        """)
    def spf_one():
        for r in range(4): A(f"s_load_dword s94, s[60:61], {r*1280}")
        for r in range(8): A(f"s_load_dword s95, s[62:63], {r*128}")
        A(f"""
        s_add_u32 s60, s60, 128
        s_addc_u32 s61, s61, 0
        s_add_u32 s62, s62, {64*3840}
        s_addc_u32 s63, s63, 0
        """)
    issue("p0"); issue("p1"); issue("p2")
    if SPD:
        spf_bases(24, 25, 26, 27)
        A(f"""
        s_add_u32 s60, s60, {3*128}
        s_addc_u32 s61, s61, 0
        s_add_u32 s62, s62, {3*64*3840}
        s_addc_u32 s63, s63, 0
        s_mov_b32 s100, 3
        """)
        for _ in range(SPD - 3):
            spf_one(); A("s_add_u32 s100, s100, 1")
    stamp(A, 1)
    if STAMPS: A("s_mov_b32 s74, 0\ns_mov_b32 s75, 0\ns_mov_b32 s76, 0\ns_mov_b32 s77, 0\ns_mov_b32 s80, 0\ns_mov_b32 s81, 0")
    if os.environ.get("XP") == "nobar":
        A(f"""
        s_mov_b32 s52, 0
        {name}_xl:
        s_waitcnt vmcnt({os.environ.get("XVM", "16")})
        """)
        issue("xp")
        A(f"""
        s_add_u32 s52, s52, 1
        s_cmp_lt_u32 s52, 17
        s_cbranch_scc1 {name}_xl
        s_waitcnt vmcnt(0)
        """)
        stamp(A, 4); stamp(A, 9); stamp(A, 11, real=True)
        stamp_flush(A, 12, 0, 32, base=70)
        A("s_endpgm")
    A(f"""
    s_mov_b32 s52, 0
    {name}_lloop:
    """)
    if STAMPS and LSTAMP:
        A("""
        s_memtime s[86:87]
        s_waitcnt lgkmcnt(0)
        s_waitcnt vmcnt(16)
        s_memtime s[88:89]
        s_waitcnt lgkmcnt(0)
        s_sub_u32 s90, s88, s86
        s_add_u32 s74, s74, s90
        s_barrier
        s_memtime s[86:87]
        s_waitcnt lgkmcnt(0)
        s_sub_u32 s90, s86, s88
        s_add_u32 s76, s76, s90
        """)
    else:
        A("s_waitcnt vmcnt(16)")
        A("s_barrier")
    issue("lp")
    if SPD:
        A(f"""
        s_cmp_ge_u32 s100, 20
        s_cbranch_scc1 {name}_nsp
        s_cmp_eq_u32 s100, 10
        s_cbranch_scc0 {name}_sp1
        """)
        spf_bases(20, 21, 22, 23)
        A(f"{name}_sp1:")
        spf_one()
        A(f"""
        s_add_u32 s100, s100, 1
        {name}_nsp:
        """)
    if STAMPS and LSTAMP:
        A("""
        s_memtime s[88:89]
        s_waitcnt lgkmcnt(0)
        s_sub_u32 s90, s88, s86
        s_add_u32 s80, s80, s90
        """)
    A(f"""
    s_add_u32 s52, s52, 1
    s_cmp_lt_u32 s52, 17
    s_cbranch_scc1 {name}_lloop
    s_waitcnt vmcnt(16)
    s_barrier
    s_waitcnt vmcnt(8)
    s_barrier
    s_waitcnt vmcnt(0)
    s_barrier
    s_mov_b32 s54, {FBW}
    """)
    tile_flags_voff(A, 7)
    A("s_mov_b32 exec_lo, 0xffffff\ns_mov_b32 exec_hi, 0")
    flag_issue(A, 7, 54, 16)
    A("s_mov_b64 exec, -1")
    import fused2
    fused2.kv_dma_setup(A)
    A(f"""
    s_barrier
    s_waitcnt vmcnt(0)
    s_mov_b32 s54, {FBW}
    """)
    stamp(A, 7)
    flag_check(A, 7, 54, 16, NTF, masked=True)
    stamp(A, 8)
    p2_stage_dma(A, 0)
    p2_q_dma(A)
    A(f"""
    s_waitcnt vmcnt(0)
    s_barrier
    """)

def stage0_all(A):
    A("s_mov_b32 s63, s35")
    for p in range(4):
        A(f"s_mov_b32 s35, {p}")
        p2_stage_dma(A, 0)
        p2_q_dma(A)
    A("s_mov_b32 s35, s63")

PF_MODE = os.environ.get('PF_MODE', 'off')
def prefetch_share(A, xl, xh, wl, wh, nw, widx):
    if PF_MODE == 'off': return
    srd(A, 12, xl, xh, X_BYTES)
    srd(A, 16, wl, wh, W_BYTES)
    A(f"""
    s_mul_i32 s50, s2, 10240
    s_mul_i32 s51, s2, 9600
    s_lshl_b32 s52, s{widx}, 10
    s_add_u32 s50, s50, s52
    s_add_u32 s51, s51, s52
    """)
    for r in range(-(-10 // nw)):
        L = A.new("pf")
        lim = 10 - r * nw
        if lim < nw:
            A(f"s_cmp_ge_u32 s{widx}, {lim}")
            A(f"s_cbranch_scc1 {L}")
        A(f"s_add_u32 s52, s50, {r*nw*1024}")
        A(f"buffer_load_dwordx4 v[216:219], v2, s[12:15], s52 offen")
        A(f"s_add_u32 s52, s51, {r*nw*1024}")
        A(f"buffer_load_dwordx4 v[220:223], v2, s[16:19], s52 offen")
        if lim < nw: A(f"{L}:")

L2PF = int(os.environ.get('L2PF', '5'))
def l2pf_setup(A):
    L = A.new("l2")
    A(f"""
    s_mov_b32 s69, 0
    s_cmp_lg_u32 s32, 1
    s_cbranch_scc1 {L}_e
    s_cmp_ge_u32 s64, 24
    s_cbranch_scc1 {L}_e
    s_mov_b32 s69, 1
    s_cmp_ge_u32 s64, 8
    s_cbranch_scc1 {L}_w
    s_lshl_b32 s44, s65, 9
    s_lshl_b32 s45, s64, 6
    s_add_u32 s44, s44, s45
    v_add_u32 v5, s44, v1
    v_mul_u32_u24 v5, 1280, v5
    s_mov_b32 s55, 128
    """)
    srd(A, 96, 24, 25, X_BYTES)
    A(f"""
    s_branch {L}_go
    {L}_w:
    s_sub_u32 s44, s64, 8
    s_lshl_b32 s44, s44, 2
    v_lshrrev_b32 v5, 4, v1
    v_add_u32 v5, s44, v5
    v_mul_u32_u24 v5, 3840, v5
    v_and_b32 v6, 15, v1
    v_lshlrev_b32 v6, 7, v6
    s_lshl_b32 s44, s30, 11
    v_add3_u32 v5, v5, v6, s44
    s_mov_b32 s55, {64*3840}
    """)
    srd(A, 96, 26, 27, W_BYTES)
    A(f"""
    {L}_go:
    s_mul_i32 s54, s55, 4
    s_mov_b32 s57, 4
    {L}_e:
    """)
def l2pf_one(A):
    if not L2PF: return
    L = A.new("l2o")
    A(f"""
    s_cmp_eq_u32 s69, 1
    s_cbranch_scc0 {L}_e
    s_cmp_ge_u32 s57, 20
    s_cbranch_scc1 {L}_e
    s_cmp_eq_u32 s57, 10
    s_cbranch_scc0 {L}_n
    s_mov_b32 s54, 0
    s_cmp_ge_u32 s64, 8
    s_cbranch_scc1 {L}_w
    """)
    srd(A, 96, 20, 21, X_BYTES)
    A(f"s_branch {L}_n")
    A(f"{L}_w:")
    srd(A, 96, 22, 23, W_BYTES)
    A(f"""
    {L}_n:
    buffer_load_dword v224, v5, s[96:99], s54 offen
    s_add_u32 s54, s54, s55
    s_add_u32 s57, s57, 1
    {L}_e:
    """)

def p1_compute(A, name, orient):
    tag = f"{name}_c{orient}"
    FB_ = [16, 32, 48, 144]
    ACCS = [64, 160]
    T = 224
    def reads(c, kk):
        q = c % 4
        b = FB_[kk]
        xa = (CXA if q < 2 else CXA2) + kk; wa = CWA if q < 2 else CWA2
        so = (q & 1) * ST1
        L = []
        L.append(f"ds_read_b128 {v(b,4)}, v{xa} offset:{so}")
        for jj in range(2): L.append(f"ds_read_b64_tr_b16 {v(b+8+2*jj,2)}, v{wa} offset:{so+kk*4096+jj*1024}")
        L.append(f"ds_read_b128 {v(b+4,4)}, v{xa} offset:{so+4096}")
        for jj in range(2): L.append(f"ds_read_b64_tr_b16 {v(b+12+2*jj,2)}, v{wa+1} offset:{so+kk*4096+jj*1024}")
        return L
    def mf(c, kk):
        b = FB_[kk]; acc = ACCS[c // 10]
        first = (c % 10 == 0 and kk == 0)
        L = []
        for nt in range(2):
            for st in range(2):
                X = v(b+4*st,4); W = v(b+8+4*nt,4)
                if orient == "T":
                    D = v(acc+16*(2*nt+st),16); L.append(f"v_mfma_f32_32x32x16_bf16 {D}, {W}, {X}, {'0' if first else D}")
                else:
                    D = v(acc+16*(2*st+nt),16); L.append(f"v_mfma_f32_32x32x16_bf16 {D}, {X}, {W}, {'0' if first else D}")
        return L
    def epilogue(br_is_B):
        acc = ACCS[0 if br_is_B else 1]
        L = []
        if orient == "T":
            n = 0
            for nt in range(2):
                for st in range(2):
                    r0 = acc+16*(2*nt+st)
                    for ip in range(2):
                        t_ = T + 4*(n % 4); n += 1
                        if br_is_B:
                            for e in range(8): L.append(f"v_mul_f32 v{r0+8*ip+e}, s62, v{r0+8*ip+e}")
                        for e in range(4): L.append(f"v_cvt_pk_bf16_f32 v{t_+e}, v{r0+8*ip+2*e}, v{r0+8*ip+2*e+1}")
                        L.append(f"s_add_u32 s55, s61, {(4*nt+2*ip)*QKG + st*512}")
                        L.append(f"s_nop 0")
                        L.append(f"v_permlane32_swap_b32 v{t_}, v{t_+2}")
                        L.append(f"v_permlane32_swap_b32 v{t_+1}, v{t_+3}")
                        L.append(f"buffer_store_dwordx4 {v(t_,4)}, v{CEA}, s[8:11], s55 offen sc1")
        else:
            for nt in range(2):
                for st in range(2):
                    for m in range(2):
                        r0 = acc+16*(2*st+nt)+8*m
                        t_ = T + 4*((2*st+m) % 4)
                        for e in range(4): L.append(f"v_cvt_pk_bf16_f32 v{t_+e}, v{r0+2*e}, v{r0+2*e+1}")
                        L.append(f"buffer_store_dwordx4 {v(t_,4)}, v{CEA+nt}, s[8:11], s61 offen offset:{(2*st+m)*640} sc1")
        return L
    if orient == "T":
        A(f"""
        s_lshl_b32 s44, s38, 4
        s_and_b32 s45, s35, 1
        s_lshl_b32 s45, s45, 3
        s_add_u32 s44, s44, s45
        v_add_u32 v{T}, s44, v131
        v_lshlrev_b32 v{T}, 15, v{T}
        s_lshl_b32 s44, s37, 7
        s_lshr_b32 s45, s35, 1
        s_lshl_b32 s45, s45, 6
        s_add_u32 s44, s44, s45
        v_add_u32 v{T+1}, s44, v3
        v_lshlrev_b32 v{T+1}, 4, v{T+1}
        v_add_u32 v{CEA}, v{T}, v{T+1}
        s_mov_b32 s60, {QKOFF}
        s_mov_b32 s62, 1.0
        s_cmp_lt_u32 s38, 5
        s_cselect_b32 s62, {QSCALE:#x}, s62
        """)
    else:
        A(f"""
        s_sub_u32 s44, s38, 10
        s_lshl_b32 s44, s44, 7
        s_and_b32 s45, s35, 1
        s_lshl_b32 s45, s45, 6
        s_add_u32 s44, s44, s45
        s_mul_i32 s60, s37, {VC}
        s_add_u32 s60, s60, {VOFF}
        s_lshr_b32 s45, s35, 1
        s_mul_i32 s45, s45, {4*640}
        s_add_u32 s60, s60, s45
        v_mul_u32_u24 v{T}, 320, v131
        s_mov_b32 s45, {VH}
        """)
        for nt in range(2):
            A(f"""
            v_add_u32 v{T+1}, s44, v3
            v_add_u32 v{T+1}, {32*nt}, v{T+1}
            v_mul_u32_u24 v{T+2}, 3277, v{T+1}
            v_lshrrev_b32 v{T+2}, 16, v{T+2}
            v_mul_u32_u24 v{T+3}, 20, v{T+2}
            v_sub_u32 v{T+3}, v{T+1}, v{T+3}
            v_lshlrev_b32 v{T+3}, 4, v{T+3}
            v_mul_lo_u32 v{T+2}, v{T+2}, s45
            v_add3_u32 v{CEA+nt}, v{T+2}, v{T+3}, v{T}
            """)
    for kk in range(4): A(f"v_add_u32 v{CXA2+kk}, {2*ST1}, v{CXA+kk}")
    for nt in range(2): A(f"v_add_u32 v{CWA2+nt}, {2*ST1}, v{CWA+nt}")
    A(f"s_add_u32 s61, s60, {BR}")
    stamp(A, 1)
    A("s_barrier")
    stamp(A, 2)
    for l in reads(0, 0) + reads(0, 1): A(l)
    EPI = epilogue(True)
    def emit(M, R, extra_per=0):
        R = list(R)
        for i_, m in enumerate(M):
            A(m)
            for _ in range(3):
                if R: A(R.pop(0))
            for _ in range(extra_per):
                if EPI: A(EPI.pop(0))
    for c in range(20):
        ex = 0
        if c in (10, 11): ex = -(-len(epilogue(True)) // 30)
        A("s_waitcnt lgkmcnt(6)")
        emit(mf(c, 0), reads(c, 2), ex if c != 10 else 0)
        A("s_waitcnt lgkmcnt(6)")
        emit(mf(c, 1), reads(c, 3), ex)
        if c == SIGC: A("s_waitcnt vmcnt(0)")
        A("s_waitcnt lgkmcnt(0)")
        A("s_barrier")
        emit(mf(c, 2), reads(c + 1, 0), ex)
        A("s_waitcnt lgkmcnt(6)")
        emit(mf(c, 3), reads(c + 1, 1), ex)
        if c == 11:
            while EPI: A(EPI.pop(0))
        if c == 15:
            import fused2
            fused2.kv_dma_setup(A)
        if c == 4:
            L = A.new("fp")
            A(f"""
            s_cmp_eq_u32 s32, 0
            s_cbranch_scc0 {L}
            v_mov_b32 v240, {FPREP*4}
            global_load_dword v241, v240, s[4:5] sc1
            {L}:
            """)
        if c == 9: stamp(A, 5)
        if c == SIGC:
            A(f"s_cmp_eq_u32 s32, 0")
            A(f"s_cbranch_scc1 {tag}_hk_sig")
            A(f"{tag}_rt_sig:")
    stamp(A, 3)
    A(f"s_mov_b32 s61, s60")
    for l in epilogue(False): A(l)
    A(f"s_branch {name}_cdone")
    A(f"{tag}_hk_sig:")
    stamp(A, 7)
    L = A.new("cp")
    A(f"""
    v_readfirstlane_b32 s58, v241
    s_cmp_ge_u32 s58, 16
    s_cbranch_scc1 {L}
    """)
    check_prep(A, 240, 241)
    A(f"""
    {L}:
    s_lshl_b32 s54, s38, 7
    s_lshl_b32 s55, s37, 2
    s_add_u32 s54, s54, s55
    s_add_u32 s54, s54, {FBW}
    """)
    set_flag_ws(A, 54, 240, 241)
    A(f"s_branch {tag}_rt_sig")

def p1_compute_setup(A):
    A(f"""
    s_lshr_b32 s44, s35, 1
    s_lshl_b32 s44, s44, 6
    v_add_u32 v20, s44, v3
    v_lshlrev_b32 v20, 7, v20
    v_add_u32 v20, {R1}, v20
    v_lshrrev_b32 v16, 1, v3
    v_and_b32 v16, 7, v16
    v_xor_b32 v16, v16, v131
    """)
    for kk in range(4):
        A(f"""
        v_xor_b32 v17, {2*kk}, v16
        v_lshlrev_b32 v17, 4, v17
        v_add_u32 v{CXA+kk}, v20, v17
        """)
    A(f"""
    v_lshrrev_b32 v16, 2, v1
    v_and_b32 v16, 3, v16
    v_lshlrev_b32 v17, 11, v131
    v_lshlrev_b32 v18, 8, v16
    v_add_u32 v17, v17, v18
    v_lshrrev_b32 v18, 4, v1
    v_and_b32 v18, 1, v18
    v_lshlrev_b32 v18, 5, v18
    v_add_u32 v17, v17, v18
    v_and_b32 v18, 3, v1
    v_lshlrev_b32 v18, 3, v18
    v_add_u32 v17, v17, v18
    v_add_u32 v17, {R1+16384}, v17
    s_and_b32 s44, s35, 1
    s_lshl_b32 s44, s44, 1
    """)
    for nt in range(2):
        A(f"""
        s_add_u32 s45, s44, {nt}
        v_xor_b32 v18, s45, v16
        v_lshlrev_b32 v18, 6, v18
        v_add_u32 v{CWA+nt}, v17, v18
        """)


STK = 16384
NSK = int(os.environ.get("NSK", "8"))
DEP = int(os.environ.get("DEP", "7"))
def p1k_loader(A, name):
    XV_, WV_ = 192, 194
    A(f"""
    v_lshrrev_b32 v7, 2, v1
    s_lshl_b32 s44, s35, 5
    v_add_u32 v7, s44, v7
    v_mul_u32_u24 v7, 1280, v7
    v_lshrrev_b32 v8, 4, v1
    v_and_b32 v9, 3, v1
    v_xor_b32 v10, v9, v8
    v_and_b32 v10, 3, v10
    v_lshlrev_b32 v10, 4, v10
    v_add_u32 v{XV_}, v7, v10
    v_add_u32 v{XV_+1}, {16*1280}, v{XV_}
    s_lshl_b32 s44, s35, 3
    v_add_u32 v7, s44, v8
    v_mul_u32_u24 v7, 3840, v7
    v_lshrrev_b32 v10, 2, v1
    v_xor_b32 v10, v10, v8
    v_and_b32 v10, 3, v10
    v_lshlrev_b32 v10, 6, v10
    v_lshlrev_b32 v9, 4, v9
    v_add3_u32 v{WV_}, v7, v10, v9
    s_lshl_b32 s44, s35, 11
    s_add_u32 s44, s44, {R1}
    s_add_u32 s45, s44, 8192
    s_and_b32 s52, s37, 3
    s_mul_i32 s52, s52, 6
    s_lshl_b32 s54, s38, 1
    s_add_u32 s52, s52, s54
    s_lshl_b32 s54, s65, 2
    s_add_u32 s52, s52, s54
    s_cmp_ge_u32 s52, 40
    s_cselect_b32 s54, 40, 0
    s_sub_u32 s52, s52, s54
    s_cmp_ge_u32 s52, 20
    s_cselect_b32 s54, 20, 0
    s_sub_u32 s52, s52, s54
    s_mov_b32 s56, s52
    s_mul_i32 s46, s37, {128*1280}
    s_lshl_b32 s54, s52, 6
    s_add_u32 s46, s46, s54
    s_lshl_b32 s47, s38, 8
    s_mul_i32 s54, s52, {32*3840}
    s_add_u32 s47, s47, s54
    s_mov_b32 s48, 0
    s_mov_b32 s49, 0
    """)
    srd(A, 12, 24, 25, X_BYTES)
    srd(A, 16, 26, 27, W_BYTES)
    def issue(tag):
        for i in range(2):
            A(f"s_add_u32 s50, s48, s44")
            A(f"s_add_u32 m0, s50, {i*1024}")
            A(f"s_add_u32 s51, s47, {i*4*3840}")
            A(f"buffer_load_dwordx4 v{XV_+i}, s[12:15], s46 offen lds")
            A(f"s_add_u32 s50, s48, s45")
            A(f"s_add_u32 m0, s50, {i*1024}")
            A(f"s_nop 0")
            A(f"buffer_load_dwordx4 v{WV_}, s[16:19], s51 offen lds")
        A(f"""
        s_add_u32 s46, s46, 64
        s_add_u32 s47, s47, {32*3840}
        s_add_u32 s48, s48, {STK}
        s_and_b32 s48, s48, {NSK*STK - 1:#x}
        s_add_u32 s56, s56, 1
        s_cmp_eq_u32 s56, 20
        s_cselect_b32 s54, {20*64}, 0
        s_sub_u32 s46, s46, s54
        s_cmp_eq_u32 s56, 20
        s_cselect_b32 s54, {20*32*3840}, 0
        s_sub_u32 s47, s47, s54
        s_cmp_eq_u32 s56, 20
        s_cselect_b32 s56, 0, s56
        s_add_u32 s49, s49, 1
        s_cmp_eq_u32 s49, 20
        s_cbranch_scc0 {name}_lk_{tag}
        """)
        srd(A, 12, 20, 21, X_BYTES)
        srd(A, 16, 22, 23, W_BYTES)
        A(f"{name}_lk_{tag}:")
    for k in range(DEP): issue(f"p{k}")
    stamp(A, 1)
    A(f"""
    s_waitcnt vmcnt({4*(DEP-1)})
    s_barrier
    s_mov_b32 s52, 0
    {name}_lkloop:
    s_waitcnt vmcnt({4*(DEP-2)})
    s_barrier
    """)
    issue("lp")
    A(f"""
    s_add_u32 s52, s52, 1
    s_cmp_lt_u32 s52, {40 - DEP}
    s_cbranch_scc1 {name}_lkloop
    """)
    EARLY = int(os.environ.get("EARLY", "38"))
    import fused2
    A(f"s_mov_b32 s54, {FBW}")
    tile_flags_voff(A, 7)
    for b in range(41 - DEP, 41):
        left = max(0, 39 - b)
        if b < EARLY: A(f"s_waitcnt vmcnt({4*left})")
        elif b == EARLY: A("s_waitcnt vmcnt(0)")
        if b == EARLY - 1:
            pass
        A("s_barrier")
        if b == EARLY - 2:
            A("s_mov_b32 exec_lo, 0xffffff\ns_mov_b32 exec_hi, 0")
            flag_issue(A, 7, 54, 16)
            A("s_mov_b64 exec, -1")
        if b == EARLY:
            L = A.new("ea")
            A("s_mov_b32 s63, 0")
            A(f"v_and_b32 v16, v16, v17\nv_and_b32 v18, v18, v19\nv_and_b32 v16, v16, v18\nv_cmp_eq_u32 vcc, 1, v16\ns_and_b32 s58, vcc_lo, 0xffffff\ns_cmp_eq_u32 s58, 0xffffff")
            A(f"s_cbranch_scc0 {L}")
            A("s_mov_b32 s63, 1")
            p2_stage_dma(A, 0)
            p2_q_dma(A)
            A(f"{L}:")
            fused2.kv_dma_setup(A)
    L = A.new("eb")
    A(f"""
    s_cmp_eq_u32 s63, 1
    s_cbranch_scc1 {L}
    s_mov_b32 s54, {FBW}
    s_mov_b32 exec_lo, 0xffffff
    s_mov_b32 exec_hi, 0
    """)
    stamp(A, 7)
    poll_ws(A, 7, 54, 16, NTF)
    stamp(A, 8)
    A("s_mov_b64 exec, -1")
    p2_stage_dma(A, 0)
    p2_q_dma(A)
    A(f"""
    {L}:
    s_waitcnt vmcnt(0)
    s_barrier
    """)

def p1k_compute(A, name, orient):
    tag = f"{name}_k{orient}"
    XA_, WA_, EA_ = 4, 8, 128
    FB_ = [16, 32]
    T = 144
    def reads(q, kk, b):
        hi = q // 4; so = (q % 4) * STK; b = FB_[b]
        xa = XA_ + 2*hi + kk; wa = WA_ + 2*hi
        L = [f"ds_read_b128 {v(b,4)}, v{xa} offset:{so}"]
        for jj in range(2): L.append(f"ds_read_b64_tr_b16 {v(b+8+2*jj,2)}, v{wa} offset:{so+kk*4096+jj*1024}")
        L.append(f"ds_read_b128 {v(b+4,4)}, v{xa} offset:{so+2048}")
        for jj in range(2): L.append(f"ds_read_b64_tr_b16 {v(b+12+2*jj,2)}, v{wa+1} offset:{so+kk*4096+jj*1024}")
        return L
    def mf(b):
        b = FB_[b]; L = []
        for nt in range(2):
            for s_ in range(2):
                X = v(b+4*s_,4); W = v(b+8+4*nt,4)
                if orient == "T":
                    D = v(ACC+16*(2*nt+s_),16); L.append(f"v_mfma_f32_32x32x16_bf16 {D}, {W}, {X}, {D}")
                else:
                    D = v(ACC+16*(2*s_+nt),16); L.append(f"v_mfma_f32_32x32x16_bf16 {D}, {X}, {W}, {D}")
        return L
    def step(M, R):
        R = list(R)
        for m in M:
            A(m)
            for _ in range(3):
                if R: A(R.pop(0))
    A(f"""
    s_lshr_b32 s44, s35, 1
    s_lshl_b32 s44, s44, 6
    v_add_u32 v18, s44, v3
    v_lshlrev_b32 v18, 6, v18
    v_add_u32 v18, {R1}, v18
    v_lshrrev_b32 v19, 2, v3
    v_and_b32 v19, 3, v19
    v_xor_b32 v19, v19, v131
    v_lshlrev_b32 v20, 4, v19
    v_add_u32 v{XA_}, v18, v20
    v_xor_b32 v19, 2, v19
    v_lshlrev_b32 v20, 4, v19
    v_add_u32 v{XA_+1}, v18, v20
    v_add_u32 v{XA_+2}, 65536, v{XA_}
    v_add_u32 v{XA_+3}, 65536, v{XA_+1}
    v_lshrrev_b32 v16, 2, v1
    v_and_b32 v16, 3, v16
    v_lshlrev_b32 v18, 11, v131
    v_lshlrev_b32 v19, 8, v16
    v_add_u32 v18, v18, v19
    v_lshrrev_b32 v19, 4, v1
    v_and_b32 v19, 1, v19
    v_lshlrev_b32 v19, 5, v19
    v_add_u32 v18, v18, v19
    v_and_b32 v19, 3, v1
    v_lshlrev_b32 v19, 3, v19
    v_add_u32 v18, v18, v19
    v_add_u32 v18, {R1 + 8192}, v18
    s_and_b32 s44, s35, 1
    s_lshl_b32 s44, s44, 1
    """)
    for nt in range(2):
        A(f"""
        s_add_u32 s45, s44, {nt}
        v_xor_b32 v19, s45, v16
        v_lshlrev_b32 v19, 6, v19
        v_add_u32 v{WA_+nt}, v18, v19
        v_add_u32 v{WA_+2+nt}, 65536, v{WA_+nt}
        """)
    if orient == "T":
        A(f"""
        s_lshl_b32 s44, s38, 4
        s_and_b32 s45, s35, 1
        s_lshl_b32 s45, s45, 3
        s_add_u32 s44, s44, s45
        v_add_u32 v{T}, s44, v131
        v_lshlrev_b32 v{T}, 15, v{T}
        s_lshl_b32 s44, s37, 7
        s_lshr_b32 s45, s35, 1
        s_lshl_b32 s45, s45, 6
        s_add_u32 s44, s44, s45
        v_add_u32 v{T+1}, s44, v3
        v_lshlrev_b32 v{T+1}, 4, v{T+1}
        v_add_u32 v{EA_}, v{T}, v{T+1}
        s_mov_b32 s61, {BR + QKOFF}
        s_mov_b32 s62, 1.0
        s_cmp_lt_u32 s38, 5
        s_cselect_b32 s62, {QSCALE:#x}, s62
        """)
    else:
        A(f"""
        s_sub_u32 s44, s38, 10
        s_lshl_b32 s44, s44, 7
        s_and_b32 s45, s35, 1
        s_lshl_b32 s45, s45, 6
        s_add_u32 s44, s44, s45
        s_mul_i32 s61, s37, {VC}
        s_add_u32 s61, s61, {BR + VOFF}
        s_lshr_b32 s45, s35, 1
        s_mul_i32 s45, s45, {4*640}
        s_add_u32 s61, s61, s45
        v_mul_u32_u24 v{T}, 320, v131
        s_mov_b32 s45, {VH}
        """)
        for nt in range(2):
            A(f"""
            v_add_u32 v{T+1}, s44, v3
            v_add_u32 v{T+1}, {32*nt}, v{T+1}
            v_mul_u32_u24 v{T+2}, 3277, v{T+1}
            v_lshrrev_b32 v{T+2}, 16, v{T+2}
            v_mul_u32_u24 v{T+3}, 20, v{T+2}
            v_sub_u32 v{T+3}, v{T+1}, v{T+3}
            v_lshlrev_b32 v{T+3}, 4, v{T+3}
            v_mul_lo_u32 v{T+2}, v{T+2}, s45
            v_add3_u32 v{EA_+nt}, v{T+2}, v{T+3}, v{T}
            """)
    for i in range(64): A(f"v_mov_b32 v{ACC+i}, 0")
    stamp(A, 1)
    A("s_mov_b32 s63, 0")
    A("s_barrier")
    stamp(A, 2)
    for l in reads(0, 0, 0): A(l)
    A("s_mov_b32 s46, 0")
    A(f"{tag}_loop:")
    SG = int(os.environ.get("SIGK", "22")); SGI, SGQ = SG // 8, SG % 8
    for q in range(8):
        qq = q % NSK
        A("s_waitcnt lgkmcnt(0)")
        step(mf(0), reads(qq, 1, 1))
        if q == SGQ:
            A(f"s_cmp_eq_u32 s46, {SGI}")
            A(f"s_cbranch_scc1 {tag}_vm")
            A(f"{tag}_vmr:")
        A("s_waitcnt lgkmcnt(0)")
        A("s_barrier")
        M = mf(1)
        step(M, reads((q + 1) % NSK, 0, 0))
        if q == SGQ:
            A(f"s_cmp_eq_u32 s46, {SGI}")
            A(f"s_cbranch_scc1 {tag}_sig")
            A(f"{tag}_sigr:")
        if q == 0:
            A(f"s_cmp_eq_u32 s46, 1")
            A(f"s_cbranch_scc1 {tag}_fp")
            A(f"{tag}_fpr:")
        if q == 3:
            A(f"s_cmp_eq_u32 s46, 2")
            A(f"s_cbranch_scc1 {tag}_epi")
            A(f"{tag}_epir:")
        if q == 7:
            A("s_add_u32 s46, s46, 1")
            A("s_cmp_lt_u32 s46, 5")
            A(f"s_cbranch_scc1 {tag}_loop")
    stamp(A, 3)
    A(f"{tag}_epi:")
    A("s_waitcnt lgkmcnt(0)")
    n = 0
    if orient == "T":
        for nt in range(2):
            for s_ in range(2):
                r0 = ACC+16*(2*nt+s_)
                for ip in range(2):
                    t_ = T + 4*(n % 4); n += 1
                    for e in range(8): A(f"v_mul_f32 v{r0+8*ip+e}, s62, v{r0+8*ip+e}")
                    for e in range(4): A(f"v_cvt_pk_bf16_f32 v{t_+e}, v{r0+8*ip+2*e}, v{r0+8*ip+2*e+1}")
                    A(f"s_add_u32 s55, s61, {(4*nt+2*ip)*QKG + s_*512}")
                    A(f"v_permlane32_swap_b32 v{t_}, v{t_+2}")
                    A(f"v_permlane32_swap_b32 v{t_+1}, v{t_+3}")
                    A(f"buffer_store_dwordx4 {v(t_,4)}, v{EA_}, s[8:11], s55 offen sc1")
    else:
        for nt in range(2):
            for s_ in range(2):
                for m in range(2):
                    r0 = ACC+16*(2*s_+nt)+8*m
                    t_ = T + 4*((2*s_+m) % 4)
                    for e in range(4): A(f"v_cvt_pk_bf16_f32 v{t_+e}, v{r0+2*e}, v{r0+2*e+1}")
                    A(f"buffer_store_dwordx4 {v(t_,4)}, v{EA_+nt}, s[8:11], s61 offen offset:{(2*s_+m)*640} sc1")
    A(f"""
    s_cmp_eq_u32 s63, 1
    s_cbranch_scc1 {tag}_fin
    s_mov_b32 s63, 1
    s_sub_u32 s61, s61, {BR:#x}
    s_mov_b32 s62, 1.0
    """)
    stamp(A, 5)
    for i in range(64): A(f"v_mov_b32 v{ACC+i}, 0")
    A(f"s_branch {tag}_epir")
    A(f"{tag}_fin:")
    import fused2
    fused2.kv_dma_setup(A)
    A(f"s_branch {name}_cdone")
    A(f"{tag}_vm:")
    A("s_waitcnt vmcnt(0)")
    A(f"s_branch {tag}_vmr")
    A(f"{tag}_fp:")
    A(f"""
    s_cmp_eq_u32 s32, 0
    s_cbranch_scc0 {tag}_fpr
    v_mov_b32 v160, {FPREP*4}
    global_load_dword v161, v160, s[4:5] sc1
    s_branch {tag}_fpr
    {tag}_sig:
    s_cmp_eq_u32 s32, 0
    s_cbranch_scc0 {tag}_sigr
    """)
    stamp(A, 7)
    L = A.new("cp")
    A(f"""
    v_readfirstlane_b32 s58, v161
    s_cmp_ge_u32 s58, 16
    s_cbranch_scc1 {L}
    """)
    check_prep(A, 160, 161)
    A(f"""
    {L}:
    s_lshl_b32 s54, s38, 7
    s_lshl_b32 s55, s37, 2
    s_add_u32 s54, s54, s55
    s_add_u32 s54, s54, {FBW}
    """)
    set_flag_ws(A, 54, 160, 161)
    A(f"s_branch {tag}_sigr")

def p1_prep(A, name):
    A.c("prep WGs")
    A(f"""
    s_lshl_b32 s69, s65, 2
    s_add_u32 s69, s69, s64
    s_sub_u32 s69, s69, 28
    s_cmp_ge_u32 s32, 3
    s_cbranch_scc1 {name}_prep_done
    """)
    srd(A, 12, 28, 29, 32*20*20*2)
    A(f"""
    s_cmp_eq_u32 s32, 2
    s_cbranch_scc1 {name}_sel
    s_lshl_b32 s44, s69, 1
    s_add_u32 s44, s44, s32
    v_subrev_u32 v4, 2, v3
    v_cmp_gt_u32 vcc, 18, v3
    v_cndmask_b32 v4, v4, v3, vcc
    v_and_b32 v5, 30, v3
    v_cmp_eq_u32 s[46:47], 20, v5
    s_or_b64 s[46:47], s[46:47], vcc
    v_lshlrev_b32 v4, 1, v4
    s_mul_i32 s45, s44, 800
    v_add_u32 v4, s45, v4
    s_and_b32 s45, s44, 1
    s_mul_i32 s48, s45, {4*40}
    v_mul_u32_u24 v5, {8*40}, v131
    v_add3_u32 v5, v4, v5, s48
    v_mov_b32 v6, 0x7fffffff
    v_cndmask_b32 v5, v6, v5, s[46:47]
    v_cmp_eq_u32 vcc, 0, v131
    s_and_b64 s[46:47], s[46:47], vcc
    s_cmp_eq_u32 s45, 1
    s_cselect_b32 s48, 0, {16*40}
    v_add_u32 v4, s48, v4
    v_cndmask_b32 v4, v6, v4, s[46:47]
    """)
    for j in range(8): A(f"buffer_load_ushort v{16+j}, v5, s[12:15], 0 offen offset:{40*j}")
    for j in range(4): A(f"buffer_load_ushort v{24+j}, v4, s[12:15], 0 offen offset:{40*j}")
    A("s_waitcnt vmcnt(0)")
    for j in range(12):
        A(f"v_lshlrev_b32 v{16+j}, 16, v{16+j}")
        A(f"v_mul_f32 v{16+j}, {LOG2E:#x}, v{16+j}")
    for j in range(6): A(f"v_cvt_pk_bf16_f32 v{32+j}, v{16+2*j}, v{17+2*j}")
    A(f"""
    s_mul_i32 s45, s44, 1536
    s_add_u32 s45, s45, {WPH}
    v_lshlrev_b32 v7, 3, v1
    buffer_store_dwordx4 v[32:35], v2, s[8:11], s45 offen sc1
    buffer_store_dwordx2 v[36:37], v7, s[8:11], s45 offen offset:1024 sc1
    s_branch {name}_prep_done
    {name}_sel:
    s_cmp_lg_u32 s69, 0
    s_cbranch_scc1 {name}_prep_done
    v_lshlrev_b32 v4, 2, v131
    v_sub_u32 v4, v3, v4
    """)
    for j in range(12):
        tgt = (8*(j//4) + (j%4)) if j < 8 else 16 + (j-8)
        A(f"""
        v_cmp_eq_u32 vcc, {tgt}, v4
        v_mov_b32 v5, 0x3f80
        v_cndmask_b32 v{16+j}, 0, v5, vcc
        """)
    for j in range(6): A(f"v_lshl_or_b32 v{32+j}, v{17+2*j}, 16, v{16+2*j}")
    A(f"""
    s_mov_b32 s45, {SEL}
    v_lshlrev_b32 v7, 3, v1
    buffer_store_dwordx4 v[32:35], v2, s[8:11], s45 offen sc1
    buffer_store_dwordx2 v[36:37], v7, s[8:11], s45 offen offset:1024 sc1
    v_mov_b32 v40, 0
    v_mov_b32 v41, 0
    v_mov_b32 v42, 0
    v_mov_b32 v43, 0
    """)
    for j in range(FZERO_BYTES // 1024):
        A(f"s_mov_b32 s45, {FZERO_LO + j*1024}")
        A(f"buffer_store_dwordx4 v[40:43], v2, s[8:11], s45 offen sc1")
    A(f"""
    {name}_prep_done:
    """)
    stamp(A, 1)
    A(f"""
    s_load_dwordx2 s[44:45], s[0:1], 24
    s_load_dwordx2 s[46:47], s[0:1], 48
    s_waitcnt lgkmcnt(0)
    """)
    srd(A, 12, 44, 45, WO_BYTES)
    srd(A, 16, 46, 47, WO_BYTES)
    for i in range(13):
        L = A.new("wr")
        tv = 64 + 4 * i
        A(f"""
        s_add_u32 s48, s32, {8*i}
        s_cmp_ge_u32 s48, 100
        s_cbranch_scc1 {L}
        s_mul_i32 s49, s48, 205
        s_lshr_b32 s49, s49, 11
        s_mul_i32 s50, s49, 10
        s_sub_u32 s50, s48, s50
        s_mul_i32 s51, s69, 10
        s_add_u32 s49, s49, s51
        s_lshl_b32 s50, s50, 6
        v_add_u32 v10, s50, v1
        v_lshrrev_b32 v11, 5, v10
        v_mul_u32_u24 v12, 205, v11
        v_lshrrev_b32 v12, 11, v12
        v_mul_u32_u24 v13, 10, v12
        v_sub_u32 v11, v11, v13
        v_mul_u32_u24 v13, 52, v11
        v_lshrrev_b32 v13, 8, v13
        v_mul_u32_u24 v14, 5, v13
        v_sub_u32 v11, v11, v14
        v_lshlrev_b32 v12, 5, v12
        v_lshlrev_b32 v13, 2, v13
        v_add_u32 v12, v12, v13
        v_lshrrev_b32 v13, 3, v10
        v_and_b32 v13, 3, v13
        v_lshlrev_b32 v13, 3, v13
        v_add_u32 v12, v12, v13
        v_lshrrev_b32 v13, 1, v10
        v_and_b32 v13, 3, v13
        v_add_u32 v12, v12, v13
        v_mul_u32_u24 v12, 1280, v12
        v_lshlrev_b32 v11, 5, v11
        v_and_b32 v13, 1, v10
        v_lshlrev_b32 v13, 4, v13
        v_add3_u32 v10, v12, v11, v13
        s_cmp_ge_u32 s49, 80
        s_cselect_b32 s51, 80, 0
        s_sub_u32 s51, s49, s51
        s_mul_i32 s52, s51, 205
        s_lshr_b32 s52, s52, 11
        s_mul_i32 s54, s52, 10
        s_sub_u32 s54, s51, s54
        s_mul_i32 s54, s54, {64*1280}
        s_mul_i32 s52, s52, 160
        s_add_u32 s54, s54, s52
        s_cmp_ge_u32 s49, 80
        s_cbranch_scc1 {L}_b
        buffer_load_dwordx4 {v(tv,4)}, v10, s[12:15], s54 offen
        s_branch {L}
        {L}_b:
        buffer_load_dwordx4 {v(tv,4)}, v10, s[16:19], s54 offen
        {L}:
        """)
    stamp(A, 2)
    A("s_waitcnt vmcnt(0)")
    stamp(A, 3)
    for i in range(13):
        L = A.new("ws")
        tv = 64 + 4 * i
        A(f"""
        s_add_u32 s48, s32, {8*i}
        s_cmp_ge_u32 s48, 100
        s_cbranch_scc1 {L}
        s_mul_i32 s49, s69, 100
        s_add_u32 s49, s49, s48
        s_lshl_b32 s49, s49, 10
        s_add_u32 s49, s49, {WOP}
        buffer_store_dwordx4 {v(tv,4)}, v2, s[8:11], s49 offen sc1
        {L}:
        """)
    A("s_waitcnt vmcnt(0)")
    stamp(A, 7)
    A(f"""
    s_cmp_eq_u32 s36, 0
    s_cbranch_scc0 {name}_prep_npf
    """)
    prefetch_share(A, 20, 21, 22, 23, 4, 35)
    A(f"""
    {name}_prep_npf:
    s_barrier
    s_cmp_eq_u32 s32, 4
    s_cbranch_scc0 {name}_prep_w
    s_mov_b32 s50, {FPREP}
    """)
    signal_dbg(A, 50, 48, 49)
    check_prep(A, 48, 49)
    A(f"s_mov_b32 s50, {FBW}")
    tile_flags_voff(A, 7)
    A("s_mov_b32 exec_lo, 0xffffff\ns_mov_b32 exec_hi, 0")
    poll_ws(A, 7, 50, 16, NTF, sleep=32)
    A("s_mov_b64 exec, -1")
    stage0_all(A)
    A(f"""
    s_waitcnt vmcnt(0)
    {name}_prep_w:
    """)
    import fused2
    fused2.kv_dma_setup(A)
    A(f"""
    s_barrier
    s_branch {name}_p2entry
    """)

def code_prefetch(A, name, nblk=6):
    if os.environ.get("CODEPF", "1") != "1": return
    L = A.new("cpf")
    A(f"""
    s_cmp_eq_u32 s32, 7
    s_cbranch_scc0 {L}
    s_and_b32 s54, s64, {int(os.environ.get("CPFMASK", "15"))}
    s_cmp_eq_u32 s54, 0
    s_cbranch_scc0 {L}
    s_getpc_b64 s[54:55]
    {L}_pc:
    s_sub_u32 s54, s54, {L}_pc-{name}
    s_subb_u32 s55, s55, 0
    s_mov_b32 s56, {name}_end-{name}
    v_lshlrev_b32 v228, 7, v1
    """)
    for i in range(nblk):
        A(f"""
        v_cmp_gt_u32 vcc, s56, v228
        s_and_b64 exec, vcc, vcc
        s_cbranch_execz {L}_x
        global_load_dword v229, v228, s[54:55]
        v_add_u32 v228, 8192, v228
        """)
    A(f"""
    {L}_x:
    s_mov_b64 exec, -1
    {L}:
    """)

def tlb_warm(A, name):
    mode = os.environ.get("TLBW", "0")
    if mode == "0": return
    L = A.new("tw")
    A(f"""
    s_cmp_eq_u32 s32, 6
    s_cbranch_scc0 {L}
    s_cmp_ge_u32 s64, {32 - int(os.environ.get("TLBN", "1"))}
    s_cbranch_scc0 {L}
    s_load_dwordx2 s[44:45], s[0:1], 24
    s_load_dwordx2 s[46:47], s[0:1], 48
    s_load_dwordx2 s[48:49], s[0:1], 56
    v_lshlrev_b32 v230, 16, v1
    s_waitcnt lgkmcnt(0)
    """)
    for (lo, hi, sz) in ((20, 21, X_BYTES), (22, 23, W_BYTES), (24, 25, X_BYTES), (26, 27, W_BYTES), (44, 45, WO_BYTES), (46, 47, WO_BYTES)):
        srd(A, 12, lo, hi, sz)
        A("buffer_load_dword v231, v230, s[12:15], 0 offen")
    srd(A, 12, 48, 49, OUT_BYTES)
    A("buffer_load_dword v231, v230, s[12:15], 0 offen")
    A("s_mov_b32 s50, 0x400000")
    A("buffer_load_dword v231, v230, s[12:15], s50 offen")
    for i in range(8):
        A(f"s_mov_b32 s50, {i*0x400000:#x}")
        A("buffer_load_dword v231, v230, s[8:11], s50 offen")
    A(f"{L}:")

def gen_fused(A, name):
    kernel_begin(A, name)
    stamp(A, 10, real=True)
    gen_common(A, name)
    stamp(A, 0)
    tlb_warm(A, name)
    code_prefetch(A, name)
    prefetch_share(A, 24, 25, 26, 27, 8, 32)
    A(f"""
    s_cmp_eq_u32 s31, 1
    s_cbranch_scc1 {name}_prep
    s_cmp_eq_u32 s36, 1
    s_cbranch_scc1 {name}_loader
    """)
    if os.environ.get("XP") == "nobar": A("s_endpgm")
    K32 = os.environ.get("P1K", "32") == "32"
    if not K32: p1_compute_setup(A)
    A(f"""
    s_cmp_ge_u32 s38, 10
    s_cbranch_scc1 {name}_compN
    """)
    (p1k_compute if K32 else p1_compute)(A, name, "T")
    A(f"{name}_compN:")
    (p1k_compute if K32 else p1_compute)(A, name, "N")
    A(f"{name}_cdone:")
    A("s_barrier")
    A(f"s_branch {name}_p2entry")
    A(f"{name}_prep:")
    p1_prep(A, name)
    A(f"{name}_loader:")
    (p1k_loader if os.environ.get("P1K", "32") == "32" else p1_loader)(A, name)
    A(f"{name}_p2entry:")
    stamp(A, 4)
    if STOP_AFTER == "P1":
        A("s_waitcnt vmcnt(0)")
        stamp(A, 9)
        stamp(A, 11, real=True)
        stamp_flush(A, 12, 0, 32, base=70)
        A("s_endpgm")
    else:
        import fused2
        fused2.gen_p2(A, name)
    A(f"{name}_done:")
    A("s_endpgm")
    A(f"{name}_end:")
    return kernel_desc(name, 256)
```
